```python
import torch

def _softmax(x, axis=-1):
    return torch.softmax(x, dim=axis)
def _gelu(x):
    return torch.nn.functional.gelu(x, approximate="tanh")
def _silu(x):
    return torch.nn.functional.silu(x)
def _sigmoid(x):
    return torch.sigmoid(x)
def _layernorm(x, axis=-1, eps=1e-5):
    m = x.mean(dim=axis, keepdim=True)
    v = x.var(dim=axis, keepdim=True, unbiased=False)
    return (x - m) / torch.sqrt(v + eps)
def _scatter_add(tgt, idx, src, axis=0):
    return tgt.clone().index_add_(axis, idx, src)
def _segment_sum(src, seg, n):
    out = torch.zeros((n,) + src.shape[1:], dtype=src.dtype)
    return out.index_add_(0, seg, src)
def _pad(x, pw):
    flat = tuple(v for pair in reversed(pw) for v in pair)
    return torch.nn.functional.pad(x, flat)

kernel_name = 'concat_heads__compressed_kv_cla__mha_block_cached__decode'

def setup_inputs():

    _w = (lambda a: (lambda t: t.to(torch.bfloat16) if t.is_floating_point() else t)(torch.as_tensor(a)))
    def _A_setup():
        B, H, Sq, Sk, D, M = 1, 32, 1, 4096, 128, 640
        Dc = 4 * D
        return {
            "x": _w((lambda *s: torch.randn(*s, dtype=torch.bfloat16) * 3.2)(B, Sq, M)),
            "c_kv": _w((lambda *s: torch.randn(*s, dtype=torch.bfloat16) * 0.1)(B, Sk, Dc)),
            "w_q": _w((lambda *s: torch.randn(*s, dtype=torch.bfloat16) * 6.4)(M, H, D) * (M ** -0.5)),
            "w_uk": _w((lambda *s: torch.randn(*s, dtype=torch.bfloat16) * 6.4)(Dc, H, D) * (Dc ** -0.5)),
            "w_uv": _w((lambda *s: torch.randn(*s, dtype=torch.bfloat16) * 0.1)(Dc, H, D) * (Dc ** -0.5)),
            "w_o": _w((lambda *s: torch.randn(*s, dtype=torch.bfloat16) * 0.1)(H, D, M) * ((H * D) ** -0.5)),
        }
    _A_in = _A_setup()

    def _B_setup():
        B, Sq, D = 1, 1, 640
        H, Sk, Dh = 32, 4096, 128
        return {
            "x": _w((lambda *s: torch.randn(*s, dtype=torch.bfloat16) * 1.6)(B, Sq, D)),
            "k_cache": _w((lambda *s: torch.randn(*s, dtype=torch.bfloat16) * 1.6)(B, H, Sk, Dh)),
            "v_cache": _w((lambda *s: torch.randn(*s, dtype=torch.bfloat16) * 0.05)(B, H, Sk, Dh)),
            "wq": _w((lambda *s: torch.randn(*s, dtype=torch.bfloat16) * 1.6)(D, H * Dh) * (D ** -0.5)),
            "wo": _w((lambda *s: torch.randn(*s, dtype=torch.bfloat16) * 0.05)(H * Dh, D) * ((H * Dh) ** -0.5)),
        }
    _B_in = _B_setup()

    return {
        "A_x": _A_in["x"],
        "A_c_kv": _A_in["c_kv"],
        "A_w_q": _A_in["w_q"],
        "A_w_uk": _A_in["w_uk"],
        "A_w_uv": _A_in["w_uv"],
        "A_w_o": _A_in["w_o"],
        "B_x": _B_in["x"],
        "B_k_cache": _B_in["k_cache"],
        "B_v_cache": _B_in["v_cache"],
        "B_wq": _B_in["wq"],
        "B_wo": _B_in["wo"],
    }

def reference(A_x, A_c_kv, A_w_q, A_w_uk, A_w_uv, A_w_o, B_x, B_k_cache, B_v_cache, B_wq, B_wo):
    def _A_ref(x, c_kv, w_q, w_uk, w_uv, w_o):
        B, Sq, M = x.shape[0], x.shape[1], x.shape[2]
        Sk = c_kv.shape[1]
        H, D = w_q.shape[1], w_q.shape[2]
        q = torch.einsum("bqm,mhd->bhqd", x, w_q)
        k = torch.einsum("bkc,chd->bhkd", c_kv, w_uk)
        v = torch.einsum("bkc,chd->bhkd", c_kv, w_uv)
        scores = torch.einsum("bhqd,bhkd->bhqk", q, k) * (D ** -0.5)
        off = Sk - Sq
        qi = torch.arange(Sq)[:, None]
        kj = torch.arange(Sk)[None, :]
        cmask = kj <= (qi + off)
        scores = torch.where(cmask[None, None], scores, -1e9)
        p = _softmax(scores, axis=-1)
        ctx = torch.einsum("bhqk,bhkd->bhqd", p, v)
        return torch.einsum("bhqd,hdm->bqm", ctx, w_o)

    def _B_ref(x, k_cache, v_cache, wq, wo):
        B, Sq, D = x.shape
        H, Dh = 32, 128
        q = (lambda x, *d: x.permute(*d))((x @ wq).reshape(B, Sq, H, Dh), 0, 2, 1, 3)
        scores = torch.einsum("bhqd,bhkd->bhqk", q, k_cache) * (Dh ** -0.5)
        p = _softmax(scores, axis=-1)
        o = torch.einsum("bhqk,bhkd->bhqd", p, v_cache)
        return (lambda x, *d: x.permute(*d))(o, 0, 2, 1, 3).reshape(B, Sq, H * Dh) @ wo

    a = _A_ref(A_x, A_c_kv, A_w_q, A_w_uk, A_w_uv, A_w_o)
    b = _B_ref(B_x, B_k_cache, B_v_cache, B_wq, B_wo)
    return torch.concatenate([a, b], axis=-1)
```

```python
import re

REG = re.compile(r"^(v|s|a)(\d+)$")
RNG = re.compile(r"^(v|s|a)\[(\d+):(\d+)\]$")

def regs_of(tok):
    tok = tok.strip()
    if tok.startswith("-"): tok = tok[1:]
    if tok.startswith("abs(") and tok.endswith(")"): tok = tok[4:-1]
    m = REG.match(tok)
    if m: return {(m.group(1), int(m.group(2)))}
    m = RNG.match(tok)
    if m: return {(m.group(1), i) for i in range(int(m.group(2)), int(m.group(3)) + 1)}
    if tok == "vcc": return {("s", "vcc_lo"), ("s", "vcc_hi")}
    if tok in ("vcc_lo", "vcc_hi"): return {("s", tok)}
    if tok == "exec": return {("s", "exec_lo"), ("s", "exec_hi")}
    if tok in ("exec_lo", "exec_hi"): return {("s", tok)}
    if tok == "m0": return {("s", "m0")}
    return set()

TRANS = ("v_exp_f32", "v_log_f32", "v_rcp_f32", "v_rsq_f32", "v_sqrt_f32", "v_sin_f32", "v_cos_f32", "v_rcp_iflag_f32")

class Ins:
    def __init__(self, text):
        self.text = text
        t = text.split(";")[0].strip()
        self.label = t.endswith(":")
        self.empty = (t == "") or t.startswith(".")
        self.op = ""; self.ops = []; self.mods = ""
        if self.label or self.empty: return
        parts = t.split(None, 1)
        self.op = parts[0]
        rest = parts[1] if len(parts) > 1 else ""
        ops = []; cur = ""; depth = 0
        for ch in rest:
            if ch == "[": depth += 1
            if ch == "]": depth -= 1
            if ch == "," and depth == 0: ops.append(cur.strip()); cur = ""
            else: cur += ch
        if cur.strip(): ops.append(cur.strip())
        if ops:
            last = ops[-1].split(None, 1)
            ops[-1] = last[0]
            self.mods = last[1] if len(last) > 1 else ""
        self.ops = ops
        self.classify()
    def classify(self):
        op = self.op; o = self.ops
        self.valu = op.startswith("v_") and not op.startswith("v_mfma")
        self.mfma = op.startswith("v_mfma")
        self.dpp = "_dpp" in op or "quad_perm" in self.mods or "row_" in self.mods
        self.trans = any(op.startswith(x) for x in TRANS)
        self.dot = op.startswith("v_dot")
        self.permlane = op.startswith("v_permlane")
        self.readlane = op.startswith("v_readlane") or op.startswith("v_readfirstlane")
        self.writelane = op.startswith("v_writelane")
        self.vmem = op.startswith("buffer_") or op.startswith("global_")
        self.ds = op.startswith("ds_")
        self.salu = op.startswith("s_") and not op.startswith(("s_waitcnt", "s_nop", "s_barrier", "s_cbranch", "s_branch", "s_endpgm", "s_sleep", "s_setprio", "s_load", "s_memtime", "s_memrealtime"))
        self.ldsdma = self.vmem and re.search(r"\blds\b", self.mods + " " + (o[-1] if o else "")) is not None or op.startswith("global_load_lds")
        w = set(); r = set()
        R = lambda i: regs_of(o[i]) if i < len(o) else set()
        if self.mfma:
            w = R(0); self.srcA = R(1); self.srcB = R(2); self.srcC = R(3); r = R(1) | R(2) | R(3)
        elif self.valu:
            if op.startswith("v_cmp"):
                w = R(0); r = R(1) | R(2)
            elif self.permlane:
                w = R(0) | R(1); r = R(0) | R(1)
            elif op.startswith(("v_add_co", "v_sub_co", "v_addc_co", "v_subb_co")):
                w = R(0) | R(1); r = set().union(*[R(i) for i in range(2, len(o))])
            else:
                w = R(0); r = set().union(*[R(i) for i in range(1, len(o))]) if len(o) > 1 else set()
                if op.startswith(("v_fmac", "v_dot2c", "v_mac", "v_writelane")): r |= R(0)
                if self.dpp and not ("row_mask:0xf" in self.mods and "bank_mask:0xf" in self.mods): r |= R(0)
                if op.startswith("v_cndmask") and len(o) == 3: r |= regs_of("vcc")
        elif self.vmem:
            if "load" in op or ("atomic" in op):
                if self.ldsdma:
                    r = set().union(*[R(i) for i in range(len(o))]) | {("s", "m0")}
                elif op.startswith("buffer_"):
                    w = R(0); r = R(1) | R(2) | R(3)
                else:
                    w = R(0); r = R(1) | R(2)
            elif "store" in op:
                if op.startswith("buffer_"):
                    self.sdata = R(0); r = R(0) | R(1) | R(2) | R(3)
                else:
                    self.sdata = R(1); r = R(0) | R(1) | R(2)
        elif self.ds:
            if op.startswith(("ds_read", "ds_bpermute", "ds_permute", "ds_swizzle")):
                w = R(0); r = set().union(*[R(i) for i in range(1, len(o))])
            else:
                r = set().union(*[R(i) for i in range(len(o))])
        elif op.startswith(("s_load", "s_memtime", "s_memrealtime")):
            w = R(0); r = R(1)
        elif self.salu:
            if op.startswith(("s_cmp", "s_bitcmp")):
                r = R(0) | R(1)
            else:
                w = R(0); r = set().union(*[R(i) for i in range(1, len(o))]) if len(o) > 1 else set()
        self.w = w; self.r = r
    def states(self):
        if self.label or self.empty: return 0
        if self.op == "s_nop": return int(self.ops[0], 0) + 1
        return 1

def vg(s): return {x for x in s if x[0] in ("v", "a")}
def sg(s): return {x for x in s if x[0] == "s"}

def need(p, c):
    n = 0
    pv = vg(p.w); ps = sg(p.w)
    if p.valu:
        if pv & vg(c.r):
            if c.valu and c.dpp: n = max(n, 2)
            if c.mfma: n = max(n, 2)
            if c.valu and c.readlane: n = max(n, 1)
            if c.valu and c.permlane: n = max(n, 2)
            if p.trans and c.valu and not c.trans: n = max(n, 1)
            if p.trans and (c.vmem or c.ds): n = max(n, 1)
        if p.dot and (pv & (vg(c.r) | vg(c.w))):
            same_c = c.valu and c.dot and c.op == p.op and not (pv & (vg(c.r) - regs_of(c.ops[0]) - (regs_of(c.ops[3]) if len(c.ops) > 3 else set())))
            if not same_c: n = max(n, 3)
        if ps & sg(c.r):
            if c.vmem: n = max(n, 5)
            if c.valu:
                n = max(n, 2)
                if (c.op.startswith("v_readlane") or c.writelane) and (ps & regs_of(c.ops[-1])): n = max(n, 4)
    if p.mfma:
        passes = 8 if "32x32" in p.op else 4
        d_valu = {4: 8, 8: 12}[passes]
        if c.mfma:
            if p.w & (c.srcA | c.srcB): n = max(n, d_valu)
            if p.w & c.srcC and not (p.w == c.srcC): n = max(n, {4: 6, 8: 10}[passes])
            if (p.w & c.w) and not (p.w == c.srcC and p.w == c.w): n = max(n, {4: 6, 8: 10}[passes])
        elif (c.valu or c.vmem or c.ds):
            if p.w & (vg(c.r) | vg(c.w)): n = max(n, d_valu)
            if c.valu and (p.srcC & vg(c.w)): n = max(n, {4: 3, 8: 7}[passes])
    if p.vmem and "store" in p.op and re.search(r"x[34]", p.op):
        if p.sdata & vg(c.w): n = max(n, 2)
    if p.ds and p.op.startswith("ds_write") and re.search(r"b96|b128", p.op):
        if vg(p.r) & vg(c.w) and c.valu: n = max(n, 1)
    if p.salu and ("s", "m0") in p.w and (c.vmem and c.ldsdma): n = max(n, 1)
    return n

def hazard_pass(lines):
    out = []
    for text in lines:
        ins = Ins(text)
        if ins.label or ins.empty:
            out.append(ins); continue
        dist = 0; req = 0
        for p in reversed(out):
            if p.label or p.empty: continue
            if p.op in ("s_branch", "s_endpgm", "s_setpc_b64"): break
            k = need(p, ins)
            if k > dist: req = max(req, k - dist)
            dist += p.states()
            if dist >= 24: break
        if req > 0:
            while req > 0:
                k = min(req, 16)
                out.append(Ins(f"s_nop {k-1}"))
                req -= k
        out.append(ins)
    return [i.text for i in out]

class Asm:
    def __init__(self): self.l = []
    def __call__(self, s):
        for line in s.split("\n"):
            line = line.strip()
            if line: self.l.append(line)
    def text(self, hz=True):
        return "\n".join(hazard_pass(self.l) if hz else self.l) + "\n"
```

```python
import sys, struct
from asmlib import Asm

KN = "concat_heads__compressed_kv_cla__mha_block_cached__decode_kernel"

WS_QB   = 0x1000
WS_QA   = 0x16000
WS_QABS = 0x20000
WS_ML   = 0x30000
WS_MLB  = 0x34000
WS_OB   = 0x38000
WS_YA   = 0x50000
WS_YB   = 0x78000
WS_PROF = 0x90000
WS_CTX  = 0x100000
WS_SIZE = 0x300000

def f2u(x): return struct.unpack("<I", struct.pack("<f", x))[0]
C1 = 1.4426950408889634 / (128 ** 0.5)
NEG = -1.0e30

sW, sH, sSub = 3, 4, 5
WS = "s[8:11]"; OUT = "s[12:15]"
pAX, pCKV, pWQA, pWUK, pWUV, pWOA, pBX, pK, pV, pWQB, pWOB, pOUT, pDBG, pWS = 16, 18, 20, 22, 24, 26, 28, 30, 32, 34, 36, 38, 40, 42
SRD1, SRD2, SRD3, SRD4 = 44, 48, 52, 56
sEpoch, sTag = 60, 61
sP0, sP1, sP2, sU, sLo, sHi = 62, 63, 64, 65, 66, 67
sT = 68
sC1 = 80
sCnt = 81
sBias = 82
sProf = 84

class Gen:
    def __init__(self, prof=False, D=5, spin=20000, roles="BPQ", dbg=False):
        self.a = Asm(); self.prof = prof; self.D = D; self.spin = spin; self.roles = roles; self.dbg = dbg
        self.nlab = 0; self.nstamp = 0
    def lab(self, base):
        self.nlab += 1; return f"L_{base}_{self.nlab}"
    def stamp(self, k):
        if self.prof: self.a(f"s_memrealtime s[{sProf+2*k}:{sProf+2*k+1}]")
    def srd(self, base, ptr, size):
        a = self.a
        a(f"s_mov_b32 s{base}, s{ptr}"); a(f"s_mov_b32 s{base+1}, s{ptr+1}")
        a(f"s_mov_b32 s{base+2}, {size}"); a(f"s_mov_b32 s{base+3}, 0x20000")
    @staticmethod
    def S(base): return f"s[{base}:{base+3}]"
    @staticmethod
    def V(r, n=4): return f"v[{r}:{r+n-1}]"
    def pack(self, r, vtag):
        a = self.a
        a(f"v_perm_b32 v{r}, v{r}, v{r+3}, s{sP0}")
        a(f"v_perm_b32 v{r+1}, v{r+1}, v{r+3}, s{sP1}")
        a(f"v_perm_b32 v{r+2}, v{r+2}, v{r+3}, s{sP2}")
        a(f"v_mov_b32 v{r+3}, v{vtag}")
    def unpack(self, r):
        a = self.a
        a(f"v_perm_b32 v{r+3}, v{r+1}, v{r}, s{sU}")
        a(f"v_lshl_or_b32 v{r+3}, v{r+2}, 24, v{r+3}")
    def check(self, regs, acc):
        a = self.a
        for i, r in enumerate(regs):
            if i == 0: a(f"v_cmp_ne_u32 s[{acc}:{acc+1}], s{sTag}, v{r}")
            else:
                a(f"v_cmp_ne_u32 vcc, s{sTag}, v{r}")
                a(f"s_or_b64 s[{acc}:{acc+1}], s[{acc}:{acc+1}], vcc")
    def poll_loop(self, issue, regs, first_issued=False, first_wait=None, sleep=1, name="poll"):
        a = self.a
        L = self.lab(name); Lc = L + "_c"; Ld = L + "_d"
        a(f"s_mov_b32 s{sCnt}, 0")
        if first_issued:
            a(first_wait)
            a(f"s_branch {Lc}")
        a(f"{L}:")
        issue()
        a("s_waitcnt vmcnt(0)")
        if first_issued: a(f"{Lc}:")
        self.check(regs, sT + 2)
        a(f"s_cmp_eq_u64 s[{sT+2}:{sT+3}], 0")
        a(f"s_cbranch_scc1 {Ld}")
        a(f"s_add_u32 s{sCnt}, s{sCnt}, 1")
        a(f"s_cmp_lt_u32 s{sCnt}, {self.spin}")
        a(f"s_cbranch_scc0 {Ld}")
        if sleep: a(f"s_sleep {sleep}")
        a(f"s_branch {L}")
        a(f"{Ld}:")
    def masks(self, m0, vlane, t0, t1):
        a = self.a
        a(f"v_and_b32 v{t0}, 1, v{vlane}")
        a(f"v_lshlrev_b32 v{t0}, 4, v{t0}")
        a(f"v_mov_b32 v{t1}, 0xffff")
        a(f"v_lshlrev_b32 v{t0}, v{t0}, v{t1}")
        a(f"v_bfe_u32 v{t1}, v{vlane}, 1, 2")
        for t in range(4):
            a(f"v_cmp_eq_u32 vcc, {t}, v{t1}")
            a(f"v_cndmask_b32 v{m0+t}, 0, v{t0}, vcc")
    def exec_lo32(self): self.a("s_mov_b32 exec_hi, 0")
    def exec_full(self): self.a("s_mov_b64 exec, -1")

    def prologue(self):
        a = self.a
        a("s_cmp_ge_u32 s2, 256"); a("s_cbranch_scc1 L_end")
        a("s_load_dwordx4 s[40:43], s[0:1], 96")
        a("s_load_dwordx16 s[16:31], s[0:1], 0")
        a("s_load_dwordx8 s[32:39], s[0:1], 64")
        self.stamp(0)
        a("v_lshrrev_b32 v2, 6, v0")
        a("v_and_b32 v1, 63, v0")
        a(f"v_readfirstlane_b32 s{sW}, v2")
        a("s_and_b32 s6, s2, 7")
        a("s_lshr_b32 s7, s2, 3")
        a(f"s_mov_b32 s{sP0}, 0x07060501"); a(f"s_mov_b32 s{sP1}, 0x07060502"); a(f"s_mov_b32 s{sP2}, 0x07060503")
        a(f"s_mov_b32 s{sU}, 0x0c04000c"); a(f"s_mov_b32 s{sLo}, 0x01000100"); a(f"s_mov_b32 s{sHi}, 0x03020302")
        a(f"s_mov_b32 s{sC1}, {f2u(C1):#x}")
        a("s_lshl_b32 s6, s6, 2")
        a("s_cmp_lt_u32 s7, 8"); a("s_cbranch_scc1 L_PR")
        a("s_cmp_lt_u32 s7, 12"); a("s_cbranch_scc1 L_Q")
    def common2(self):
        a = self.a
        a(f"s_load_dword s{sEpoch}, s[{pWS}:{pWS+1}], 0")
        self.srd(8, pWS, WS_SIZE)
        self.srd(12, pOUT, 2560)
    def tag(self, vtag):
        a = self.a
        a("s_waitcnt lgkmcnt(0)")
        a(f"s_mul_i32 s{sTag}, s{sEpoch}, 0x9E3779B1")
        a(f"s_add_u32 s{sTag}, s{sTag}, 0x85EBCA6B")
        a(f"v_mov_b32 v{vtag}, s{sTag}")
    def finish(self):
        a = self.a
        if self.prof:
            a("s_waitcnt lgkmcnt(0)")
            a("s_mov_b64 exec, -1")
            a("v_mov_b32 v250, 0")
            for k in range(16):
                a(f"v_writelane_b32 v250, s{sProf+k}, {k}")
            a("v_and_b32 v251, 63, v0"); a("v_lshlrev_b32 v251, 2, v251")
            a(f"s_lshl_b32 s6, s2, 3"); a(f"s_add_u32 s6, s6, s{sW}"); a("s_lshl_b32 s6, s6, 6"); a(f"s_add_u32 s6, s6, {WS_PROF}")
            a("s_mov_b32 exec_hi, 0"); a("s_mov_b32 exec_lo, 0xffff")
            a(f"buffer_store_dword v250, v251, {WS}, s6 offen")
        a("s_endpgm")

    def role_B(self):
        a = self.a; D = self.D; V = self.V; S = self.S
        vL16, vLast, M0, QF, DD, AB, T, T0, T1, U, vTag, vA, vB = 2, 3, 4, 8, 12, 16, 24, 28, 29, 30, 37, 38, 39
        KT, VT = 40, 144
        X, WQ, G = 160, 144, 164
        tmp = 248
        NK = 26
        a("; ---------------- role B ----------------")
        a("s_sub_u32 s7, s7, 12")
        a("s_mul_i32 s68, s7, 52"); a("s_lshr_b32 s68, s68, 8")
        a(f"s_add_u32 s{sH}, s6, s68")
        a("s_mul_i32 s68, s68, 5"); a(f"s_sub_u32 s{sSub}, s7, s68")
        a(f"v_lshlrev_b32 v{vL16}, 4, v1")
        a(f"v_lshrrev_b32 v{tmp}, 4, v1")
        a(f"v_and_b32 v{tmp+1}, 15, v1")
        a(f"v_lshlrev_b32 v{vB}, 15, v{tmp}"); a(f"v_lshl_add_u32 v{vB}, v{tmp+1}, 4, v{vB}")
        a(f"s_lshl_b32 s68, s{sSub}, 3"); a(f"s_add_u32 s68, s68, s{sW}")
        a("s_lshl_b32 s69, s68, 7"); a("s_mul_hi_u32 s70, s69, 0xCCCCCCCD"); a("s_lshr_b32 s70, s70, 2")
        a("s_add_u32 s69, s69, 128"); a("s_mul_hi_u32 s71, s69, 0xCCCCCCCD"); a("s_lshr_b32 s71, s71, 2")
        a("s_sub_u32 s71, s71, s70")
        a(f"s_lshl_b32 s72, s{sH}, 20"); a("s_lshl_b32 s70, s70, 10"); a("s_add_u32 s72, s72, s70")
        a(f"s_lshl_b32 s73, s{sSub}, 3"); a(f"s_add_u32 s73, s73, s{sW}"); a("s_lshl_b32 s74, s73, 5")
        a(f"v_lshl_add_u32 v{vA}, v{tmp}, 3, s74")
        a("s_lshl_b32 s73, s73, 17")
        a(f"s_lshl_b32 s74, s{sH}, 8"); a("s_add_u32 s73, s73, s74")
        a("s_cmp_eq_u32 s71, 26")
        a(f"s_cselect_b32 s{sBias}, 0, {f2u(NEG):#x}")
        a(f"s_cselect_b32 s74, 0, 0x7f000000")
        a(f"v_or_b32 v{vLast}, s74, v{vL16}")
        a("s_waitcnt lgkmcnt(0)")
        self.srd(SRD3, pWQB, 640 * 8192)
        a(f"global_load_dwordx2 {V(X,2)}, v{vA}, s[{pBX}:{pBX+1}]")
        for i in range(4):
            if i: a(f"s_add_u32 s73, s73, 8192")
            a(f"buffer_load_dwordx4 {V(WQ+4*i)}, v{vB}, {S(SRD3)}, s73 offen nt")
        self.srd(SRD1, pK, 32 << 20); self.srd(SRD2, pV, 32 << 20)
        a("s_mov_b32 s75, s72")
        issued = []
        def kv_load(srd, base, i, soff):
            if i and i % 4 == 0: a(f"s_add_u32 s{soff}, s{soff}, 4096")
            voff = vLast if i == NK - 1 else vL16
            a(f"buffer_load_dwordx4 {V(base+4*i)}, v{voff}, {S(srd)}, s{soff} offen offset:{1024*(i%4)} nt")
        for i in range(D): kv_load(SRD1, KT, i, 75)
        self.common2()
        self.masks(M0, 1, tmp, tmp + 1)
        a(f"v_and_b32 v{tmp}, 15, v1"); a(f"v_bfe_u32 v{tmp+1}, v1, 4, 1")
        a(f"v_lshl_add_u32 v{tmp}, v{tmp}, 1, v{tmp+1}"); a(f"v_lshlrev_b32 v{tmp}, 4, v{tmp}")
        a(f"s_lshl_b32 s68, s{sW}, 9"); a(f"v_add_u32 v{vA}, s68, v{tmp}")
        a(f"s_waitcnt vmcnt({D})")
        self.stamp(1)
        sels = [(X, sLo), (X, sHi), (X + 1, sLo), (X + 1, sHi)]
        for i in range(4):
            xr, sel = sels[i]
            a(f"v_perm_b32 v{tmp+2}, v{xr}, v{xr}, s{sel}")
            ab = AB + 4 * (i & 1)
            for t in range(4): a(f"v_and_b32 v{ab+t}, v{tmp+2}, v{M0+t}")
            a(f"v_mfma_f32_16x16x32_bf16 {V(DD)}, {V(ab)}, {V(WQ+4*i)}, {'0' if i == 0 else V(DD)}")
        self.exec_lo32()
        a(f"ds_write_b128 v{vA}, {V(DD)}")
        self.exec_full()
        self.tag(vTag)
        a("s_barrier")
        L = self.lab("b1"); a(f"s_cmp_eq_u32 s{sW}, 0"); a(f"s_cbranch_scc0 {L}")
        a(f"v_and_b32 v{tmp}, 31, v1"); a(f"v_lshlrev_b32 v{tmp}, 4, v{tmp}")
        for k in range(8): a(f"ds_read_b128 {V(G+4*k)}, v{tmp} offset:{512*k}")
        a(f"s_mul_i32 s68, s{sH}, 5"); a(f"s_add_u32 s68, s68, s{sSub}"); a("s_lshl_b32 s68, s68, 9"); a(f"s_add_u32 s68, s68, {WS_QB}")
        a("s_waitcnt lgkmcnt(0)")
        self.tree_add(G, 8)
        self.pack(G, vTag)
        self.exec_lo32()
        a(f"buffer_store_dwordx4 {V(G)}, v{tmp}, {WS}, s68 offen sc1")
        self.exec_full()
        a(f"{L}:")
        n1 = 14; n2 = n1 + D + 1
        def gather_q():
            for s in range(5):
                a(f"buffer_load_dwordx4 {V(G+4*s)}, v{tmp+3}, {WS}, s76 offen offset:{512*s} sc1")
        for i in range(D, NK):
            a(f"s_waitcnt vmcnt({D-1})")
            kv_load(SRD1, KT, i, 75)
            if i == n1:
                L = self.lab("b2")
                a(f"v_and_b32 v{tmp+3}, 31, v1"); a(f"v_lshlrev_b32 v{tmp+3}, 4, v{tmp+3}")
                a(f"s_mul_i32 s76, s{sH}, 2560"); a(f"s_add_u32 s76, s76, {WS_QB}")
                a(f"s_cmp_eq_u32 s{sW}, 1"); a(f"s_cbranch_scc0 {L}")
                gather_q()
                a(f"{L}:")
            if i == n2:
                L = self.lab("b3"); a(f"s_cmp_eq_u32 s{sW}, 1"); a(f"s_cbranch_scc0 {L}")
                self.poll_loop(gather_q, [G + 4 * s + 3 for s in range(5)], first_issued=True,
                               first_wait=f"s_waitcnt vmcnt({n2-n1})", name="bq")
                for s in range(5): self.unpack(G + 4 * s)
                self.tree_add(G, 5)
                a(f"v_cvt_pk_bf16_f32 v{G}, v{G}, v{G+1}")
                a(f"v_cvt_pk_bf16_f32 v{G+1}, v{G+2}, v{G+3}")
                a(f"v_lshrrev_b32 v{tmp+3}, 1, v{tmp+3}")
                self.exec_lo32()
                a(f"ds_write_b64 v{tmp+3}, {V(G,2)} offset:4096")
                self.exec_full()
                a("s_waitcnt lgkmcnt(0)")
                a(f"{L}:")
        self.stamp(2)
        a("s_barrier")
        a(f"v_and_b32 v{tmp}, 15, v1"); a(f"v_lshlrev_b32 v{tmp}, 4, v{tmp}")
        a(f"ds_read_b128 {V(QF)}, v{tmp} offset:4096")
        a("s_mov_b32 s75, s72")
        def kgroup(k):
            n = min(4, NK - 4 * k)
            for r in range(4):
                for u in range(n):
                    kreg = KT + 4 * (4 * k + u) + r
                    if r == 0: a(f"v_dot2_f32_bf16 v{T+u}, v{kreg}, v{QF}, 0")
                    else: a(f"v_dot2c_f32_bf16 v{T+u}, v{kreg}, v{QF+r}")
            if n < 4:
                a(f"v_mov_b32 v{T0}, {f2u(NEG):#x}"); a(f"v_mov_b32 v{T1}, {f2u(NEG):#x}")
                a(f"v_add_f32 v{T+1}, s{sBias}, v{T+1}")
            a(f"v_add_f32_dpp v{T0}, v{T}, v{T} row_ror:8 row_mask:0xf bank_mask:0x3")
            a(f"v_add_f32_dpp v{T1}, v{T+1}, v{T+1} row_ror:8 row_mask:0xf bank_mask:0x3")
            if n == 4:
                a(f"v_add_f32_dpp v{T0}, v{T+2}, v{T+2} row_ror:8 row_mask:0xf bank_mask:0xc")
                a(f"v_add_f32_dpp v{T1}, v{T+3}, v{T+3} row_ror:8 row_mask:0xf bank_mask:0xc")
            a(f"v_add_f32_dpp v{U+k}, v{T0}, v{T0} row_half_mirror row_mask:0xf bank_mask:0x5")
            a(f"v_add_f32_dpp v{U+k}, v{T1}, v{T1} row_half_mirror row_mask:0xf bank_mask:0xa")
            a(f"v_add_f32_dpp v{U+k}, v{U+k}, v{U+k} quad_perm:[2,3,0,1] row_mask:0xf bank_mask:0xf")
            a(f"v_add_f32_dpp v{U+k}, v{U+k}, v{U+k} quad_perm:[1,0,3,2] row_mask:0xf bank_mask:0xf")
        def allreduce_rows(r, op, t):
            a(f"v_mov_b32 v{t}, v{r}"); a(f"v_permlane16_swap_b32 v{r}, v{t}"); a(f"{op} v{r}, v{r}, v{t}")
            a(f"v_mov_b32 v{t}, v{r}"); a(f"v_permlane32_swap_b32 v{r}, v{t}"); a(f"{op} v{r}, v{r}, v{t}")
        vM, vLs = tmp, tmp + 1
        def softmax():
            a(f"v_max3_f32 v{vM}, v{U}, v{U+1}, v{U+2}")
            a(f"v_max3_f32 v{vM}, v{vM}, v{U+3}, v{U+4}")
            a(f"v_max3_f32 v{vM}, v{vM}, v{U+5}, v{U+6}")
            a(f"v_max_f32_dpp v{vM}, v{vM}, v{vM} row_ror:4 row_mask:0xf bank_mask:0xf")
            a(f"v_max_f32_dpp v{vM}, v{vM}, v{vM} row_ror:8 row_mask:0xf bank_mask:0xf")
            allreduce_rows(vM, "v_max_f32", tmp + 2)
            a(f"v_mul_f32 v{vM}, s{sC1}, v{vM}")
            a(f"v_mov_b32 v{tmp+2}, v{vM}"); a(f"v_mov_b32 v{tmp+3}, v{vTag}")
            a(f"s_lshl_b32 s68, s{sW}, 3"); a(f"v_mov_b32 v{tmp+4}, s68")
            a("s_mov_b64 exec, 1")
            a(f"ds_write_b64 v{tmp+4}, {V(tmp+2,2)} offset:12288")
            self.exec_full()
            for k in range(7):
                a(f"v_fma_f32 v{U+k}, v{U+k}, s{sC1}, -v{vM}")
            for k in range(7):
                a(f"v_exp_f32 v{U+k}, v{U+k}")
            a(f"v_add_f32 v{vLs}, v{U}, v{U+1}")
            for k in range(2, 7): a(f"v_add_f32 v{vLs}, v{vLs}, v{U+k}")
            for k in range(7): a(f"v_cvt_pk_bf16_f32 v{U+k}, v{U+k}, v{U+k}")
            a(f"v_add_f32_dpp v{vLs}, v{vLs}, v{vLs} row_ror:4 row_mask:0xf bank_mask:0xf")
            a(f"v_add_f32_dpp v{vLs}, v{vLs}, v{vLs} row_ror:8 row_mask:0xf bank_mask:0xf")
            allreduce_rows(vLs, "v_add_f32", tmp + 2)
        def pv_and(i):
            ab = AB + 4 * (i & 1)
            for t in range(4):
                a(f"v_and_b32_dpp v{ab+t}, v{U+(i>>2)}, v{M0+t} row_newbcast:{4*(i&3)} row_mask:0xf bank_mask:0xf")
        def pv_mfma(i):
            ab = AB + 4 * (i & 1)
            a(f"v_mfma_f32_16x16x32_bf16 {V(DD)}, {V(ab)}, {V(VT+4*i)}, {'0' if i == 0 else V(DD)}")
        pv = 0
        a("s_waitcnt lgkmcnt(0)")
        SM = 14
        for i in range(NK):
            a(f"s_waitcnt vmcnt({D-1})")
            kv_load(SRD2, VT, i, 75)
            if i < SM and i % 2 == 1 and i // 2 < 7: kgroup(i // 2)
            if i == SM - 1:
                softmax(); pv_and(0)
            if i >= SM:
                lim = i - D
                for _ in range(2):
                    if pv <= lim:
                        pv_and(pv + 1); pv_mfma(pv); pv += 1
        self.stamp(3)
        FM = T
        L = self.lab("bm")
        a(f"s_mov_b32 s{sCnt}, 0")
        a(f"v_mov_b32 v{tmp+4}, 0")
        a(f"{L}:")
        R8 = KT
        for k in range(4): a(f"ds_read_b128 {V(R8+4*k)}, v{tmp+4} offset:{12288+16*k}")
        a("s_waitcnt lgkmcnt(0)")
        self.check([R8 + 2 * k + 1 for k in range(8)], sT + 2)
        a(f"s_cmp_eq_u64 s[{sT+2}:{sT+3}], 0"); a(f"s_cbranch_scc1 {L}_d")
        a(f"s_add_u32 s{sCnt}, s{sCnt}, 1"); a(f"s_cmp_lt_u32 s{sCnt}, {self.spin}"); a(f"s_cbranch_scc1 {L}")
        a(f"{L}_d:")
        vMc = R8 + 16; vF = R8 + 17
        a(f"v_max3_f32 v{vMc}, v{R8}, v{R8+2}, v{R8+4}")
        a(f"v_max3_f32 v{vMc}, v{vMc}, v{R8+6}, v{R8+8}")
        a(f"v_max3_f32 v{vMc}, v{vMc}, v{R8+10}, v{R8+12}")
        a(f"v_max_f32 v{vMc}, v{vMc}, v{R8+14}")
        a(f"v_sub_f32 v{vF}, v{vM}, v{vMc}")
        a(f"v_exp_f32 v{vF}, v{vF}")
        a(f"v_mul_f32 v{vLs}, v{vLs}, v{vF}")
        while pv < NK:
            a(f"s_waitcnt vmcnt({NK-1-pv})")
            if pv + 1 < NK: pv_and(pv + 1)
            pv_mfma(pv); pv += 1
        self.stamp(4)
        for v in range(4): a(f"v_mul_f32 v{DD+v}, v{vF}, v{DD+v}")
        self.exec_lo32()
        a(f"ds_write_b128 v{vA}, {V(DD)} offset:8192")
        a("s_mov_b32 exec_lo, 1")
        a(f"s_lshl_b32 s68, s{sW}, 2"); a(f"v_mov_b32 v{tmp+4}, s68")
        a(f"ds_write_b32 v{tmp+4}, v{vLs} offset:12416")
        self.exec_full()
        a("s_waitcnt lgkmcnt(0)")
        a("s_barrier")
        L = self.lab("b4"); a(f"s_cmp_eq_u32 s{sW}, 0"); a(f"s_cbranch_scc0 {L}")
        a(f"v_and_b32 v{tmp}, 31, v1"); a(f"v_lshlrev_b32 v{tmp}, 4, v{tmp}")
        G2 = VT
        for k in range(8): a(f"ds_read_b128 {V(G2+4*k)}, v{tmp} offset:{8192+512*k}")
        a(f"v_mov_b32 v{tmp+4}, 0")
        a(f"ds_read_b128 {V(G2+32)}, v{tmp+4} offset:12416")
        a(f"ds_read_b128 {V(G2+36)}, v{tmp+4} offset:12432")
        a(f"s_mul_i32 s68, s{sH}, 5"); a(f"s_add_u32 s68, s68, s{sSub}"); a("s_lshl_b32 s68, s68, 9"); a(f"s_add_u32 s68, s68, {WS_OB}")
        a(f"s_lshl_b32 s69, s{sH}, 3"); a(f"s_add_u32 s69, s69, s{sSub}"); a("s_lshl_b32 s69, s69, 4"); a(f"s_add_u32 s69, s69, {WS_MLB}")
        a("s_waitcnt lgkmcnt(2)")
        self.tree_add(G2, 8)
        self.pack(G2, vTag)
        self.exec_lo32()
        a(f"buffer_store_dwordx4 {V(G2)}, v{tmp}, {WS}, s68 offen sc1")
        a("s_waitcnt lgkmcnt(0)")
        ML = G2 + 40
        a(f"v_pk_add_f32 {V(G2+32,2)}, {V(G2+32,2)}, {V(G2+34,2)}")
        a(f"v_pk_add_f32 {V(G2+36,2)}, {V(G2+36,2)}, {V(G2+38,2)}")
        a(f"v_pk_add_f32 {V(G2+32,2)}, {V(G2+32,2)}, {V(G2+36,2)}")
        a(f"v_mov_b32 v{ML}, v{vMc}")
        a(f"v_add_f32 v{ML+1}, v{G2+32}, v{G2+33}")
        a(f"v_mov_b32 v{ML+2}, 0"); a(f"v_mov_b32 v{ML+3}, v{vTag}")
        a("s_mov_b32 exec_lo, 1")
        a(f"v_mov_b32 v{tmp+4}, 0")
        a(f"buffer_store_dwordx4 {V(ML)}, v{tmp+4}, {WS}, s69 offen sc1")
        self.exec_full()
        a(f"{L}:")
        self.stamp(5)
        self.finish()

    def tree_add(self, base, n):
        a = self.a; V = self.V
        step = 1
        while step < n:
            for k in range(0, n, 2 * step):
                if k + step < n:
                    for hh in (0, 2):
                        a(f"v_pk_add_f32 {V(base+4*k+hh,2)}, {V(base+4*k+hh,2)}, {V(base+4*(k+step)+hh,2)}")
            step *= 2

    def row_allreduce(self, regs, op, steps=(8, 4, 2, 1)):
        a = self.a
        for st in steps:
            for r in regs: a(f"{op}_dpp v{r}, v{r}, v{r} row_ror:{st} row_mask:0xf bank_mask:0xf")
    def rowacc(self, DD, AB, M0, n, coef, tile, first_zero=True):
        a = self.a; V = self.V
        def ands(i):
            src, mod = coef(i); ab = AB + 4 * (i & 1)
            for t in range(4):
                if mod: a(f"v_and_b32_dpp v{ab+t}, v{src}, v{M0+t} {mod} row_mask:0xf bank_mask:0xf")
                else: a(f"v_and_b32 v{ab+t}, v{src}, v{M0+t}")
        ands(0)
        for i in range(n):
            if i + 1 < n: ands(i + 1)
            ab = AB + 4 * (i & 1)
            a(f"v_mfma_f32_16x16x32_bf16 {V(DD)}, {V(ab)}, {V(tile(i))}, {'0' if (i == 0 and first_zero) else V(DD)}")

    def role_PR(self):
        a = self.a; V = self.V; S = self.S
        vWQ, vUK, M0, QF, DD, AB, T, U, vTag = 2, 3, 4, 8, 12, 16, 24, 32, 36
        vUV, vWO, vLD, vX, tmp = 37, 38, 39, 40, 41
        WQ, X, UK, UV, WO, G = 48, 88, 96, 128, 160, 224
        a(f"s_lshr_b32 s68, s7, 1"); a(f"s_add_u32 s{sH}, s6, s68"); a(f"s_and_b32 s{sSub}, s7, 1")
        a(f"v_lshrrev_b32 v{tmp}, 3, v1"); a(f"v_and_b32 v{tmp+1}, 7, v1")
        a(f"v_lshrrev_b32 v{tmp+2}, 4, v1"); a(f"v_and_b32 v{tmp+3}, 15, v1")
        a(f"v_lshlrev_b32 v{tmp+1}, 4, v{tmp+1}"); a(f"v_lshlrev_b32 v{tmp+3}, 4, v{tmp+3}")
        a("s_mov_b32 s68, 81920"); a(f"v_mad_u32_u24 v{vWQ}, v{tmp}, s68, v{tmp+1}")
        a(f"v_lshl_add_u32 v{vUK}, v{tmp+2}, 16, v{tmp+3}")
        a(f"v_lshl_add_u32 v{vUV}, v{tmp}, 16, v{tmp+1}")
        a("s_mov_b32 s68, 20480"); a(f"v_mad_u32_u24 v{vWO}, v{tmp+2}, s68, v{tmp+3}")
        a(f"s_mul_i32 s68, s{sW}, 160"); a(f"v_mul_u32_u24 v{vX}, 20, v{tmp}"); a(f"v_add_u32 v{vX}, s68, v{vX}")
        a(f"s_lshl_b32 s69, s{sH}, 8"); a(f"s_lshl_b32 s70, s{sSub}, 7"); a("s_add_u32 s70, s70, s69")
        a(f"s_mul_i32 s72, s{sW}, {80*8192}"); a("s_add_u32 s72, s72, s70")
        a(f"s_lshl_b32 s73, s{sSub}, 3"); a(f"s_add_u32 s73, s73, s{sW}"); a("s_lshl_b32 s73, s73, 18"); a("s_add_u32 s73, s73, s69")
        a(f"s_lshl_b32 s74, s{sW}, 19"); a("s_add_u32 s74, s74, s70")
        a("s_waitcnt lgkmcnt(0)")
        self.srd(SRD1, pWQA, 640 * 8192)
        a(f"global_load_dwordx4 {V(X)}, v{vX}, s[{pAX}:{pAX+1}]")
        a(f"global_load_dword v{X+4}, v{vX}, s[{pAX}:{pAX+1}] offset:16")
        for i in range(10):
            if i: a("s_add_u32 s72, s72, 8192")
            a(f"buffer_load_dwordx4 {V(WQ+4*i)}, v{vWQ}, {S(SRD1)}, s72 offen nt")
        self.srd(SRD2, pWUK, 512 * 8192)
        a("s_barrier")
        for i in range(8):
            if i: a("s_add_u32 s73, s73, 8192")
            a(f"buffer_load_dwordx4 {V(UK+4*i)}, v{vUK}, {S(SRD2)}, s73 offen nt")
        self.common2()
        self.srd(SRD3, pWUV, 512 * 8192); self.srd(SRD4, pWOA, 4096 * 1280)
        self.masks(M0, 1, tmp, tmp + 1)
        a(f"v_and_b32 v{tmp}, 7, v1"); a(f"v_bfe_u32 v{tmp+1}, v1, 4, 1"); a(f"v_lshl_add_u32 v{tmp}, v{tmp}, 1, v{tmp+1}")
        a(f"v_lshrrev_b32 v{tmp+1}, 5, v1"); a(f"v_lshl_add_u32 v{tmp}, v{tmp+1}, 4, v{tmp}")
        a(f"v_lshlrev_b32 v{tmp}, 4, v{tmp}"); a(f"s_lshl_b32 s68, s{sW}, 9"); a(f"v_add_u32 v{vLD}, s68, v{tmp}")
        a("s_waitcnt vmcnt(8)")
        self.stamp(1)
        for i in range(10):
            a(f"v_perm_b32 v{WO+i}, v{X+(i>>1)}, v{X+(i>>1)}, s{sHi if i & 1 else sLo}")
        self.rowacc(DD, AB, M0, 10, lambda i: (WO + i, None), lambda i: WQ + 4 * i)
        a("s_mov_b32 exec_lo, 0x00ff00ff"); a("s_mov_b32 exec_hi, 0xff00ff00")
        a(f"ds_write_b128 v{vLD}, {V(DD)}")
        self.exec_full()
        self.tag(vTag)
        a("s_barrier")
        a(f"v_and_b32 v{tmp}, 15, v1"); a(f"v_lshlrev_b32 v{tmp}, 4, v{tmp}")
        a(f"s_lshl_b32 s68, s{sH}, 9"); a(f"s_add_u32 s76, s68, {WS_QA}"); a(f"s_lshl_b32 s68, s{sSub}, 8"); a("s_add_u32 s68, s68, s76")
        L = self.lab("p1"); a(f"s_cmp_eq_u32 s{sW}, 0"); a(f"s_cbranch_scc0 {L}")
        for k in range(16): a(f"ds_read_b128 {V(WO+4*k)}, v{tmp} offset:{256*k}")
        a("s_waitcnt lgkmcnt(0)")
        self.tree_add(WO, 16)
        self.pack(WO, vTag)
        a("s_mov_b32 exec_hi, 0"); a("s_mov_b32 exec_lo, 0xffff")
        a(f"buffer_store_dwordx4 {V(WO)}, v{tmp}, {WS}, s68 offen sc1")
        self.exec_full()
        a(f"{L}:")
        self.stamp(2)
        a(f"v_lshlrev_b32 v{tmp+1}, 1, v{tmp}")
        def gather_q():
            a(f"buffer_load_dwordx4 {V(G)}, v{tmp+1}, {WS}, s76 offen sc1")
            a(f"buffer_load_dwordx4 {V(G+4)}, v{tmp+1}, {WS}, s76 offen offset:16 sc1")
        a("s_waitcnt vmcnt(4)")
        gather_q()
        for i in range(8):
            if i: a("s_add_u32 s74, s74, 8192")
            a(f"buffer_load_dwordx4 {V(UV+4*i)}, v{vUV}, {S(SRD3)}, s74 offen nt")
        self.poll_loop(gather_q, [G + 3, G + 7], first_issued=True, first_wait="s_waitcnt vmcnt(8)", name="pq")
        self.unpack(G); self.unpack(G + 4)
        for t in range(4): a(f"v_cvt_pk_bf16_f32 v{QF+t}, v{G+2*t}, v{G+2*t+1}")
        self.stamp(3)
        for r in range(4):
            for i in range(8):
                if r == 0: a(f"v_dot2_f32_bf16 v{T+i}, v{UK+4*i}, v{QF}, 0")
                else: a(f"v_dot2c_f32_bf16 v{T+i}, v{UK+4*i+r}, v{QF+r}")
        for k in range(4): a(f"v_add_f32_dpp v{U+k}, v{T+k}, v{T+k} row_ror:8 row_mask:0xf bank_mask:0x3")
        for k in range(4): a(f"v_add_f32_dpp v{U+k}, v{T+k+4}, v{T+k+4} row_ror:8 row_mask:0xf bank_mask:0xc")
        for k in range(4): a(f"v_add_f32_dpp v{U+k}, v{U+k}, v{U+k} row_half_mirror row_mask:0xf bank_mask:0xf")
        for k in range(4): a(f"v_add_f32_dpp v{U+k}, v{U+k}, v{U+k} quad_perm:[2,3,0,1] row_mask:0xf bank_mask:0xf")
        for k in range(4): a(f"v_add_f32_dpp v{U+k}, v{U+k}, v{U+k} quad_perm:[1,0,3,2] row_mask:0xf bank_mask:0xf")
        a(f"v_lshrrev_b32 v{tmp}, 3, v1"); a(f"v_lshlrev_b32 v{tmp}, 4, v{tmp}")
        a(f"s_lshl_b32 s68, s{sH}, 11"); a(f"s_lshl_b32 s69, s{sSub}, 10"); a("s_add_u32 s68, s68, s69")
        a(f"s_lshl_b32 s69, s{sW}, 7"); a("s_add_u32 s68, s68, s69"); a(f"s_add_u32 s68, s68, {WS_QABS}")
        self.pack(U, vTag)
        a("s_mov_b32 exec_lo, 0x01010101"); a("s_mov_b32 exec_hi, 0x01010101")
        a(f"buffer_store_dwordx4 {V(U)}, v{tmp}, {WS}, s68 offen sc1")
        self.exec_full()
        self.stamp(4)
        a(f"s_lshl_b32 s68, s{sH}, 1"); a(f"s_add_u32 s77, s68, s{sSub}")
        a(f"s_mul_i32 s75, s77, {64*1280}"); a(f"s_lshl_b32 s68, s{sW}, 8"); a("s_add_u32 s75, s75, s68")
        L = self.lab("p2"); a(f"s_cmp_lt_u32 s{sW}, 5"); a(f"s_cbranch_scc0 {L}")
        for i in range(16):
            if i and i % 4 == 0: a("s_add_u32 s75, s75, 5120")
            o = 1280 * (i % 4)
            a(f"buffer_load_dwordx4 {V(WO+4*i)}, v{vWO}, {S(SRD4)}, s75 offen offset:{o} nt")
        a(f"{L}:")
        ML, CT = 80, 48
        a(f"v_bfe_u32 v{tmp}, v1, 2, 2"); a(f"v_and_b32 v{tmp+1}, 3, v1")
        a(f"v_lshlrev_b32 v{tmp+2}, 7, v{tmp}"); a(f"v_lshl_add_u32 v{tmp+2}, v{tmp+1}, 5, v{tmp+2}")
        a(f"v_lshrrev_b32 v{tmp+3}, 4, v1"); a(f"v_lshl_add_u32 v{tmp+3}, v{tmp+3}, 2, v{tmp+1}")
        a(f"v_lshlrev_b32 v{tmp+3}, 4, v{tmp+3}"); a(f"v_lshl_add_u32 v{tmp+3}, v{tmp}, 14, v{tmp+3}")
        a(f"s_lshl_b32 s76, s{sH}, 9"); a(f"s_add_u32 s76, s76, {WS_ML}")
        a(f"s_lshl_b32 s78, s{sH}, 16"); a(f"s_lshl_b32 s68, s{sW}, 8"); a("s_add_u32 s78, s78, s68"); a(f"s_add_u32 s78, s78, {WS_CTX}")
        def gather_ml():
            a(f"buffer_load_dwordx4 {V(ML)}, v{tmp+2}, {WS}, s76 offen sc1")
            a(f"buffer_load_dwordx4 {V(ML+4)}, v{tmp+2}, {WS}, s76 offen offset:16 sc1")
        self.poll_loop(gather_ml, [ML + 3, ML + 7], sleep=4, name="pml")
        self.stamp(5)
        def gather_ctx():
            for i in range(8):
                a(f"s_add_u32 s79, s78, {4096*(i>>1)}") if i % 2 == 0 else None
                a(f"buffer_load_dwordx4 {V(CT+4*i)}, v{tmp+3}, {WS}, s79 offen offset:{2048*(i&1)} sc1")
        gather_ctx()
        vM, wA, wB, vL = T, T + 1, T + 2, T + 3
        a(f"v_max_f32 v{vM}, v{ML}, v{ML+4}")
        self.row_allreduce([vM], "v_max_f32")
        a(f"v_sub_f32 v{wA}, v{ML}, v{vM}"); a(f"v_sub_f32 v{wB}, v{ML+4}, v{vM}")
        a(f"v_exp_f32 v{wA}, v{wA}"); a(f"v_exp_f32 v{wB}, v{wB}")
        a(f"v_mul_f32 v{vL}, v{wA}, v{ML+1}"); a(f"v_fmac_f32 v{vL}, v{wB}, v{ML+5}")
        self.row_allreduce([vL], "v_add_f32")
        a(f"v_rcp_f32 v{vL}, v{vL}")
        a(f"v_mul_f32 v{wA}, v{wA}, v{vL}"); a(f"v_mul_f32 v{wB}, v{wB}, v{vL}")
        self.poll_loop(gather_ctx, [CT + 4 * i + 3 for i in range(8)], first_issued=True, first_wait="s_waitcnt vmcnt(0)", name="pctx")
        self.stamp(6)
        AC = U
        for i in range(8): self.unpack(CT + 4 * i)
        for i in range(8):
            q = i >> 1
            for v in range(4):
                op = "v_mul_f32_dpp" if i == 0 else "v_fmac_f32_dpp"
                a(f"{op} v{AC+v}, v{wB if i & 1 else wA}, v{CT+4*i+v} quad_perm:[{q},{q},{q},{q}] row_mask:0xf bank_mask:0xf")
        self.row_allreduce([AC + v for v in range(4)], "v_add_f32", steps=(4, 8))
        for v in range(4): a(f"v_cvt_pk_bf16_f32 v{AC+v}, v{AC+v}, v{AC+v}")
        for v in range(4): a(f"v_mov_b32_dpp v{AC+v}, v{AC+v} quad_perm:[2,3,0,1] row_mask:0xf bank_mask:0xc")
        self.rowacc(DD, AB, M0, 8, lambda i: (AC + (i & 3), "quad_perm:[%d,%d,%d,%d]" % ((i >> 2,) * 4)), lambda i: UV + 4 * i)
        a("s_mov_b32 exec_lo, 0x00ff00ff"); a("s_mov_b32 exec_hi, 0xff00ff00")
        a(f"ds_write_b128 v{vLD}, {V(DD)} offset:4096")
        self.exec_full()
        a("s_waitcnt lgkmcnt(0)")
        a("s_barrier")
        Lf = self.lab("pfa")
        a(f"s_cmp_lt_u32 s{sW}, 5"); a(f"s_cbranch_scc0 {Lf}")
        a(f"v_lshrrev_b32 v{tmp}, 4, v1"); a(f"v_and_b32 v{tmp+1}, 3, v1"); a(f"v_lshl_add_u32 v{tmp}, v{tmp}, 2, v{tmp+1}")
        a(f"v_lshlrev_b32 v{tmp}, 4, v{tmp}"); a(f"v_bfe_u32 v{tmp+1}, v1, 2, 2"); a(f"v_lshl_add_u32 v{tmp}, v{tmp+1}, 10, v{tmp}")
        for k in range(4): a(f"ds_read_b128 {V(CT+4*k)}, v{tmp} offset:{4096+256*k}")
        a("s_waitcnt lgkmcnt(0)")
        self.tree_add(CT, 4)
        self.row_allreduce([CT + v for v in range(4)], "v_add_f32", steps=(4, 8))
        for v in range(4): a(f"v_cvt_pk_bf16_f32 v{CT+v}, v{CT+v}, v{CT+v}")
        a(f"v_and_b32 v{tmp}, 15, v1"); a(f"v_bfe_u32 v{tmp+1}, v1, 4, 1"); a(f"v_lshl_add_u32 v{tmp}, v{tmp}, 1, v{tmp+1}"); a(f"v_lshlrev_b32 v{tmp}, 4, v{tmp}")
        a(f"s_mul_i32 s68, s77, 2560"); a(f"s_lshl_b32 s69, s{sW}, 9"); a("s_add_u32 s68, s68, s69"); a(f"s_add_u32 s68, s68, {WS_YA}")
        self.rowacc(DD, AB, M0, 16, lambda i: (CT + (i & 3), "quad_perm:[%d,%d,%d,%d]" % ((i >> 2,) * 4)), lambda i: WO + 4 * i)
        self.pack(DD, vTag)
        self.exec_lo32()
        a(f"buffer_store_dwordx4 {V(DD)}, v{tmp}, {WS}, s68 offen sc1")
        self.exec_full()
        self.stamp(7)
        Le = self.lab("pend")
        a(f"s_lshl_b32 s79, s77, 1"); a(f"s_add_u32 s79, s79, s{sW}")
        a(f"s_cmp_lt_u32 s{sW}, 2"); a(f"s_cbranch_scc0 {Le}")
        a("s_cmp_lt_u32 s79, 80"); a(f"s_cbranch_scc0 {Le}")
        a(f"v_mov_b32 v{tmp}, 0")
        a("s_and_b32 s68, s79, 31"); a("s_lshl_b32 s68, s68, 7"); a(f"s_add_u32 s76, s68, {WS_MLB}")
        def gather_ind(): a(f"buffer_load_dwordx4 {V(G)}, v{tmp}, {WS}, s76 offen sc1")
        self.poll_loop(gather_ind, [G + 3], sleep=8, name="pind")
        a(f"v_and_b32 v{tmp}, 31, v1"); a("s_movk_i32 s68, 2560"); a(f"v_mul_u32_u24 v{tmp}, s68, v{tmp}")
        a(f"v_lshrrev_b32 v{tmp+1}, 5, v1"); a(f"v_lshl_add_u32 v{tmp}, v{tmp+1}, 4, v{tmp}")
        a(f"s_lshl_b32 s76, s79, 5"); a(f"s_add_u32 s76, s76, {WS_YB}")
        a(f"v_lshlrev_b32 v{tmp+1}, 3, v{tmp+1}"); a("s_lshl_b32 s78, s79, 4"); a("s_add_u32 s78, s78, 1280")
        def gather_yb(): a(f"buffer_load_dwordx4 {V(G)}, v{tmp}, {WS}, s76 offen sc1")
        self.poll_loop(gather_yb, [G + 3], sleep=0, name="pyb")
        self.unpack(G)
        regs = [G + v for v in range(4)]
        self.row_allreduce(regs, "v_add_f32")
        for r in regs: a(f"v_add_f32_dpp v{r}, v{r}, v{r} row_bcast:15 row_mask:0xa bank_mask:0xf")
        a(f"v_cvt_pk_bf16_f32 v{G}, v{G}, v{G+1}"); a(f"v_cvt_pk_bf16_f32 v{G+1}, v{G+2}, v{G+3}")
        a("s_mov_b32 exec_lo, 0x80000000"); a("s_mov_b32 exec_hi, 0x80000000")
        a(f"buffer_store_dwordx2 {V(G,2)}, v{tmp+1}, {OUT}, s78 offen")
        self.exec_full()
        a("s_cmp_eq_u32 s79, 0"); a(f"s_cbranch_scc0 {Le}")
        a(f"s_add_u32 s68, s{sEpoch}, 1"); a(f"v_mov_b32 v{tmp}, s68"); a(f"v_mov_b32 v{tmp+1}, 0")
        a("s_mov_b64 exec, 1")
        a(f"buffer_store_dword v{tmp}, v{tmp+1}, {WS}, 0 offen")
        self.exec_full()
        a(f"s_branch {Le}")
        a(f"{Lf}:")
        a("s_mul_i32 s79, s77, 3"); a(f"s_add_u32 s79, s79, s{sW}"); a("s_sub_u32 s79, s79, 5")
        a("s_movk_i32 s68, 2560"); a(f"v_mul_u32_u24 v{tmp}, s68, v1")
        a(f"s_lshl_b32 s76, s79, 4"); a(f"s_add_u32 s76, s76, {WS_YA}")
        a(f"v_mov_b32 v{tmp+1}, 0"); a("s_lshl_b32 s78, s79, 3")
        a("s_cmp_lt_u32 s79, 160"); a(f"s_cbranch_scc0 {Le}")
        def gather_ya(): a(f"buffer_load_dwordx4 {V(G)}, v{tmp}, {WS}, s76 offen sc1")
        self.poll_loop(gather_ya, [G + 3], sleep=2, name="pya")
        self.unpack(G)
        self.row_allreduce(regs, "v_add_f32")
        for r in regs: a(f"v_add_f32_dpp v{r}, v{r}, v{r} row_bcast:15 row_mask:0xa bank_mask:0xf")
        for r in regs: a(f"v_add_f32_dpp v{r}, v{r}, v{r} row_bcast:31 row_mask:0xc bank_mask:0xf")
        a(f"v_cvt_pk_bf16_f32 v{G}, v{G}, v{G+1}"); a(f"v_cvt_pk_bf16_f32 v{G+1}, v{G+2}, v{G+3}")
        a("s_mov_b32 exec_lo, 0"); a("s_mov_b32 exec_hi, 0x80000000")
        a(f"buffer_store_dwordx2 {V(G,2)}, v{tmp+1}, {OUT}, s78 offen")
        self.exec_full()
        a(f"{Le}:")
        self.finish()

    def role_Q(self):
        a = self.a; V = self.V; S = self.S
        vL16, M0, Z, DS, AB, G, vTag = 2, 4, 8, 16, 24, 32, 3
        SA, PA = 64, 192
        tmp = 12
        t2 = 24
        a("; ---------------- role Q ----------------")
        a(f"s_sub_u32 s7, s7, 8"); a(f"s_add_u32 s{sH}, s6, s7")
        a(f"v_lshlrev_b32 v{vL16}, 4, v1")
        a(f"s_lshl_b32 s72, s{sH}, 17"); a(f"s_lshl_b32 s68, s{sW}, 14"); a("s_add_u32 s72, s72, s68")
        a(f"s_lshl_b32 s73, s{sW}, 14")
        a("s_waitcnt lgkmcnt(0)")
        self.srd(SRD1, pCKV, 4096 * 1024)
        for r in range(16):
            f = (r & 8) | ((r & 3) << 1)
            a(f"v_xor_b32 v{tmp + (r & 1)}, {16*f}, v{vL16}")
            a(f"s_add_u32 m0, s73, {1024*r}")
            if r % 4 == 0 and r: a("s_add_u32 s72, s72, 4096")
            a(f"buffer_load_dwordx4 v{tmp + (r & 1)}, {S(SRD1)}, s72 offen offset:{1024*(r%4)} nt lds") if False else None
            a(f"s_add_u32 s74, s72, {1024*(r%4)}")
            a(f"buffer_load_dwordx4 v{tmp + (r & 1)}, {S(SRD1)}, s74 offen nt lds")
        self.common2()
        self.srd(SRD2, pWOB, 4096 * 1280)
        self.masks(M0, 1, tmp, tmp + 1)
        a(f"v_and_b32 v{tmp}, 3, v1"); a(f"v_lshlrev_b32 v{tmp}, 1, v{tmp}"); a(f"v_and_b32 v{tmp+1}, 8, v1"); a(f"v_or_b32 v{tmp}, v{tmp}, v{tmp+1}")
        a(f"v_lshrrev_b32 v{tmp+1}, 4, v1"); a(f"v_xor_b32 v{tmp}, v{tmp}, v{tmp+1}"); a(f"v_lshlrev_b32 v{tmp}, 4, v{tmp}")
        for m in range(4): a(f"v_xor_b32 v{Z+m}, {64*m}, v{tmp}")
        a(f"v_and_b32 v{tmp+2}, 15, v1")
        a(f"s_and_b32 s68, s{sW}, 3"); a("s_lshl_b32 s68, s68, 15"); a(f"v_lshl_add_u32 v{tmp+3}, v{tmp+2}, 10, s68")
        for m in range(4): a(f"v_add_u32 v{t2+m}, v{tmp+3}, v{Z+m}")
        a(f"v_bfe_u32 v{tmp}, v1, 2, 2")
        a(f"v_bfe_u32 v{tmp+1}, v1, 4, 1"); a(f"v_lshlrev_b32 v{tmp+1}, 3, v{tmp+1}"); a(f"v_lshl_or_b32 v{tmp+1}, v{tmp}, 1, v{tmp+1}")
        a(f"v_bfe_u32 v{tmp+3}, v1, 1, 1"); a(f"v_xor_b32 v{tmp+1}, v{tmp+1}, v{tmp+3}")
        a(f"s_and_b32 s68, s{sW}, 1"); a("s_lshl_b32 s68, s68, 3"); a(f"v_xor_b32 v{tmp+1}, s68, v{tmp+1}")
        a(f"v_lshrrev_b32 v{tmp+3}, 4, v1"); a(f"v_lshl_add_u32 v{tmp}, v{tmp+3}, 3, v{tmp}")
        a(f"v_lshlrev_b32 v{tmp}, 10, v{tmp}"); a(f"v_and_b32 v{tmp+3}, 1, v1"); a(f"v_lshl_add_u32 v{tmp}, v{tmp+3}, 3, v{tmp}")
        a(f"s_lshr_b32 s68, s{sW}, 1"); a("s_lshl_b32 s68, s68, 8"); a(f"v_add_u32 v{tmp}, s68, v{tmp}")
        for ct in range(4):
            a(f"v_xor_b32 v{t2+4+ct}, {2*ct}, v{tmp+1}"); a(f"v_lshl_add_u32 v{t2+4+ct}, v{t2+4+ct}, 4, v{tmp}")
        a("s_waitcnt vmcnt(0)")
        self.tag(vTag)
        a("s_barrier")
        self.stamp(1)
        for kt in range(2):
            for ks in range(16):
                a(f"ds_read_b128 {V(SA+64*kt+4*ks)}, v{t2+(ks&3)} offset:{256*(ks>>2)+16384*kt}")
            a("s_waitcnt lgkmcnt(8)")
        for half in range(2):
            for ct in range(4):
                for kk in range(2):
                    for hh in range(2):
                        r = PA + 16 * ct + 4 * (2 * half + kk) + 2 * hh
                        a(f"ds_read_b64_tr_b16 {V(r,2)}, v{t2+4+ct} offset:{(32*kk+4*hh)*1024}")
                a("s_waitcnt lgkmcnt(8)")
            if half == 0:
                for ct in range(4): a(f"v_add_u32 v{t2+4+ct}, 0x10000, v{t2+4+ct}")
        a("s_waitcnt lgkmcnt(0)")
        a("s_barrier")
        self.stamp(2)
        a(f"s_lshl_b32 s76, s{sW}, 13"); a(f"s_add_u32 s76, s76, {WS_QABS}"); a("s_add_u32 s77, s76, 4096")
        a(f"v_mov_b32 v{tmp}, 0")
        def gather_ind(): a(f"buffer_load_dwordx4 {V(G)}, v{tmp}, {WS}, s76 offen sc1")
        self.poll_loop(gather_ind, [G + 3], sleep=2, name="qind")
        def gather_qabs():
            for i in range(8):
                a(f"buffer_load_dwordx4 {V(G+4*i)}, v{vL16}, {WS}, s{76 if i < 4 else 77} offen offset:{1024*(i&3)} sc1")
        self.poll_loop(gather_qabs, [G + 4 * i + 3 for i in range(8)], sleep=0, name="qabs")
        self.stamp(3)
        a(f"s_bfe_u32 s68, s{sW}, 0x10001"); a("s_lshl_b32 s68, s68, 7"); a(f"v_lshlrev_b32 v{tmp}, 3, v1"); a(f"v_xor_b32 v{tmp}, s68, v{tmp}")
        a(f"s_lshl_b32 s68, s{sW}, 12")
        for ii in range(4):
            a(f"v_xor_b32 v{t2+ii}, {32*ii}, v{tmp}"); a(f"v_add_u32 v{t2+ii}, s68, v{t2+ii}")
        for i in range(8):
            r = G + 4 * i
            self.unpack(r)
            a(f"v_cvt_pk_bf16_f32 v{r}, v{r}, v{r+1}"); a(f"v_cvt_pk_bf16_f32 v{r+1}, v{r+2}, v{r+3}")
            a(f"ds_write_b64 v{t2+(i>>1)}, {V(r,2)} offset:{1024*(i>>1)+512*(i&1)}")
        a(f"s_lshr_b32 s68, s{sW}, 2"); a("s_lshl_b32 s68, s68, 14"); a(f"v_lshl_add_u32 v{tmp+3}, v{tmp+2}, 10, s68")
        for m in range(4): a(f"v_add_u32 v{t2+4+m}, v{tmp+3}, v{Z+m}")
        a("s_waitcnt lgkmcnt(0)")
        a("s_barrier")
        for ks in range(8): a(f"ds_read_b128 {V(G+4*ks)}, v{t2+4+(ks&3)} offset:{256*(ks>>2)}")
        for ks in range(16):
            a(f"s_waitcnt lgkmcnt({min(7, 15-ks)})")
            for kt in range(2):
                a(f"v_mfma_f32_16x16x32_bf16 {V(DS+4*kt)}, {V(SA+64*kt+4*ks)}, {V(G+4*(ks&7))}, {'0' if ks == 0 else V(DS+4*kt)}")
            if ks < 8:
                k2 = ks + 8
                a(f"ds_read_b128 {V(G+4*ks)}, v{t2+4+(k2&3)} offset:{256*(k2>>2)}")
        vM = tmp; SM, SS, PO = 32768, 33280, 36864
        a(f"v_max3_f32 v{vM}, v{DS}, v{DS+1}, v{DS+2}"); a(f"v_max3_f32 v{vM}, v{vM}, v{DS+3}, v{DS+4}")
        a(f"v_max3_f32 v{vM}, v{vM}, v{DS+5}, v{DS+6}"); a(f"v_max_f32 v{vM}, v{vM}, v{DS+7}")
        def allrows(r, op, t):
            a(f"v_mov_b32 v{t}, v{r}"); a(f"v_permlane16_swap_b32 v{r}, v{t}"); a(f"{op} v{r}, v{r}, v{t}")
            a(f"v_mov_b32 v{t}, v{r}"); a(f"v_permlane32_swap_b32 v{r}, v{t}"); a(f"{op} v{r}, v{r}, v{t}")
        allrows(vM, "v_max_f32", tmp + 1)
        a(f"s_lshr_b32 s68, s{sW}, 2"); a("s_lshl_b32 s68, s68, 8"); a(f"v_lshl_add_u32 v{t2}, v{tmp+2}, 4, s68")
        a(f"s_and_b32 s69, s{sW}, 3"); a("s_lshl_b32 s69, s69, 2"); a(f"v_add_u32 v{t2+1}, s69, v{t2}")
        a("s_mov_b32 exec_hi, 0"); a("s_mov_b32 exec_lo, 0xffff")
        a(f"ds_write_b32 v{t2+1}, v{vM} offset:{SM}")
        self.exec_full()
        a("s_waitcnt lgkmcnt(0)")
        a("s_barrier")
        a(f"ds_read_b128 {V(G)}, v{t2} offset:{SM}")
        a(f"v_and_b32 v{t2+2}, 3, v1"); a(f"v_lshlrev_b32 v{t2+2}, 1, v{t2+2}"); a(f"v_and_b32 v{t2+3}, 8, v1"); a(f"v_or_b32 v{t2+2}, v{t2+2}, v{t2+3}")
        a(f"v_lshrrev_b32 v{t2+3}, 5, v1"); a(f"v_xor_b32 v{t2+2}, v{t2+2}, v{t2+3}")
        a(f"s_and_b32 s69, s{sW}, 3"); a("s_lshl_b32 s69, s69, 2"); a(f"v_xor_b32 v{t2+2}, s69, v{t2+2}")
        a(f"v_bfe_u32 v{t2+3}, v1, 4, 1"); a(f"v_lshlrev_b32 v{t2+3}, 3, v{t2+3}")
        a(f"v_lshl_add_u32 v{t2+3}, v{tmp+2}, 8, v{t2+3}"); a("s_lshl_b32 s68, s68, 4"); a(f"v_add_u32 v{t2+3}, s68, v{t2+3}")
        a(f"v_lshl_add_u32 v{t2+4}, v{t2+2}, 4, v{t2+3}")
        a(f"v_xor_b32 v{t2+2}, 2, v{t2+2}"); a(f"v_lshl_add_u32 v{t2+5}, v{t2+2}, 4, v{t2+3}")
        a("s_waitcnt lgkmcnt(0)")
        a(f"v_max3_f32 v{vM}, v{G}, v{G+1}, v{G+2}"); a(f"v_max_f32 v{vM}, v{vM}, v{G+3}")
        a(f"v_mul_f32 v{vM}, s{sC1}, v{vM}")
        for k in range(8): a(f"v_fma_f32 v{DS+k}, v{DS+k}, s{sC1}, -v{vM}")
        for k in range(8): a(f"v_exp_f32 v{DS+k}, v{DS+k}")
        vS = tmp + 3
        a(f"v_add_f32 v{vS}, v{DS}, v{DS+1}")
        for k in range(2, 8): a(f"v_add_f32 v{vS}, v{vS}, v{DS+k}")
        for kt in range(2):
            a(f"v_cvt_pk_bf16_f32 v{DS+4*kt}, v{DS+4*kt}, v{DS+4*kt+1}"); a(f"v_cvt_pk_bf16_f32 v{DS+4*kt+1}, v{DS+4*kt+2}, v{DS+4*kt+3}")
            a(f"ds_write_b64 v{t2+4+kt}, {V(DS+4*kt,2)} offset:{PO}")
        allrows(vS, "v_add_f32", tmp + 1)
        a("s_mov_b32 exec_hi, 0"); a("s_mov_b32 exec_lo, 0xffff")
        a(f"ds_write_b32 v{t2+1}, v{vS} offset:{SS}")
        self.exec_full()
        a("s_waitcnt lgkmcnt(0)")
        a("s_barrier")
        self.stamp(4)
        a(f"v_lshlrev_b32 v{tmp+3}, 8, v{tmp+2}")
        for kk in range(4): a(f"v_add_u32 v{t2+kk}, v{tmp+3}, v{Z+kk}")
        for ht in range(2):
            for kk in range(4): a(f"ds_read_b128 {V(G+16*ht+4*kk)}, v{t2+kk} offset:{PO+4096*ht}")
        PD = SA
        for ht in range(2):
            a(f"s_waitcnt lgkmcnt({4 if ht == 0 else 0})")
            for kk in range(4):
                for ct in range(4):
                    d = PD + 16 * ht + 4 * ct
                    a(f"v_mfma_f32_16x16x32_bf16 {V(d)}, {V(PA+16*ct+4*kk)}, {V(G+16*ht+4*kk)}, {'0' if kk == 0 else V(d)}")
        a(f"v_lshrrev_b32 v{tmp+3}, 4, v1"); a(f"v_lshlrev_b32 v{tmp+3}, 4, v{tmp+3}"); a(f"v_lshl_add_u32 v{tmp+3}, v{tmp+2}, 16, v{tmp+3}")
        a(f"s_lshl_b32 s76, s{sH}, 11"); a(f"s_lshl_b32 s68, s{sW}, 8"); a("s_add_u32 s76, s76, s68"); a(f"s_add_u32 s76, s76, {WS_CTX}"); a("s_add_u32 s77, s76, 0x100000")
        for ht in range(2):
            for ct in range(4):
                d = PD + 16 * ht + 4 * ct
                self.pack(d, vTag)
                a(f"buffer_store_dwordx4 {V(d)}, v{tmp+3}, {WS}, s{76+ht} offen offset:{64*ct} sc1")
        a("s_barrier")
        L = self.lab("q1"); a(f"s_cmp_eq_u32 s{sW}, 0"); a(f"s_cbranch_scc0 {L}")
        a(f"v_and_b32 v{tmp}, 31, v1"); a(f"v_lshlrev_b32 v{tmp+1}, 4, v{tmp}")
        a(f"ds_read_b128 {V(G)}, v{tmp+1} offset:{SM}"); a(f"ds_read_b128 {V(G+4)}, v{tmp+1} offset:{SS}")
        a(f"v_lshlrev_b32 v{tmp}, 9, v{tmp}"); a(f"s_lshl_b32 s68, s{sH}, 4"); a(f"s_add_u32 s68, s68, {WS_ML}")
        a("s_waitcnt lgkmcnt(0)")
        a(f"v_max3_f32 v{G}, v{G}, v{G+1}, v{G+2}"); a(f"v_max_f32 v{G}, v{G}, v{G+3}"); a(f"v_mul_f32 v{G}, s{sC1}, v{G}")
        a(f"v_pk_add_f32 {V(G+4,2)}, {V(G+4,2)}, {V(G+6,2)}"); a(f"v_add_f32 v{G+1}, v{G+4}, v{G+5}")
        a(f"v_mov_b32 v{G+2}, 0"); a(f"v_mov_b32 v{G+3}, v{vTag}")
        self.exec_lo32()
        a(f"buffer_store_dwordx4 {V(G)}, v{tmp}, {WS}, s68 offen sc1")
        self.exec_full()
        a(f"{L}:")
        self.stamp(5)
        WO, EG, YD = 96, 176, 216
        a(f"v_lshrrev_b32 v{tmp}, 4, v1"); a("s_movk_i32 s68, 5120"); a(f"v_mul_u32_u24 v{tmp}, s68, v{tmp}"); a(f"v_lshl_add_u32 v{tmp}, v{tmp+2}, 4, v{tmp}")
        a(f"s_lshl_b32 s68, s{sH}, 3"); a(f"s_add_u32 s68, s68, s{sW}"); a(f"s_mul_i32 s72, s68, {16*1280}")
        for rg in range(4):
            if rg: a("s_add_u32 s72, s72, 1280")
            for cb in range(5):
                a(f"buffer_load_dwordx4 {V(WO+4*(5*rg+cb))}, v{tmp}, {S(SRD2)}, s72 offen offset:{256*cb} nt")
        a(f"v_lshrrev_b32 v{tmp}, 4, v1"); a(f"v_lshlrev_b32 v{tmp}, 4, v{tmp}"); a(f"v_mov_b32 v{tmp+1}, 0")
        a(f"s_mul_i32 s76, s{sH}, 2560"); a(f"s_lshl_b32 s68, s{sW}, 6"); a("s_add_u32 s76, s76, s68"); a(f"s_add_u32 s76, s76, {WS_OB}")
        a(f"s_lshl_b32 s77, s{sH}, 7"); a(f"s_add_u32 s77, s77, {WS_MLB}")
        def gather_ob():
            for s in range(5): a(f"buffer_load_dwordx4 {V(EG+4*s)}, v{tmp}, {WS}, s76 offen offset:{512*s} sc1")
            for s in range(5): a(f"buffer_load_dwordx4 {V(EG+20+4*s)}, v{tmp+1}, {WS}, s77 offen offset:{16*s} sc1")
        self.poll_loop(gather_ob, [EG + 4 * s + 3 for s in range(10)], sleep=2, name="qob")
        self.stamp(6)
        ME = EG + 20
        vMx = t2; vL = t2 + 1
        a(f"v_max3_f32 v{vMx}, v{ME}, v{ME+4}, v{ME+8}"); a(f"v_max3_f32 v{vMx}, v{vMx}, v{ME+12}, v{ME+16}")
        for s in range(5): a(f"v_sub_f32 v{ME+4*s}, v{ME+4*s}, v{vMx}")
        for s in range(5): a(f"v_exp_f32 v{ME+4*s}, v{ME+4*s}")
        for s in range(5): self.unpack(EG + 4 * s)
        a(f"v_mul_f32 v{vL}, v{ME}, v{ME+1}")
        for s in range(1, 5): a(f"v_fmac_f32 v{vL}, v{ME+4*s}, v{ME+4*s+1}")
        a(f"v_rcp_f32 v{vL}, v{vL}")
        O = G
        for v in range(4): a(f"v_mul_f32 v{O+v}, v{ME}, v{EG+v}")
        for s in range(1, 5):
            for v in range(4): a(f"v_fmac_f32 v{O+v}, v{ME+4*s}, v{EG+4*s+v}")
        for v in range(4): a(f"v_mul_f32 v{O+v}, v{vL}, v{O+v}")
        for v in range(4): a(f"v_cvt_pk_bf16_f32 v{O+v}, v{O+v}, v{O+v}")
        def ands(rg):
            ab = AB + 4 * (rg & 1)
            for t in range(4): a(f"v_and_b32 v{ab+t}, v{O+rg}, v{M0+t}")
        ands(0)
        for rg in range(4):
            if rg + 1 < 4: ands(rg + 1)
            ab = AB + 4 * (rg & 1)
            for cb in range(5):
                a(f"v_mfma_f32_16x16x32_bf16 {V(YD+4*cb)}, {V(ab)}, {V(WO+4*(5*rg+cb))}, {'0' if rg == 0 else V(YD+4*cb)}")
        YO = 45056
        a(f"v_and_b32 v{tmp}, 15, v1"); a(f"v_bfe_u32 v{tmp+1}, v1, 4, 1"); a(f"v_lshl_add_u32 v{tmp}, v{tmp}, 1, v{tmp+1}"); a(f"v_lshlrev_b32 v{tmp}, 4, v{tmp}")
        a(f"s_mul_i32 s68, s{sW}, 2560"); a(f"v_add_u32 v{tmp}, s68, v{tmp}")
        self.exec_lo32()
        for cb in range(5): a(f"ds_write_b128 v{tmp}, {V(YD+4*cb)} offset:{YO+512*cb}")
        self.exec_full()
        a("s_waitcnt lgkmcnt(0)")
        a("s_barrier")
        Le = self.lab("qend")
        a(f"v_lshlrev_b32 v{tmp}, 4, v0")
        a(f"s_cmp_lt_u32 s{sW}, 3"); a(f"s_cbranch_scc0 {Le}")
        for k in range(8): a(f"ds_read_b128 {V(G+4*k)}, v{tmp} offset:{YO+2560*k}")
        a(f"s_mul_i32 s68, s{sH}, 2560"); a(f"s_add_u32 s68, s68, {WS_YB}")
        a("v_cmp_gt_u32 vcc, 160, v0")
        a("s_waitcnt lgkmcnt(0)")
        self.tree_add(G, 8)
        self.pack(G, vTag)
        a("s_and_b64 exec, exec, vcc")
        a(f"buffer_store_dwordx4 {V(G)}, v{tmp}, {WS}, s68 offen sc1")
        self.exec_full()
        a(f"{Le}:")
        self.stamp(7)
        self.finish()

    def build(self):
        a = self.a
        self.prologue()
        if "B" in self.roles: self.role_B()
        else: a("s_endpgm")
        a("L_PR:"); self.role_PR()
        a("L_Q:"); self.role_Q()
        a("L_end:"); a("s_endpgm")
        head = [
            "; concat_heads__compressed_kv_cla__mha_block_cached__decode: one persistent launch, 256 workgroups of 8 waves",
            "; @launch grid=(256,1,1) block=(512,1,1) lds=131072",
            '.amdgcn_target "amdgcn-amd-amdhsa--gfx950"', ".text", f".globl {KN}", ".p2align 8", f".type {KN},@function", f"{KN}:"]
        tail = ['.section .rodata,"a"', ".p2align 6", f".amdhsa_kernel {KN}",
            "  .amdhsa_next_free_vgpr 256", "  .amdhsa_next_free_sgpr 102", "  .amdhsa_accum_offset 256",
            "  .amdhsa_group_segment_fixed_size 0", "  .amdhsa_kernarg_size 112", "  .amdhsa_user_sgpr_count 2",
            "  .amdhsa_user_sgpr_kernarg_segment_ptr 1", "  .amdhsa_system_sgpr_workgroup_id_x 1",
            "  .amdhsa_float_denorm_mode_32 3", ".end_amdhsa_kernel"]
        return "\n".join(head) + "\n" + a.text() + "\n".join(tail) + "\n"

if __name__ == "__main__":
    import argparse
    ap = argparse.ArgumentParser()
    ap.add_argument("-o", default="k.s"); ap.add_argument("--prof", action="store_true")
    ap.add_argument("--roles", default="BPQ"); ap.add_argument("-D", type=int, default=5); ap.add_argument("--spin", type=int, default=20000)
    args = ap.parse_args()
    g = Gen(prof=args.prof, D=args.D, spin=args.spin, roles=args.roles)
    open(args.o, "w").write(g.build())
    sys.path.insert(0, "exp"); import build
    print(build.build(args.o))
```

```python
import sys, struct
from asmlib import Asm

KN = "concat_heads__compressed_kv_cla__mha_block_cached__decode_kernel"

WS_QB   = 0x1000
WS_QA   = 0x16000
WS_QABS = 0x20000
WS_ML   = 0x30000
WS_MLB  = 0x34000
WS_OB   = 0x38000
WS_YA   = 0x50000
WS_YB   = 0x78000
WS_PROF = 0x90000
WS_CTX  = 0x100000
WS_SIZE = 0x300000

def f2u(x): return struct.unpack("<I", struct.pack("<f", x))[0]
C1 = 1.4426950408889634 / (128 ** 0.5)
NEG = -1.0e30

sW, sH, sSub = 3, 4, 5
WS = "s[8:11]"; OUT = "s[12:15]"
pAX, pCKV, pWQA, pWUK, pWUV, pWOA, pBX, pK, pV, pWQB, pWOB, pOUT, pDBG, pWS = 16, 18, 20, 22, 24, 26, 28, 30, 32, 34, 36, 38, 40, 42
SRD1, SRD2, SRD3, SRD4 = 44, 48, 52, 56
sEpoch, sTag = 60, 61
sP0, sP1, sP2, sU, sLo, sHi = 62, 63, 64, 65, 66, 67
sT = 68
sC1 = 80
sCnt = 81
sBias = 82
sProf = 84

class Gen:
    def __init__(self, prof=False, D=5, spin=20000, roles="BPQ", dbg=False, nt="nt", dbgst=False):
        self.a = Asm(); self.prof = prof; self.D = D; self.spin = spin; self.roles = roles; self.dbg = dbg
        self.nlab = 0; self.nstamp = 0; self.nt = nt; self.dbgst = dbgst
    def lab(self, base):
        self.nlab += 1; return f"L_{base}_{self.nlab}"
    def stamp(self, k):
        if self.prof or self.dbgst: self.a(f"s_memrealtime s[{sProf+2*k}:{sProf+2*k+1}]")
    def srd(self, base, ptr, size):
        a = self.a
        a(f"s_mov_b32 s{base}, s{ptr}"); a(f"s_mov_b32 s{base+1}, s{ptr+1}")
        a(f"s_mov_b32 s{base+2}, {size}"); a(f"s_mov_b32 s{base+3}, 0x20000")
    @staticmethod
    def S(base): return f"s[{base}:{base+3}]"
    @staticmethod
    def V(r, n=4): return f"v[{r}:{r+n-1}]"
    def pack(self, r, vtag):
        a = self.a
        a(f"v_perm_b32 v{r}, v{r}, v{r+3}, s{sP0}")
        a(f"v_perm_b32 v{r+1}, v{r+1}, v{r+3}, s{sP1}")
        a(f"v_perm_b32 v{r+2}, v{r+2}, v{r+3}, s{sP2}")
        a(f"v_mov_b32 v{r+3}, v{vtag}")
    def unpack(self, r):
        a = self.a
        a(f"v_perm_b32 v{r+3}, v{r+1}, v{r}, s{sU}")
        a(f"v_lshl_or_b32 v{r+3}, v{r+2}, 24, v{r+3}")
    def check(self, regs, acc):
        a = self.a
        for i, r in enumerate(regs):
            if i == 0: a(f"v_cmp_ne_u32 s[{acc}:{acc+1}], s{sTag}, v{r}")
            else:
                a(f"v_cmp_ne_u32 vcc, s{sTag}, v{r}")
                a(f"s_or_b64 s[{acc}:{acc+1}], s[{acc}:{acc+1}], vcc")
    def poll_loop(self, issue, regs, first_issued=False, first_wait=None, sleep=1, name="poll"):
        a = self.a
        L = self.lab(name); Lc = L + "_c"; Ld = L + "_d"
        a(f"s_mov_b32 s{sCnt}, 0")
        if first_issued:
            a(first_wait)
            a(f"s_branch {Lc}")
        a(f"{L}:")
        issue()
        a("s_waitcnt vmcnt(0)")
        if first_issued: a(f"{Lc}:")
        self.check(regs, sT + 2)
        a(f"s_cmp_eq_u64 s[{sT+2}:{sT+3}], 0")
        a(f"s_cbranch_scc1 {Ld}")
        a(f"s_add_u32 s{sCnt}, s{sCnt}, 1")
        a(f"s_cmp_lt_u32 s{sCnt}, {self.spin}")
        a(f"s_cbranch_scc0 {Ld}")
        if sleep: a(f"s_sleep {sleep}")
        a(f"s_branch {L}")
        a(f"{Ld}:")
    def masks(self, m0, vlane, t0, t1):
        a = self.a
        a(f"v_and_b32 v{t0}, 1, v{vlane}")
        a(f"v_lshlrev_b32 v{t0}, 4, v{t0}")
        a(f"v_mov_b32 v{t1}, 0xffff")
        a(f"v_lshlrev_b32 v{t0}, v{t0}, v{t1}")
        a(f"v_bfe_u32 v{t1}, v{vlane}, 1, 2")
        for t in range(4):
            a(f"v_cmp_eq_u32 vcc, {t}, v{t1}")
            a(f"v_cndmask_b32 v{m0+t}, 0, v{t0}, vcc")
    def exec_lo32(self): self.a("s_mov_b32 exec_hi, 0")
    def exec_full(self): self.a("s_mov_b64 exec, -1")

    def prologue(self):
        a = self.a
        a("s_cmp_ge_u32 s2, 256"); a("s_cbranch_scc1 L_end")
        a("s_load_dwordx4 s[40:43], s[0:1], 96")
        a("s_load_dwordx16 s[16:31], s[0:1], 0")
        a("s_load_dwordx8 s[32:39], s[0:1], 64")
        self.stamp(0)
        a("v_lshrrev_b32 v2, 6, v0")
        a("v_and_b32 v1, 63, v0")
        a(f"v_readfirstlane_b32 s{sW}, v2")
        a("s_and_b32 s6, s2, 7")
        a("s_lshr_b32 s7, s2, 3")
        a(f"s_mov_b32 s{sP0}, 0x07060501"); a(f"s_mov_b32 s{sP1}, 0x07060502"); a(f"s_mov_b32 s{sP2}, 0x07060503")
        a(f"s_mov_b32 s{sU}, 0x0c04000c"); a(f"s_mov_b32 s{sLo}, 0x01000100"); a(f"s_mov_b32 s{sHi}, 0x03020302")
        a(f"s_mov_b32 s{sC1}, {f2u(C1):#x}")
        a("s_lshl_b32 s6, s6, 2")
        a("s_cmp_lt_u32 s7, 8"); a("s_cbranch_scc1 L_PR")
        a("s_cmp_lt_u32 s7, 12"); a("s_cbranch_scc1 L_Q")
    def common2(self):
        a = self.a
        a(f"s_load_dword s{sEpoch}, s[{pWS}:{pWS+1}], 0")
        self.srd(8, pWS, WS_SIZE)
        self.srd(12, pOUT, 2560)
    def tag(self, vtag):
        a = self.a
        a("s_waitcnt lgkmcnt(0)")
        a(f"s_mul_i32 s{sTag}, s{sEpoch}, 0x9E3779B1")
        a(f"s_add_u32 s{sTag}, s{sTag}, 0x85EBCA6B")
        a(f"v_mov_b32 v{vtag}, s{sTag}")
    def finish(self, role=None):
        a = self.a
        if self.prof:
            a("s_waitcnt lgkmcnt(0)")
            a("s_mov_b64 exec, -1")
            a("v_mov_b32 v250, 0")
            for k in range(16):
                a(f"v_writelane_b32 v250, s{sProf+k}, {k}")
            a("v_and_b32 v251, 63, v0"); a("v_lshlrev_b32 v251, 2, v251")
            a(f"s_lshl_b32 s6, s2, 3"); a(f"s_add_u32 s6, s6, s{sW}"); a("s_lshl_b32 s6, s6, 6"); a(f"s_add_u32 s6, s6, {WS_PROF}")
            a("s_mov_b32 exec_hi, 0"); a("s_mov_b32 exec_lo, 0xffff")
            a(f"buffer_store_dword v250, v251, {WS}, s6 offen")
        if self.dbgst and role:
            wg, base, ks = {"PR": (0, 0, [1, 3, 5, 6, 7]), "B": (255, 5, [2, 3, 4, 5]), "Q": (64, 9, [1, 2, 3, 4, 5, 6, 7])}[role]
            Ls = self.lab("dbg")
            a("s_waitcnt lgkmcnt(0)")
            a(f"s_cmp_eq_u32 s{sW}, 0"); a(f"s_cbranch_scc0 {Ls}")
            a(f"s_cmp_eq_u32 s2, {wg}"); a(f"s_cbranch_scc0 {Ls}")
            a("s_mov_b64 exec, -1")
            a("v_mov_b32 v250, 0")
            for n, k in enumerate(ks):
                a(f"s_sub_u32 s7, s{sProf+2*k}, s{sProf}"); a(f"v_writelane_b32 v250, s7, {n}")
            a("v_and_b32 v251, 63, v0"); a("v_lshlrev_b32 v251, 2, v251"); a(f"v_add_u32 v251, {4*base}, v251")
            a("s_mov_b32 exec_hi, 0"); a(f"s_mov_b32 exec_lo, {(1 << len(ks)) - 1}")
            a(f"global_store_dword v251, v250, s[{pDBG}:{pDBG+1}]")
            a(f"{Ls}:")
        a("s_endpgm")

    def role_B(self):
        a = self.a; D = self.D; V = self.V; S = self.S
        vL16, vLast, M0, QF, DD, AB, T, T0, T1, U, vTag, vA, vB = 2, 3, 4, 8, 12, 16, 24, 28, 29, 30, 37, 38, 39
        KT, VT = 40, 144
        X, WQ, G = 160, 144, 164
        tmp = 248
        NK = 26
        a("; ---------------- role B ----------------")
        a("s_sub_u32 s7, s7, 12")
        a("s_mul_i32 s68, s7, 52"); a("s_lshr_b32 s68, s68, 8")
        a(f"s_add_u32 s{sH}, s6, s68")
        a("s_mul_i32 s68, s68, 5"); a(f"s_sub_u32 s{sSub}, s7, s68")
        a(f"v_lshlrev_b32 v{vL16}, 4, v1")
        a(f"v_lshrrev_b32 v{tmp}, 4, v1")
        a(f"v_and_b32 v{tmp+1}, 15, v1")
        a(f"v_lshlrev_b32 v{vB}, 15, v{tmp}"); a(f"v_lshl_add_u32 v{vB}, v{tmp+1}, 4, v{vB}")
        a(f"s_lshl_b32 s68, s{sSub}, 3"); a(f"s_add_u32 s68, s68, s{sW}")
        a("s_lshl_b32 s69, s68, 7"); a("s_mul_hi_u32 s70, s69, 0xCCCCCCCD"); a("s_lshr_b32 s70, s70, 2")
        a("s_add_u32 s69, s69, 128"); a("s_mul_hi_u32 s71, s69, 0xCCCCCCCD"); a("s_lshr_b32 s71, s71, 2")
        a("s_sub_u32 s71, s71, s70")
        a(f"s_lshl_b32 s72, s{sH}, 20"); a("s_lshl_b32 s70, s70, 10"); a("s_add_u32 s72, s72, s70")
        a(f"s_lshl_b32 s73, s{sSub}, 3"); a(f"s_add_u32 s73, s73, s{sW}"); a("s_lshl_b32 s74, s73, 5")
        a(f"v_lshl_add_u32 v{vA}, v{tmp}, 3, s74")
        a("s_lshl_b32 s73, s73, 17")
        a(f"s_lshl_b32 s74, s{sH}, 8"); a("s_add_u32 s73, s73, s74")
        a("s_cmp_eq_u32 s71, 26")
        a(f"s_cselect_b32 s{sBias}, 0, {f2u(NEG):#x}")
        a(f"s_cselect_b32 s74, 0, 0x7f000000")
        a(f"v_or_b32 v{vLast}, s74, v{vL16}")
        a("s_waitcnt lgkmcnt(0)")
        self.srd(SRD3, pWQB, 640 * 8192)
        a(f"global_load_dwordx2 {V(X,2)}, v{vA}, s[{pBX}:{pBX+1}]")
        for i in range(4):
            if i: a(f"s_add_u32 s73, s73, 8192")
            a(f"buffer_load_dwordx4 {V(WQ+4*i)}, v{vB}, {S(SRD3)}, s73 offen {self.nt}")
        self.srd(SRD1, pK, 32 << 20); self.srd(SRD2, pV, 32 << 20)
        a("s_mov_b32 s75, s72")
        issued = []
        def kv_load(srd, base, i, soff):
            if i and i % 4 == 0: a(f"s_add_u32 s{soff}, s{soff}, 4096")
            voff = vLast if i == NK - 1 else vL16
            a(f"buffer_load_dwordx4 {V(base+4*i)}, v{voff}, {S(srd)}, s{soff} offen offset:{1024*(i%4)} {self.nt}")
        for i in range(D): kv_load(SRD1, KT, i, 75)
        self.common2()
        self.masks(M0, 1, tmp, tmp + 1)
        a(f"v_and_b32 v{tmp}, 15, v1"); a(f"v_bfe_u32 v{tmp+1}, v1, 4, 1")
        a(f"v_lshl_add_u32 v{tmp}, v{tmp}, 1, v{tmp+1}"); a(f"v_lshlrev_b32 v{tmp}, 4, v{tmp}")
        a(f"s_lshl_b32 s68, s{sW}, 9"); a(f"v_add_u32 v{vA}, s68, v{tmp}")
        a(f"s_waitcnt vmcnt({D})")
        self.stamp(1)
        sels = [(X, sLo), (X, sHi), (X + 1, sLo), (X + 1, sHi)]
        for i in range(4):
            xr, sel = sels[i]
            a(f"v_perm_b32 v{tmp+2}, v{xr}, v{xr}, s{sel}")
            ab = AB + 4 * (i & 1)
            for t in range(4): a(f"v_and_b32 v{ab+t}, v{tmp+2}, v{M0+t}")
            a(f"v_mfma_f32_16x16x32_bf16 {V(DD)}, {V(ab)}, {V(WQ+4*i)}, {'0' if i == 0 else V(DD)}")
        self.exec_lo32()
        a(f"ds_write_b128 v{vA}, {V(DD)}")
        self.exec_full()
        self.tag(vTag)
        a("s_barrier")
        L = self.lab("b1"); a(f"s_cmp_eq_u32 s{sW}, 0"); a(f"s_cbranch_scc0 {L}")
        a(f"v_and_b32 v{tmp}, 31, v1"); a(f"v_lshlrev_b32 v{tmp}, 4, v{tmp}")
        for k in range(8): a(f"ds_read_b128 {V(G+4*k)}, v{tmp} offset:{512*k}")
        a(f"s_mul_i32 s68, s{sH}, 5"); a(f"s_add_u32 s68, s68, s{sSub}"); a("s_lshl_b32 s68, s68, 9"); a(f"s_add_u32 s68, s68, {WS_QB}")
        a("s_waitcnt lgkmcnt(0)")
        self.tree_add(G, 8)
        self.pack(G, vTag)
        self.exec_lo32()
        a(f"buffer_store_dwordx4 {V(G)}, v{tmp}, {WS}, s68 offen sc1")
        self.exec_full()
        a(f"{L}:")
        n1 = 14; n2 = n1 + D + 1
        def gather_q():
            for s in range(5):
                a(f"buffer_load_dwordx4 {V(G+4*s)}, v{tmp+3}, {WS}, s76 offen offset:{512*s} sc1")
        for i in range(D, NK):
            a(f"s_waitcnt vmcnt({D-1})")
            kv_load(SRD1, KT, i, 75)
            if i == n1:
                L = self.lab("b2")
                a(f"v_and_b32 v{tmp+3}, 31, v1"); a(f"v_lshlrev_b32 v{tmp+3}, 4, v{tmp+3}")
                a(f"s_mul_i32 s76, s{sH}, 2560"); a(f"s_add_u32 s76, s76, {WS_QB}")
                a(f"s_cmp_eq_u32 s{sW}, 1"); a(f"s_cbranch_scc0 {L}")
                gather_q()
                a(f"{L}:")
            if i == n2:
                L = self.lab("b3"); a(f"s_cmp_eq_u32 s{sW}, 1"); a(f"s_cbranch_scc0 {L}")
                self.poll_loop(gather_q, [G + 4 * s + 3 for s in range(5)], first_issued=True,
                               first_wait=f"s_waitcnt vmcnt({n2-n1})", name="bq")
                for s in range(5): self.unpack(G + 4 * s)
                self.tree_add(G, 5)
                a(f"v_cvt_pk_bf16_f32 v{G}, v{G}, v{G+1}")
                a(f"v_cvt_pk_bf16_f32 v{G+1}, v{G+2}, v{G+3}")
                a(f"v_lshrrev_b32 v{tmp+3}, 1, v{tmp+3}")
                self.exec_lo32()
                a(f"ds_write_b64 v{tmp+3}, {V(G,2)} offset:4096")
                self.exec_full()
                a("s_waitcnt lgkmcnt(0)")
                a(f"{L}:")
        self.stamp(2)
        a("s_barrier")
        a(f"v_and_b32 v{tmp}, 15, v1"); a(f"v_lshlrev_b32 v{tmp}, 4, v{tmp}")
        a(f"ds_read_b128 {V(QF)}, v{tmp} offset:4096")
        a("s_mov_b32 s75, s72")
        def kgroup(k):
            n = min(4, NK - 4 * k)
            for r in range(4):
                for u in range(n):
                    kreg = KT + 4 * (4 * k + u) + r
                    if r == 0: a(f"v_dot2_f32_bf16 v{T+u}, v{kreg}, v{QF}, 0")
                    else: a(f"v_dot2c_f32_bf16 v{T+u}, v{kreg}, v{QF+r}")
            if n < 4:
                a(f"v_mov_b32 v{T0}, {f2u(NEG):#x}"); a(f"v_mov_b32 v{T1}, {f2u(NEG):#x}")
                a(f"v_add_f32 v{T+1}, s{sBias}, v{T+1}")
            a(f"v_add_f32_dpp v{T0}, v{T}, v{T} row_ror:8 row_mask:0xf bank_mask:0x3")
            a(f"v_add_f32_dpp v{T1}, v{T+1}, v{T+1} row_ror:8 row_mask:0xf bank_mask:0x3")
            if n == 4:
                a(f"v_add_f32_dpp v{T0}, v{T+2}, v{T+2} row_ror:8 row_mask:0xf bank_mask:0xc")
                a(f"v_add_f32_dpp v{T1}, v{T+3}, v{T+3} row_ror:8 row_mask:0xf bank_mask:0xc")
            a(f"v_add_f32_dpp v{U+k}, v{T0}, v{T0} row_half_mirror row_mask:0xf bank_mask:0x5")
            a(f"v_add_f32_dpp v{U+k}, v{T1}, v{T1} row_half_mirror row_mask:0xf bank_mask:0xa")
            a(f"v_add_f32_dpp v{U+k}, v{U+k}, v{U+k} quad_perm:[2,3,0,1] row_mask:0xf bank_mask:0xf")
            a(f"v_add_f32_dpp v{U+k}, v{U+k}, v{U+k} quad_perm:[1,0,3,2] row_mask:0xf bank_mask:0xf")
        def allreduce_rows(r, op, t):
            a(f"v_mov_b32 v{t}, v{r}"); a(f"v_permlane16_swap_b32 v{r}, v{t}"); a(f"{op} v{r}, v{r}, v{t}")
            a(f"v_mov_b32 v{t}, v{r}"); a(f"v_permlane32_swap_b32 v{r}, v{t}"); a(f"{op} v{r}, v{r}, v{t}")
        vM, vLs = tmp, tmp + 1
        def softmax():
            a(f"v_max3_f32 v{vM}, v{U}, v{U+1}, v{U+2}")
            a(f"v_max3_f32 v{vM}, v{vM}, v{U+3}, v{U+4}")
            a(f"v_max3_f32 v{vM}, v{vM}, v{U+5}, v{U+6}")
            a(f"v_max_f32_dpp v{vM}, v{vM}, v{vM} row_ror:4 row_mask:0xf bank_mask:0xf")
            a(f"v_max_f32_dpp v{vM}, v{vM}, v{vM} row_ror:8 row_mask:0xf bank_mask:0xf")
            allreduce_rows(vM, "v_max_f32", tmp + 2)
            a(f"v_mul_f32 v{vM}, s{sC1}, v{vM}")
            a(f"v_mov_b32 v{tmp+2}, v{vM}"); a(f"v_mov_b32 v{tmp+3}, v{vTag}")
            a(f"s_lshl_b32 s68, s{sW}, 3"); a(f"v_mov_b32 v{tmp+4}, s68")
            a("s_mov_b64 exec, 1")
            a(f"ds_write_b64 v{tmp+4}, {V(tmp+2,2)} offset:12288")
            self.exec_full()
            for k in range(7):
                a(f"v_fma_f32 v{U+k}, v{U+k}, s{sC1}, -v{vM}")
            for k in range(7):
                a(f"v_exp_f32 v{U+k}, v{U+k}")
            a(f"v_add_f32 v{vLs}, v{U}, v{U+1}")
            for k in range(2, 7): a(f"v_add_f32 v{vLs}, v{vLs}, v{U+k}")
            for k in range(7): a(f"v_cvt_pk_bf16_f32 v{U+k}, v{U+k}, v{U+k}")
            a(f"v_add_f32_dpp v{vLs}, v{vLs}, v{vLs} row_ror:4 row_mask:0xf bank_mask:0xf")
            a(f"v_add_f32_dpp v{vLs}, v{vLs}, v{vLs} row_ror:8 row_mask:0xf bank_mask:0xf")
            allreduce_rows(vLs, "v_add_f32", tmp + 2)
        def pv_and(i):
            ab = AB + 4 * (i & 1)
            for t in range(4):
                a(f"v_and_b32_dpp v{ab+t}, v{U+(i>>2)}, v{M0+t} row_newbcast:{4*(i&3)} row_mask:0xf bank_mask:0xf")
        def pv_mfma(i):
            ab = AB + 4 * (i & 1)
            a(f"v_mfma_f32_16x16x32_bf16 {V(DD)}, {V(ab)}, {V(VT+4*i)}, {'0' if i == 0 else V(DD)}")
        pv = 0
        a("s_waitcnt lgkmcnt(0)")
        SM = 14
        for i in range(NK):
            a(f"s_waitcnt vmcnt({D-1})")
            kv_load(SRD2, VT, i, 75)
            if i < SM and i % 2 == 1 and i // 2 < 7: kgroup(i // 2)
            if i == SM - 1:
                softmax(); pv_and(0)
            if i >= SM:
                lim = i - D
                for _ in range(2):
                    if pv <= lim:
                        pv_and(pv + 1); pv_mfma(pv); pv += 1
        self.stamp(3)
        FM = T
        L = self.lab("bm")
        a(f"s_mov_b32 s{sCnt}, 0")
        a(f"v_mov_b32 v{tmp+4}, 0")
        a(f"{L}:")
        R8 = KT
        for k in range(4): a(f"ds_read_b128 {V(R8+4*k)}, v{tmp+4} offset:{12288+16*k}")
        a("s_waitcnt lgkmcnt(0)")
        self.check([R8 + 2 * k + 1 for k in range(8)], sT + 2)
        a(f"s_cmp_eq_u64 s[{sT+2}:{sT+3}], 0"); a(f"s_cbranch_scc1 {L}_d")
        a(f"s_add_u32 s{sCnt}, s{sCnt}, 1"); a(f"s_cmp_lt_u32 s{sCnt}, {self.spin}"); a(f"s_cbranch_scc1 {L}")
        a(f"{L}_d:")
        vMc = R8 + 16; vF = R8 + 17
        a(f"v_max3_f32 v{vMc}, v{R8}, v{R8+2}, v{R8+4}")
        a(f"v_max3_f32 v{vMc}, v{vMc}, v{R8+6}, v{R8+8}")
        a(f"v_max3_f32 v{vMc}, v{vMc}, v{R8+10}, v{R8+12}")
        a(f"v_max_f32 v{vMc}, v{vMc}, v{R8+14}")
        a(f"v_sub_f32 v{vF}, v{vM}, v{vMc}")
        a(f"v_exp_f32 v{vF}, v{vF}")
        a(f"v_mul_f32 v{vLs}, v{vLs}, v{vF}")
        while pv < NK:
            a(f"s_waitcnt vmcnt({NK-1-pv})")
            if pv + 1 < NK: pv_and(pv + 1)
            pv_mfma(pv); pv += 1
        self.stamp(4)
        for v in range(4): a(f"v_mul_f32 v{DD+v}, v{vF}, v{DD+v}")
        self.exec_lo32()
        a(f"ds_write_b128 v{vA}, {V(DD)} offset:8192")
        a("s_mov_b32 exec_lo, 1")
        a(f"s_lshl_b32 s68, s{sW}, 2"); a(f"v_mov_b32 v{tmp+4}, s68")
        a(f"ds_write_b32 v{tmp+4}, v{vLs} offset:12416")
        self.exec_full()
        a("s_waitcnt lgkmcnt(0)")
        a("s_barrier")
        L = self.lab("b4"); a(f"s_cmp_eq_u32 s{sW}, 0"); a(f"s_cbranch_scc0 {L}")
        a(f"v_and_b32 v{tmp}, 31, v1"); a(f"v_lshlrev_b32 v{tmp}, 4, v{tmp}")
        G2 = VT
        for k in range(8): a(f"ds_read_b128 {V(G2+4*k)}, v{tmp} offset:{8192+512*k}")
        a(f"v_mov_b32 v{tmp+4}, 0")
        a(f"ds_read_b128 {V(G2+32)}, v{tmp+4} offset:12416")
        a(f"ds_read_b128 {V(G2+36)}, v{tmp+4} offset:12432")
        a(f"s_mul_i32 s68, s{sH}, 5"); a(f"s_add_u32 s68, s68, s{sSub}"); a("s_lshl_b32 s68, s68, 9"); a(f"s_add_u32 s68, s68, {WS_OB}")
        a(f"s_lshl_b32 s69, s{sH}, 3"); a(f"s_add_u32 s69, s69, s{sSub}"); a("s_lshl_b32 s69, s69, 4"); a(f"s_add_u32 s69, s69, {WS_MLB}")
        a("s_waitcnt lgkmcnt(2)")
        self.tree_add(G2, 8)
        self.pack(G2, vTag)
        self.exec_lo32()
        a(f"buffer_store_dwordx4 {V(G2)}, v{tmp}, {WS}, s68 offen sc1")
        a("s_waitcnt lgkmcnt(0)")
        ML = G2 + 40
        a(f"v_pk_add_f32 {V(G2+32,2)}, {V(G2+32,2)}, {V(G2+34,2)}")
        a(f"v_pk_add_f32 {V(G2+36,2)}, {V(G2+36,2)}, {V(G2+38,2)}")
        a(f"v_pk_add_f32 {V(G2+32,2)}, {V(G2+32,2)}, {V(G2+36,2)}")
        a(f"v_mov_b32 v{ML}, v{vMc}")
        a(f"v_add_f32 v{ML+1}, v{G2+32}, v{G2+33}")
        a(f"v_mov_b32 v{ML+2}, 0"); a(f"v_mov_b32 v{ML+3}, v{vTag}")
        a("s_mov_b32 exec_lo, 1")
        a(f"v_mov_b32 v{tmp+4}, 0")
        a(f"buffer_store_dwordx4 {V(ML)}, v{tmp+4}, {WS}, s69 offen sc1")
        self.exec_full()
        a(f"{L}:")
        self.stamp(5)
        self.finish("B")

    def tree_add(self, base, n):
        a = self.a; V = self.V
        step = 1
        while step < n:
            for k in range(0, n, 2 * step):
                if k + step < n:
                    for hh in (0, 2):
                        a(f"v_pk_add_f32 {V(base+4*k+hh,2)}, {V(base+4*k+hh,2)}, {V(base+4*(k+step)+hh,2)}")
            step *= 2

    def row_allreduce(self, regs, op, steps=(8, 4, 2, 1)):
        a = self.a
        for st in steps:
            for r in regs: a(f"{op}_dpp v{r}, v{r}, v{r} row_ror:{st} row_mask:0xf bank_mask:0xf")
    def rowacc(self, DD, AB, M0, n, coef, tile, first_zero=True):
        a = self.a; V = self.V
        def ands(i):
            src, mod = coef(i); ab = AB + 4 * (i & 1)
            for t in range(4):
                if mod: a(f"v_and_b32_dpp v{ab+t}, v{src}, v{M0+t} {mod} row_mask:0xf bank_mask:0xf")
                else: a(f"v_and_b32 v{ab+t}, v{src}, v{M0+t}")
        ands(0)
        for i in range(n):
            if i + 1 < n: ands(i + 1)
            ab = AB + 4 * (i & 1)
            a(f"v_mfma_f32_16x16x32_bf16 {V(DD)}, {V(ab)}, {V(tile(i))}, {'0' if (i == 0 and first_zero) else V(DD)}")

    def role_PR(self):
        a = self.a; V = self.V; S = self.S
        vWQ, vUK, M0, QF, DD, AB, T, U, vTag = 2, 3, 4, 8, 12, 16, 24, 32, 36
        vUV, vWO, vLD, vX, tmp = 37, 38, 39, 40, 41
        WQ, X, UK, UV, WO, G = 48, 88, 96, 128, 160, 224
        a(f"s_lshr_b32 s68, s7, 1"); a(f"s_add_u32 s{sH}, s6, s68"); a(f"s_and_b32 s{sSub}, s7, 1")
        a(f"v_lshrrev_b32 v{tmp}, 3, v1"); a(f"v_and_b32 v{tmp+1}, 7, v1")
        a(f"v_lshrrev_b32 v{tmp+2}, 4, v1"); a(f"v_and_b32 v{tmp+3}, 15, v1")
        a(f"v_lshlrev_b32 v{tmp+1}, 4, v{tmp+1}"); a(f"v_lshlrev_b32 v{tmp+3}, 4, v{tmp+3}")
        a("s_mov_b32 s68, 81920"); a(f"v_mad_u32_u24 v{vWQ}, v{tmp}, s68, v{tmp+1}")
        a(f"v_lshl_add_u32 v{vUK}, v{tmp+2}, 16, v{tmp+3}")
        a(f"v_lshl_add_u32 v{vUV}, v{tmp}, 16, v{tmp+1}")
        a("s_mov_b32 s68, 20480"); a(f"v_mad_u32_u24 v{vWO}, v{tmp+2}, s68, v{tmp+3}")
        a(f"s_mul_i32 s68, s{sW}, 160"); a(f"v_mul_u32_u24 v{vX}, 20, v{tmp}"); a(f"v_add_u32 v{vX}, s68, v{vX}")
        a(f"s_lshl_b32 s69, s{sH}, 8"); a(f"s_lshl_b32 s70, s{sSub}, 7"); a("s_add_u32 s70, s70, s69")
        a(f"s_mul_i32 s72, s{sW}, {80*8192}"); a("s_add_u32 s72, s72, s70")
        a(f"s_lshl_b32 s73, s{sSub}, 3"); a(f"s_add_u32 s73, s73, s{sW}"); a("s_lshl_b32 s73, s73, 18"); a("s_add_u32 s73, s73, s69")
        a(f"s_lshl_b32 s74, s{sW}, 19"); a("s_add_u32 s74, s74, s70")
        a("s_waitcnt lgkmcnt(0)")
        self.srd(SRD1, pWQA, 640 * 8192)
        a(f"global_load_dwordx4 {V(X)}, v{vX}, s[{pAX}:{pAX+1}]")
        a(f"global_load_dword v{X+4}, v{vX}, s[{pAX}:{pAX+1}] offset:16")
        for i in range(10):
            if i: a("s_add_u32 s72, s72, 8192")
            a(f"buffer_load_dwordx4 {V(WQ+4*i)}, v{vWQ}, {S(SRD1)}, s72 offen {self.nt}")
        self.srd(SRD2, pWUK, 512 * 8192)
        a("s_barrier")
        for i in range(8):
            if i: a("s_add_u32 s73, s73, 8192")
            a(f"buffer_load_dwordx4 {V(UK+4*i)}, v{vUK}, {S(SRD2)}, s73 offen {self.nt}")
        self.common2()
        self.srd(SRD3, pWUV, 512 * 8192); self.srd(SRD4, pWOA, 4096 * 1280)
        self.masks(M0, 1, tmp, tmp + 1)
        a(f"v_and_b32 v{tmp}, 7, v1"); a(f"v_bfe_u32 v{tmp+1}, v1, 4, 1"); a(f"v_lshl_add_u32 v{tmp}, v{tmp}, 1, v{tmp+1}")
        a(f"v_lshrrev_b32 v{tmp+1}, 5, v1"); a(f"v_lshl_add_u32 v{tmp}, v{tmp+1}, 4, v{tmp}")
        a(f"v_lshlrev_b32 v{tmp}, 4, v{tmp}"); a(f"s_lshl_b32 s68, s{sW}, 9"); a(f"v_add_u32 v{vLD}, s68, v{tmp}")
        a("s_waitcnt vmcnt(8)")
        self.stamp(1)
        for i in range(10):
            a(f"v_perm_b32 v{WO+i}, v{X+(i>>1)}, v{X+(i>>1)}, s{sHi if i & 1 else sLo}")
        self.rowacc(DD, AB, M0, 10, lambda i: (WO + i, None), lambda i: WQ + 4 * i)
        a("s_mov_b32 exec_lo, 0x00ff00ff"); a("s_mov_b32 exec_hi, 0xff00ff00")
        a(f"ds_write_b128 v{vLD}, {V(DD)}")
        self.exec_full()
        self.tag(vTag)
        a("s_barrier")
        a(f"v_and_b32 v{tmp}, 15, v1"); a(f"v_lshlrev_b32 v{tmp}, 4, v{tmp}")
        a(f"s_lshl_b32 s68, s{sH}, 9"); a(f"s_add_u32 s76, s68, {WS_QA}"); a(f"s_lshl_b32 s68, s{sSub}, 8"); a("s_add_u32 s68, s68, s76")
        L = self.lab("p1"); a(f"s_cmp_eq_u32 s{sW}, 0"); a(f"s_cbranch_scc0 {L}")
        for k in range(16): a(f"ds_read_b128 {V(WO+4*k)}, v{tmp} offset:{256*k}")
        a("s_waitcnt lgkmcnt(0)")
        self.tree_add(WO, 16)
        self.pack(WO, vTag)
        a("s_mov_b32 exec_hi, 0"); a("s_mov_b32 exec_lo, 0xffff")
        a(f"buffer_store_dwordx4 {V(WO)}, v{tmp}, {WS}, s68 offen sc1")
        self.exec_full()
        a(f"{L}:")
        self.stamp(2)
        a(f"v_lshlrev_b32 v{tmp+1}, 1, v{tmp}")
        def gather_q():
            a(f"buffer_load_dwordx4 {V(G)}, v{tmp+1}, {WS}, s76 offen sc1")
            a(f"buffer_load_dwordx4 {V(G+4)}, v{tmp+1}, {WS}, s76 offen offset:16 sc1")
        a("s_waitcnt vmcnt(4)")
        gather_q()
        for i in range(8):
            if i: a("s_add_u32 s74, s74, 8192")
            a(f"buffer_load_dwordx4 {V(UV+4*i)}, v{vUV}, {S(SRD3)}, s74 offen {self.nt}")
        self.poll_loop(gather_q, [G + 3, G + 7], first_issued=True, first_wait="s_waitcnt vmcnt(8)", name="pq")
        self.unpack(G); self.unpack(G + 4)
        for t in range(4): a(f"v_cvt_pk_bf16_f32 v{QF+t}, v{G+2*t}, v{G+2*t+1}")
        self.stamp(3)
        for r in range(4):
            for i in range(8):
                if r == 0: a(f"v_dot2_f32_bf16 v{T+i}, v{UK+4*i}, v{QF}, 0")
                else: a(f"v_dot2c_f32_bf16 v{T+i}, v{UK+4*i+r}, v{QF+r}")
        for k in range(4): a(f"v_add_f32_dpp v{U+k}, v{T+k}, v{T+k} row_ror:8 row_mask:0xf bank_mask:0x3")
        for k in range(4): a(f"v_add_f32_dpp v{U+k}, v{T+k+4}, v{T+k+4} row_ror:8 row_mask:0xf bank_mask:0xc")
        for k in range(4): a(f"v_add_f32_dpp v{U+k}, v{U+k}, v{U+k} row_half_mirror row_mask:0xf bank_mask:0xf")
        for k in range(4): a(f"v_add_f32_dpp v{U+k}, v{U+k}, v{U+k} quad_perm:[2,3,0,1] row_mask:0xf bank_mask:0xf")
        for k in range(4): a(f"v_add_f32_dpp v{U+k}, v{U+k}, v{U+k} quad_perm:[1,0,3,2] row_mask:0xf bank_mask:0xf")
        a(f"v_lshrrev_b32 v{tmp}, 3, v1"); a(f"v_lshlrev_b32 v{tmp}, 4, v{tmp}")
        a(f"s_lshl_b32 s68, s{sH}, 11"); a(f"s_lshl_b32 s69, s{sSub}, 10"); a("s_add_u32 s68, s68, s69")
        a(f"s_lshl_b32 s69, s{sW}, 7"); a("s_add_u32 s68, s68, s69"); a(f"s_add_u32 s68, s68, {WS_QABS}")
        self.pack(U, vTag)
        a("s_mov_b32 exec_lo, 0x01010101"); a("s_mov_b32 exec_hi, 0x01010101")
        a(f"buffer_store_dwordx4 {V(U)}, v{tmp}, {WS}, s68 offen sc1")
        self.exec_full()
        self.stamp(4)
        a(f"s_lshl_b32 s68, s{sH}, 1"); a(f"s_add_u32 s77, s68, s{sSub}")
        a(f"s_mul_i32 s75, s77, {64*1280}"); a(f"s_lshl_b32 s68, s{sW}, 8"); a("s_add_u32 s75, s75, s68")
        L = self.lab("p2"); a(f"s_cmp_lt_u32 s{sW}, 5"); a(f"s_cbranch_scc0 {L}")
        for i in range(16):
            if i and i % 4 == 0: a("s_add_u32 s75, s75, 5120")
            o = 1280 * (i % 4)
            a(f"buffer_load_dwordx4 {V(WO+4*i)}, v{vWO}, {S(SRD4)}, s75 offen offset:{o} {self.nt}")
        a(f"{L}:")
        ML, CT = 80, 48
        a(f"v_bfe_u32 v{tmp}, v1, 2, 2"); a(f"v_and_b32 v{tmp+1}, 3, v1")
        a(f"v_lshlrev_b32 v{tmp+2}, 7, v{tmp}"); a(f"v_lshl_add_u32 v{tmp+2}, v{tmp+1}, 5, v{tmp+2}")
        a(f"v_lshrrev_b32 v{tmp+3}, 4, v1"); a(f"v_lshl_add_u32 v{tmp+3}, v{tmp+3}, 2, v{tmp+1}")
        a(f"v_lshlrev_b32 v{tmp+3}, 4, v{tmp+3}"); a(f"v_lshl_add_u32 v{tmp+3}, v{tmp}, 14, v{tmp+3}")
        a(f"s_lshl_b32 s76, s{sH}, 9"); a(f"s_add_u32 s76, s76, {WS_ML}")
        a(f"s_lshl_b32 s78, s{sH}, 16"); a(f"s_lshl_b32 s68, s{sW}, 8"); a("s_add_u32 s78, s78, s68"); a(f"s_add_u32 s78, s78, {WS_CTX}")
        def gather_ml():
            a(f"buffer_load_dwordx4 {V(ML)}, v{tmp+2}, {WS}, s76 offen sc1")
            a(f"buffer_load_dwordx4 {V(ML+4)}, v{tmp+2}, {WS}, s76 offen offset:16 sc1")
        self.poll_loop(gather_ml, [ML + 3, ML + 7], sleep=4, name="pml")
        self.stamp(5)
        def gather_ctx():
            for i in range(8):
                a(f"s_add_u32 s79, s78, {4096*(i>>1)}") if i % 2 == 0 else None
                a(f"buffer_load_dwordx4 {V(CT+4*i)}, v{tmp+3}, {WS}, s79 offen offset:{2048*(i&1)} sc1")
        gather_ctx()
        vM, wA, wB, vL = T, T + 1, T + 2, T + 3
        a(f"v_max_f32 v{vM}, v{ML}, v{ML+4}")
        self.row_allreduce([vM], "v_max_f32")
        a(f"v_sub_f32 v{wA}, v{ML}, v{vM}"); a(f"v_sub_f32 v{wB}, v{ML+4}, v{vM}")
        a(f"v_exp_f32 v{wA}, v{wA}"); a(f"v_exp_f32 v{wB}, v{wB}")
        a(f"v_mul_f32 v{vL}, v{wA}, v{ML+1}"); a(f"v_fmac_f32 v{vL}, v{wB}, v{ML+5}")
        self.row_allreduce([vL], "v_add_f32")
        a(f"v_rcp_f32 v{vL}, v{vL}")
        a(f"v_mul_f32 v{wA}, v{wA}, v{vL}"); a(f"v_mul_f32 v{wB}, v{wB}, v{vL}")
        self.poll_loop(gather_ctx, [CT + 4 * i + 3 for i in range(8)], first_issued=True, first_wait="s_waitcnt vmcnt(0)", name="pctx")
        self.stamp(6)
        AC = U
        for i in range(8): self.unpack(CT + 4 * i)
        for i in range(8):
            q = i >> 1
            for v in range(4):
                op = "v_mul_f32_dpp" if i == 0 else "v_fmac_f32_dpp"
                a(f"{op} v{AC+v}, v{wB if i & 1 else wA}, v{CT+4*i+v} quad_perm:[{q},{q},{q},{q}] row_mask:0xf bank_mask:0xf")
        self.row_allreduce([AC + v for v in range(4)], "v_add_f32", steps=(4, 8))
        for v in range(4): a(f"v_cvt_pk_bf16_f32 v{AC+v}, v{AC+v}, v{AC+v}")
        for v in range(4): a(f"v_mov_b32_dpp v{AC+v}, v{AC+v} quad_perm:[2,3,0,1] row_mask:0xf bank_mask:0xc")
        self.rowacc(DD, AB, M0, 8, lambda i: (AC + (i & 3), "quad_perm:[%d,%d,%d,%d]" % ((i >> 2,) * 4)), lambda i: UV + 4 * i)
        a("s_mov_b32 exec_lo, 0x00ff00ff"); a("s_mov_b32 exec_hi, 0xff00ff00")
        a(f"ds_write_b128 v{vLD}, {V(DD)} offset:4096")
        self.exec_full()
        a("s_waitcnt lgkmcnt(0)")
        a("s_barrier")
        Lf = self.lab("pfa")
        a(f"s_cmp_lt_u32 s{sW}, 5"); a(f"s_cbranch_scc0 {Lf}")
        a(f"v_lshrrev_b32 v{tmp}, 4, v1"); a(f"v_and_b32 v{tmp+1}, 3, v1"); a(f"v_lshl_add_u32 v{tmp}, v{tmp}, 2, v{tmp+1}")
        a(f"v_lshlrev_b32 v{tmp}, 4, v{tmp}"); a(f"v_bfe_u32 v{tmp+1}, v1, 2, 2"); a(f"v_lshl_add_u32 v{tmp}, v{tmp+1}, 10, v{tmp}")
        for k in range(4): a(f"ds_read_b128 {V(CT+4*k)}, v{tmp} offset:{4096+256*k}")
        a("s_waitcnt lgkmcnt(0)")
        self.tree_add(CT, 4)
        self.row_allreduce([CT + v for v in range(4)], "v_add_f32", steps=(4, 8))
        for v in range(4): a(f"v_cvt_pk_bf16_f32 v{CT+v}, v{CT+v}, v{CT+v}")
        a(f"v_and_b32 v{tmp}, 15, v1"); a(f"v_bfe_u32 v{tmp+1}, v1, 4, 1"); a(f"v_lshl_add_u32 v{tmp}, v{tmp}, 1, v{tmp+1}"); a(f"v_lshlrev_b32 v{tmp}, 4, v{tmp}")
        a(f"s_mul_i32 s68, s77, 2560"); a(f"s_lshl_b32 s69, s{sW}, 9"); a("s_add_u32 s68, s68, s69"); a(f"s_add_u32 s68, s68, {WS_YA}")
        self.rowacc(DD, AB, M0, 16, lambda i: (CT + (i & 3), "quad_perm:[%d,%d,%d,%d]" % ((i >> 2,) * 4)), lambda i: WO + 4 * i)
        self.pack(DD, vTag)
        self.exec_lo32()
        a(f"buffer_store_dwordx4 {V(DD)}, v{tmp}, {WS}, s68 offen sc1")
        self.exec_full()
        self.stamp(7)
        Le = self.lab("pend")
        a(f"s_lshl_b32 s79, s77, 1"); a(f"s_add_u32 s79, s79, s{sW}")
        a(f"s_cmp_lt_u32 s{sW}, 2"); a(f"s_cbranch_scc0 {Le}")
        a("s_cmp_lt_u32 s79, 80"); a(f"s_cbranch_scc0 {Le}")
        a(f"v_mov_b32 v{tmp}, 0")
        a("s_and_b32 s68, s79, 31"); a("s_lshl_b32 s68, s68, 7"); a(f"s_add_u32 s76, s68, {WS_MLB}")
        def gather_ind(): a(f"buffer_load_dwordx4 {V(G)}, v{tmp}, {WS}, s76 offen sc1")
        self.poll_loop(gather_ind, [G + 3], sleep=8, name="pind")
        a(f"v_and_b32 v{tmp}, 31, v1"); a("s_movk_i32 s68, 2560"); a(f"v_mul_u32_u24 v{tmp}, s68, v{tmp}")
        a(f"v_lshrrev_b32 v{tmp+1}, 5, v1"); a(f"v_lshl_add_u32 v{tmp}, v{tmp+1}, 4, v{tmp}")
        a(f"s_lshl_b32 s76, s79, 5"); a(f"s_add_u32 s76, s76, {WS_YB}")
        a(f"v_lshlrev_b32 v{tmp+1}, 3, v{tmp+1}"); a("s_lshl_b32 s78, s79, 4"); a("s_add_u32 s78, s78, 1280")
        def gather_yb(): a(f"buffer_load_dwordx4 {V(G)}, v{tmp}, {WS}, s76 offen sc1")
        self.poll_loop(gather_yb, [G + 3], sleep=0, name="pyb")
        self.unpack(G)
        regs = [G + v for v in range(4)]
        self.row_allreduce(regs, "v_add_f32")
        for r in regs: a(f"v_add_f32_dpp v{r}, v{r}, v{r} row_bcast:15 row_mask:0xa bank_mask:0xf")
        a(f"v_cvt_pk_bf16_f32 v{G}, v{G}, v{G+1}"); a(f"v_cvt_pk_bf16_f32 v{G+1}, v{G+2}, v{G+3}")
        a("s_mov_b32 exec_lo, 0x80000000"); a("s_mov_b32 exec_hi, 0x80000000")
        a(f"buffer_store_dwordx2 {V(G,2)}, v{tmp+1}, {OUT}, s78 offen")
        self.exec_full()
        a("s_cmp_eq_u32 s79, 0"); a(f"s_cbranch_scc0 {Le}")
        a(f"s_add_u32 s68, s{sEpoch}, 1"); a(f"v_mov_b32 v{tmp}, s68"); a(f"v_mov_b32 v{tmp+1}, 0")
        a("s_mov_b64 exec, 1")
        a(f"buffer_store_dword v{tmp}, v{tmp+1}, {WS}, 0 offen")
        self.exec_full()
        a(f"s_branch {Le}")
        a(f"{Lf}:")
        a("s_mul_i32 s79, s77, 3"); a(f"s_add_u32 s79, s79, s{sW}"); a("s_sub_u32 s79, s79, 5")
        a("s_movk_i32 s68, 2560"); a(f"v_mul_u32_u24 v{tmp}, s68, v1")
        a(f"s_lshl_b32 s76, s79, 4"); a(f"s_add_u32 s76, s76, {WS_YA}")
        a(f"v_mov_b32 v{tmp+1}, 0"); a("s_lshl_b32 s78, s79, 3")
        a("s_cmp_lt_u32 s79, 160"); a(f"s_cbranch_scc0 {Le}")
        def gather_ya(): a(f"buffer_load_dwordx4 {V(G)}, v{tmp}, {WS}, s76 offen sc1")
        self.poll_loop(gather_ya, [G + 3], sleep=2, name="pya")
        self.unpack(G)
        self.row_allreduce(regs, "v_add_f32")
        for r in regs: a(f"v_add_f32_dpp v{r}, v{r}, v{r} row_bcast:15 row_mask:0xa bank_mask:0xf")
        for r in regs: a(f"v_add_f32_dpp v{r}, v{r}, v{r} row_bcast:31 row_mask:0xc bank_mask:0xf")
        a(f"v_cvt_pk_bf16_f32 v{G}, v{G}, v{G+1}"); a(f"v_cvt_pk_bf16_f32 v{G+1}, v{G+2}, v{G+3}")
        a("s_mov_b32 exec_lo, 0"); a("s_mov_b32 exec_hi, 0x80000000")
        a(f"buffer_store_dwordx2 {V(G,2)}, v{tmp+1}, {OUT}, s78 offen")
        self.exec_full()
        a(f"{Le}:")
        self.finish("PR")

    def role_Q(self):
        a = self.a; V = self.V; S = self.S
        vL16, M0, Z, DS, AB, G, vTag = 2, 4, 8, 16, 24, 32, 3
        SA, PA = 64, 192
        tmp = 12
        t2 = 24
        a("; ---------------- role Q ----------------")
        a(f"s_sub_u32 s7, s7, 8"); a(f"s_add_u32 s{sH}, s6, s7")
        a(f"v_lshlrev_b32 v{vL16}, 4, v1")
        a(f"s_lshl_b32 s72, s{sH}, 17"); a(f"s_lshl_b32 s68, s{sW}, 14"); a("s_add_u32 s72, s72, s68")
        a(f"s_lshl_b32 s73, s{sW}, 14")
        a("s_waitcnt lgkmcnt(0)")
        self.srd(SRD1, pCKV, 4096 * 1024)
        for r in range(16):
            f = (r & 8) | ((r & 3) << 1)
            a(f"v_xor_b32 v{tmp + (r & 1)}, {16*f}, v{vL16}")
            a(f"s_add_u32 m0, s73, {1024*r}")
            if r % 4 == 0 and r: a("s_add_u32 s72, s72, 4096")
            a(f"buffer_load_dwordx4 v{tmp + (r & 1)}, {S(SRD1)}, s72 offen offset:{1024*(r%4)} nt lds") if False else None
            a(f"s_add_u32 s74, s72, {1024*(r%4)}")
            a(f"buffer_load_dwordx4 v{tmp + (r & 1)}, {S(SRD1)}, s74 offen {self.nt} lds")
        self.common2()
        self.srd(SRD2, pWOB, 4096 * 1280)
        self.masks(M0, 1, tmp, tmp + 1)
        a(f"v_and_b32 v{tmp}, 3, v1"); a(f"v_lshlrev_b32 v{tmp}, 1, v{tmp}"); a(f"v_and_b32 v{tmp+1}, 8, v1"); a(f"v_or_b32 v{tmp}, v{tmp}, v{tmp+1}")
        a(f"v_lshrrev_b32 v{tmp+1}, 4, v1"); a(f"v_xor_b32 v{tmp}, v{tmp}, v{tmp+1}"); a(f"v_lshlrev_b32 v{tmp}, 4, v{tmp}")
        for m in range(4): a(f"v_xor_b32 v{Z+m}, {64*m}, v{tmp}")
        a(f"v_and_b32 v{tmp+2}, 15, v1")
        a(f"s_and_b32 s68, s{sW}, 3"); a("s_lshl_b32 s68, s68, 15"); a(f"v_lshl_add_u32 v{tmp+3}, v{tmp+2}, 10, s68")
        for m in range(4): a(f"v_add_u32 v{t2+m}, v{tmp+3}, v{Z+m}")
        a(f"v_bfe_u32 v{tmp}, v1, 2, 2")
        a(f"v_bfe_u32 v{tmp+1}, v1, 4, 1"); a(f"v_lshlrev_b32 v{tmp+1}, 3, v{tmp+1}"); a(f"v_lshl_or_b32 v{tmp+1}, v{tmp}, 1, v{tmp+1}")
        a(f"v_bfe_u32 v{tmp+3}, v1, 1, 1"); a(f"v_xor_b32 v{tmp+1}, v{tmp+1}, v{tmp+3}")
        a(f"s_and_b32 s68, s{sW}, 1"); a("s_lshl_b32 s68, s68, 3"); a(f"v_xor_b32 v{tmp+1}, s68, v{tmp+1}")
        a(f"v_lshrrev_b32 v{tmp+3}, 4, v1"); a(f"v_lshl_add_u32 v{tmp}, v{tmp+3}, 3, v{tmp}")
        a(f"v_lshlrev_b32 v{tmp}, 10, v{tmp}"); a(f"v_and_b32 v{tmp+3}, 1, v1"); a(f"v_lshl_add_u32 v{tmp}, v{tmp+3}, 3, v{tmp}")
        a(f"s_lshr_b32 s68, s{sW}, 1"); a("s_lshl_b32 s68, s68, 8"); a(f"v_add_u32 v{tmp}, s68, v{tmp}")
        for ct in range(4):
            a(f"v_xor_b32 v{t2+4+ct}, {2*ct}, v{tmp+1}"); a(f"v_lshl_add_u32 v{t2+4+ct}, v{t2+4+ct}, 4, v{tmp}")
        a("s_waitcnt vmcnt(0)")
        self.tag(vTag)
        a("s_barrier")
        self.stamp(1)
        for kt in range(2):
            for ks in range(16):
                a(f"ds_read_b128 {V(SA+64*kt+4*ks)}, v{t2+(ks&3)} offset:{256*(ks>>2)+16384*kt}")
            a("s_waitcnt lgkmcnt(8)")
        for half in range(2):
            for ct in range(4):
                for kk in range(2):
                    for hh in range(2):
                        r = PA + 16 * ct + 4 * (2 * half + kk) + 2 * hh
                        a(f"ds_read_b64_tr_b16 {V(r,2)}, v{t2+4+ct} offset:{(32*kk+4*hh)*1024}")
                a("s_waitcnt lgkmcnt(8)")
            if half == 0:
                for ct in range(4): a(f"v_add_u32 v{t2+4+ct}, 0x10000, v{t2+4+ct}")
        a("s_waitcnt lgkmcnt(0)")
        a("s_barrier")
        self.stamp(2)
        a(f"s_lshl_b32 s76, s{sW}, 13"); a(f"s_add_u32 s76, s76, {WS_QABS}"); a("s_add_u32 s77, s76, 4096")
        a(f"v_mov_b32 v{tmp}, 0")
        def gather_ind(): a(f"buffer_load_dwordx4 {V(G)}, v{tmp}, {WS}, s76 offen sc1")
        self.poll_loop(gather_ind, [G + 3], sleep=2, name="qind")
        def gather_qabs():
            for i in range(8):
                a(f"buffer_load_dwordx4 {V(G+4*i)}, v{vL16}, {WS}, s{76 if i < 4 else 77} offen offset:{1024*(i&3)} sc1")
        self.poll_loop(gather_qabs, [G + 4 * i + 3 for i in range(8)], sleep=0, name="qabs")
        self.stamp(3)
        a(f"s_bfe_u32 s68, s{sW}, 0x10001"); a("s_lshl_b32 s68, s68, 7"); a(f"v_lshlrev_b32 v{tmp}, 3, v1"); a(f"v_xor_b32 v{tmp}, s68, v{tmp}")
        a(f"s_lshl_b32 s68, s{sW}, 12")
        for ii in range(4):
            a(f"v_xor_b32 v{t2+ii}, {32*ii}, v{tmp}"); a(f"v_add_u32 v{t2+ii}, s68, v{t2+ii}")
        for i in range(8):
            r = G + 4 * i
            self.unpack(r)
            a(f"v_cvt_pk_bf16_f32 v{r}, v{r}, v{r+1}"); a(f"v_cvt_pk_bf16_f32 v{r+1}, v{r+2}, v{r+3}")
            a(f"ds_write_b64 v{t2+(i>>1)}, {V(r,2)} offset:{1024*(i>>1)+512*(i&1)}")
        a(f"s_lshr_b32 s68, s{sW}, 2"); a("s_lshl_b32 s68, s68, 14"); a(f"v_lshl_add_u32 v{tmp+3}, v{tmp+2}, 10, s68")
        for m in range(4): a(f"v_add_u32 v{t2+4+m}, v{tmp+3}, v{Z+m}")
        a("s_waitcnt lgkmcnt(0)")
        a("s_barrier")
        for ks in range(8): a(f"ds_read_b128 {V(G+4*ks)}, v{t2+4+(ks&3)} offset:{256*(ks>>2)}")
        for ks in range(16):
            a(f"s_waitcnt lgkmcnt({min(7, 15-ks)})")
            for kt in range(2):
                a(f"v_mfma_f32_16x16x32_bf16 {V(DS+4*kt)}, {V(SA+64*kt+4*ks)}, {V(G+4*(ks&7))}, {'0' if ks == 0 else V(DS+4*kt)}")
            if ks < 8:
                k2 = ks + 8
                a(f"ds_read_b128 {V(G+4*ks)}, v{t2+4+(k2&3)} offset:{256*(k2>>2)}")
        vM = tmp; SM, SS, PO = 32768, 33280, 36864
        a(f"v_max3_f32 v{vM}, v{DS}, v{DS+1}, v{DS+2}"); a(f"v_max3_f32 v{vM}, v{vM}, v{DS+3}, v{DS+4}")
        a(f"v_max3_f32 v{vM}, v{vM}, v{DS+5}, v{DS+6}"); a(f"v_max_f32 v{vM}, v{vM}, v{DS+7}")
        def allrows(r, op, t):
            a(f"v_mov_b32 v{t}, v{r}"); a(f"v_permlane16_swap_b32 v{r}, v{t}"); a(f"{op} v{r}, v{r}, v{t}")
            a(f"v_mov_b32 v{t}, v{r}"); a(f"v_permlane32_swap_b32 v{r}, v{t}"); a(f"{op} v{r}, v{r}, v{t}")
        allrows(vM, "v_max_f32", tmp + 1)
        a(f"s_lshr_b32 s68, s{sW}, 2"); a("s_lshl_b32 s68, s68, 8"); a(f"v_lshl_add_u32 v{t2}, v{tmp+2}, 4, s68")
        a(f"s_and_b32 s69, s{sW}, 3"); a("s_lshl_b32 s69, s69, 2"); a(f"v_add_u32 v{t2+1}, s69, v{t2}")
        a("s_mov_b32 exec_hi, 0"); a("s_mov_b32 exec_lo, 0xffff")
        a(f"ds_write_b32 v{t2+1}, v{vM} offset:{SM}")
        self.exec_full()
        a("s_waitcnt lgkmcnt(0)")
        a("s_barrier")
        a(f"ds_read_b128 {V(G)}, v{t2} offset:{SM}")
        a(f"v_and_b32 v{t2+2}, 3, v1"); a(f"v_lshlrev_b32 v{t2+2}, 1, v{t2+2}"); a(f"v_and_b32 v{t2+3}, 8, v1"); a(f"v_or_b32 v{t2+2}, v{t2+2}, v{t2+3}")
        a(f"v_lshrrev_b32 v{t2+3}, 5, v1"); a(f"v_xor_b32 v{t2+2}, v{t2+2}, v{t2+3}")
        a(f"s_and_b32 s69, s{sW}, 3"); a("s_lshl_b32 s69, s69, 2"); a(f"v_xor_b32 v{t2+2}, s69, v{t2+2}")
        a(f"v_bfe_u32 v{t2+3}, v1, 4, 1"); a(f"v_lshlrev_b32 v{t2+3}, 3, v{t2+3}")
        a(f"v_lshl_add_u32 v{t2+3}, v{tmp+2}, 8, v{t2+3}"); a("s_lshl_b32 s68, s68, 4"); a(f"v_add_u32 v{t2+3}, s68, v{t2+3}")
        a(f"v_lshl_add_u32 v{t2+4}, v{t2+2}, 4, v{t2+3}")
        a(f"v_xor_b32 v{t2+2}, 2, v{t2+2}"); a(f"v_lshl_add_u32 v{t2+5}, v{t2+2}, 4, v{t2+3}")
        a("s_waitcnt lgkmcnt(0)")
        a(f"v_max3_f32 v{vM}, v{G}, v{G+1}, v{G+2}"); a(f"v_max_f32 v{vM}, v{vM}, v{G+3}")
        a(f"v_mul_f32 v{vM}, s{sC1}, v{vM}")
        for k in range(8): a(f"v_fma_f32 v{DS+k}, v{DS+k}, s{sC1}, -v{vM}")
        for k in range(8): a(f"v_exp_f32 v{DS+k}, v{DS+k}")
        vS = tmp + 3
        a(f"v_add_f32 v{vS}, v{DS}, v{DS+1}")
        for k in range(2, 8): a(f"v_add_f32 v{vS}, v{vS}, v{DS+k}")
        for kt in range(2):
            a(f"v_cvt_pk_bf16_f32 v{DS+4*kt}, v{DS+4*kt}, v{DS+4*kt+1}"); a(f"v_cvt_pk_bf16_f32 v{DS+4*kt+1}, v{DS+4*kt+2}, v{DS+4*kt+3}")
            a(f"ds_write_b64 v{t2+4+kt}, {V(DS+4*kt,2)} offset:{PO}")
        allrows(vS, "v_add_f32", tmp + 1)
        a("s_mov_b32 exec_hi, 0"); a("s_mov_b32 exec_lo, 0xffff")
        a(f"ds_write_b32 v{t2+1}, v{vS} offset:{SS}")
        self.exec_full()
        a("s_waitcnt lgkmcnt(0)")
        a("s_barrier")
        self.stamp(4)
        a(f"v_lshlrev_b32 v{tmp+3}, 8, v{tmp+2}")
        for kk in range(4): a(f"v_add_u32 v{t2+kk}, v{tmp+3}, v{Z+kk}")
        for ht in range(2):
            for kk in range(4): a(f"ds_read_b128 {V(G+16*ht+4*kk)}, v{t2+kk} offset:{PO+4096*ht}")
        PD = SA
        for ht in range(2):
            a(f"s_waitcnt lgkmcnt({4 if ht == 0 else 0})")
            for kk in range(4):
                for ct in range(4):
                    d = PD + 16 * ht + 4 * ct
                    a(f"v_mfma_f32_16x16x32_bf16 {V(d)}, {V(PA+16*ct+4*kk)}, {V(G+16*ht+4*kk)}, {'0' if kk == 0 else V(d)}")
        a(f"v_lshrrev_b32 v{tmp+3}, 4, v1"); a(f"v_lshlrev_b32 v{tmp+3}, 4, v{tmp+3}"); a(f"v_lshl_add_u32 v{tmp+3}, v{tmp+2}, 16, v{tmp+3}")
        a(f"s_lshl_b32 s76, s{sH}, 11"); a(f"s_lshl_b32 s68, s{sW}, 8"); a("s_add_u32 s76, s76, s68"); a(f"s_add_u32 s76, s76, {WS_CTX}"); a("s_add_u32 s77, s76, 0x100000")
        for ht in range(2):
            for ct in range(4):
                d = PD + 16 * ht + 4 * ct
                self.pack(d, vTag)
                a(f"buffer_store_dwordx4 {V(d)}, v{tmp+3}, {WS}, s{76+ht} offen offset:{64*ct} sc1")
        a("s_barrier")
        L = self.lab("q1"); a(f"s_cmp_eq_u32 s{sW}, 0"); a(f"s_cbranch_scc0 {L}")
        a(f"v_and_b32 v{tmp}, 31, v1"); a(f"v_lshlrev_b32 v{tmp+1}, 4, v{tmp}")
        a(f"ds_read_b128 {V(G)}, v{tmp+1} offset:{SM}"); a(f"ds_read_b128 {V(G+4)}, v{tmp+1} offset:{SS}")
        a(f"v_lshlrev_b32 v{tmp}, 9, v{tmp}"); a(f"s_lshl_b32 s68, s{sH}, 4"); a(f"s_add_u32 s68, s68, {WS_ML}")
        a("s_waitcnt lgkmcnt(0)")
        a(f"v_max3_f32 v{G}, v{G}, v{G+1}, v{G+2}"); a(f"v_max_f32 v{G}, v{G}, v{G+3}"); a(f"v_mul_f32 v{G}, s{sC1}, v{G}")
        a(f"v_pk_add_f32 {V(G+4,2)}, {V(G+4,2)}, {V(G+6,2)}"); a(f"v_add_f32 v{G+1}, v{G+4}, v{G+5}")
        a(f"v_mov_b32 v{G+2}, 0"); a(f"v_mov_b32 v{G+3}, v{vTag}")
        self.exec_lo32()
        a(f"buffer_store_dwordx4 {V(G)}, v{tmp}, {WS}, s68 offen sc1")
        self.exec_full()
        a(f"{L}:")
        self.stamp(5)
        WO, EG, YD = 96, 176, 216
        a(f"v_lshrrev_b32 v{tmp}, 4, v1"); a("s_movk_i32 s68, 5120"); a(f"v_mul_u32_u24 v{tmp}, s68, v{tmp}"); a(f"v_lshl_add_u32 v{tmp}, v{tmp+2}, 4, v{tmp}")
        a(f"s_lshl_b32 s68, s{sH}, 3"); a(f"s_add_u32 s68, s68, s{sW}"); a(f"s_mul_i32 s72, s68, {16*1280}")
        for rg in range(4):
            if rg: a("s_add_u32 s72, s72, 1280")
            for cb in range(5):
                a(f"buffer_load_dwordx4 {V(WO+4*(5*rg+cb))}, v{tmp}, {S(SRD2)}, s72 offen offset:{256*cb} {self.nt}")
        a(f"v_lshrrev_b32 v{tmp}, 4, v1"); a(f"v_lshlrev_b32 v{tmp}, 4, v{tmp}"); a(f"v_mov_b32 v{tmp+1}, 0")
        a(f"s_mul_i32 s76, s{sH}, 2560"); a(f"s_lshl_b32 s68, s{sW}, 6"); a("s_add_u32 s76, s76, s68"); a(f"s_add_u32 s76, s76, {WS_OB}")
        a(f"s_lshl_b32 s77, s{sH}, 7"); a(f"s_add_u32 s77, s77, {WS_MLB}")
        def gather_ob():
            for s in range(5): a(f"buffer_load_dwordx4 {V(EG+4*s)}, v{tmp}, {WS}, s76 offen offset:{512*s} sc1")
            for s in range(5): a(f"buffer_load_dwordx4 {V(EG+20+4*s)}, v{tmp+1}, {WS}, s77 offen offset:{16*s} sc1")
        self.poll_loop(gather_ob, [EG + 4 * s + 3 for s in range(10)], sleep=2, name="qob")
        self.stamp(6)
        ME = EG + 20
        vMx = t2; vL = t2 + 1
        a(f"v_max3_f32 v{vMx}, v{ME}, v{ME+4}, v{ME+8}"); a(f"v_max3_f32 v{vMx}, v{vMx}, v{ME+12}, v{ME+16}")
        for s in range(5): a(f"v_sub_f32 v{ME+4*s}, v{ME+4*s}, v{vMx}")
        for s in range(5): a(f"v_exp_f32 v{ME+4*s}, v{ME+4*s}")
        for s in range(5): self.unpack(EG + 4 * s)
        a(f"v_mul_f32 v{vL}, v{ME}, v{ME+1}")
        for s in range(1, 5): a(f"v_fmac_f32 v{vL}, v{ME+4*s}, v{ME+4*s+1}")
        a(f"v_rcp_f32 v{vL}, v{vL}")
        O = G
        for v in range(4): a(f"v_mul_f32 v{O+v}, v{ME}, v{EG+v}")
        for s in range(1, 5):
            for v in range(4): a(f"v_fmac_f32 v{O+v}, v{ME+4*s}, v{EG+4*s+v}")
        for v in range(4): a(f"v_mul_f32 v{O+v}, v{vL}, v{O+v}")
        for v in range(4): a(f"v_cvt_pk_bf16_f32 v{O+v}, v{O+v}, v{O+v}")
        def ands(rg):
            ab = AB + 4 * (rg & 1)
            for t in range(4): a(f"v_and_b32 v{ab+t}, v{O+rg}, v{M0+t}")
        ands(0)
        for rg in range(4):
            if rg + 1 < 4: ands(rg + 1)
            ab = AB + 4 * (rg & 1)
            for cb in range(5):
                a(f"v_mfma_f32_16x16x32_bf16 {V(YD+4*cb)}, {V(ab)}, {V(WO+4*(5*rg+cb))}, {'0' if rg == 0 else V(YD+4*cb)}")
        YO = 45056
        a(f"v_and_b32 v{tmp}, 15, v1"); a(f"v_bfe_u32 v{tmp+1}, v1, 4, 1"); a(f"v_lshl_add_u32 v{tmp}, v{tmp}, 1, v{tmp+1}"); a(f"v_lshlrev_b32 v{tmp}, 4, v{tmp}")
        a(f"s_mul_i32 s68, s{sW}, 2560"); a(f"v_add_u32 v{tmp}, s68, v{tmp}")
        self.exec_lo32()
        for cb in range(5): a(f"ds_write_b128 v{tmp}, {V(YD+4*cb)} offset:{YO+512*cb}")
        self.exec_full()
        a("s_waitcnt lgkmcnt(0)")
        a("s_barrier")
        Le = self.lab("qend")
        a(f"v_lshlrev_b32 v{tmp}, 4, v0")
        a(f"s_cmp_lt_u32 s{sW}, 3"); a(f"s_cbranch_scc0 {Le}")
        for k in range(8): a(f"ds_read_b128 {V(G+4*k)}, v{tmp} offset:{YO+2560*k}")
        a(f"s_mul_i32 s68, s{sH}, 2560"); a(f"s_add_u32 s68, s68, {WS_YB}")
        a("v_cmp_gt_u32 vcc, 160, v0")
        a("s_waitcnt lgkmcnt(0)")
        self.tree_add(G, 8)
        self.pack(G, vTag)
        a("s_and_b64 exec, exec, vcc")
        a(f"buffer_store_dwordx4 {V(G)}, v{tmp}, {WS}, s68 offen sc1")
        self.exec_full()
        a(f"{Le}:")
        self.stamp(7)
        self.finish("Q")

    def build(self):
        a = self.a
        self.prologue()
        if "B" in self.roles: self.role_B()
        else: a("s_endpgm")
        a("L_PR:"); self.role_PR()
        a("L_Q:"); self.role_Q()
        a("L_end:"); a("s_endpgm")
        head = [
            "; concat_heads__compressed_kv_cla__mha_block_cached__decode: one persistent launch, 256 workgroups of 8 waves",
            "; @launch grid=(256,1,1) block=(512,1,1) lds=131072",
            '.amdgcn_target "amdgcn-amd-amdhsa--gfx950"', ".text", f".globl {KN}", ".p2align 8", f".type {KN},@function", f"{KN}:"]
        tail = ['.section .rodata,"a"', ".p2align 6", f".amdhsa_kernel {KN}",
            "  .amdhsa_next_free_vgpr 256", "  .amdhsa_next_free_sgpr 102", "  .amdhsa_accum_offset 256",
            "  .amdhsa_group_segment_fixed_size 0", "  .amdhsa_kernarg_size 112", "  .amdhsa_user_sgpr_count 2",
            "  .amdhsa_user_sgpr_kernarg_segment_ptr 1", "  .amdhsa_system_sgpr_workgroup_id_x 1",
            "  .amdhsa_float_denorm_mode_32 3", ".end_amdhsa_kernel"]
        return "\n".join(head) + "\n" + a.text() + "\n".join(tail) + "\n"

if __name__ == "__main__":
    import argparse
    ap = argparse.ArgumentParser()
    ap.add_argument("-o", default="k.s"); ap.add_argument("--prof", action="store_true")
    ap.add_argument("--nt", default="nt"); ap.add_argument("--dbgst", action="store_true"); ap.add_argument("--roles", default="BPQ"); ap.add_argument("-D", type=int, default=5); ap.add_argument("--spin", type=int, default=20000)
    args = ap.parse_args()
    g = Gen(prof=args.prof, D=args.D, spin=args.spin, roles=args.roles, nt=args.nt, dbgst=args.dbgst)
    open(args.o, "w").write(g.build())
    sys.path.insert(0, "exp"); import build
    print(build.build(args.o))
```

```python
import sys, struct
from asmlib import Asm

KN = "concat_heads__compressed_kv_cla__mha_block_cached__decode_kernel"

WS_QB   = 0x1000
WS_QA   = 0xA0000
WS_QABS = 0x20000
WS_ML   = 0x30000
WS_MLB  = 0x34000
WS_OB   = 0x38000
WS_YA   = 0x50000
WS_YB   = 0x78000
WS_PROF = 0xC0000
WS_CTX  = 0x100000
WS_SIZE = 0x300000

def f2u(x): return struct.unpack("<I", struct.pack("<f", x))[0]
C1 = 1.4426950408889634 / (128 ** 0.5)
NEG = -1.0e30

sW, sH, sSub = 3, 4, 5
WS = "s[8:11]"; OUT = "s[12:15]"
pAX, pCKV, pWQA, pWUK, pWUV, pWOA, pBX, pK, pV, pWQB, pWOB, pOUT, pDBG, pWS = 16, 18, 20, 22, 24, 26, 28, 30, 32, 34, 36, 38, 40, 42
SRD1, SRD2, SRD3, SRD4 = 44, 48, 52, 56
sEpoch, sTag = 60, 61
sP0, sP1, sP2, sU, sLo, sHi = 62, 63, 64, 65, 66, 67
sT = 68
sC1 = 80
sCnt = 81
sBias = 82
sProf = 84

class Gen:
    def __init__(self, prof=False, D=5, spin=20000, roles="BPQ", dbg=False, nt="nt", dbgst=False, D0=2, Ds=2, ns=8, Dv=5, pf=1, slp=2, nu=4, n1=12, lin="", bar=0):
        self.a = Asm(); self.prof = prof; self.D = D; self.spin = spin; self.roles = roles; self.dbg = dbg
        self.nlab = 0; self.nstamp = 0; self.nt = nt; self.pf = pf; self.slp = slp; self.nu = nu; self.n1 = n1; self.lin = lin; self.bar = bar; self.D0 = D0; self.Ds = Ds; self.ns = ns; self.Dv = Dv; self.dbgst = dbgst
    def lab(self, base):
        self.nlab += 1; return f"L_{base}_{self.nlab}"
    def stamp(self, k):
        if self.prof or self.dbgst: self.a(f"s_memrealtime s[{sProf+2*k}:{sProf+2*k+1}]")
    def srd(self, base, ptr, size):
        a = self.a
        a(f"s_mov_b32 s{base}, s{ptr}"); a(f"s_mov_b32 s{base+1}, s{ptr+1}")
        a(f"s_mov_b32 s{base+2}, {size}"); a(f"s_mov_b32 s{base+3}, 0x20000")
    @staticmethod
    def S(base): return f"s[{base}:{base+3}]"
    @staticmethod
    def V(r, n=4): return f"v[{r}:{r+n-1}]"
    def pack(self, r, vtag):
        a = self.a
        a(f"v_perm_b32 v{r}, v{r}, v{r+3}, s{sP0}")
        a(f"v_perm_b32 v{r+1}, v{r+1}, v{r+3}, s{sP1}")
        a(f"v_perm_b32 v{r+2}, v{r+2}, v{r+3}, s{sP2}")
        a(f"v_mov_b32 v{r+3}, v{vtag}")
    def unpack(self, r):
        a = self.a
        a(f"v_perm_b32 v{r+3}, v{r+1}, v{r}, s{sU}")
        a(f"v_lshl_or_b32 v{r+3}, v{r+2}, 24, v{r+3}")
    def check(self, regs, acc, val=None):
        a = self.a
        val = val or f"s{sTag}"
        for i, r in enumerate(regs):
            if i == 0: a(f"v_cmp_ne_u32 s[{acc}:{acc+1}], {val}, v{r}")
            else:
                a(f"v_cmp_ne_u32 vcc, {val}, v{r}")
                a(f"s_or_b64 s[{acc}:{acc+1}], s[{acc}:{acc+1}], vcc")
    def poll_loop(self, issue, regs, first_issued=False, first_wait=None, sleep=1, name="poll"):
        a = self.a
        L = self.lab(name); Lc = L + "_c"; Ld = L + "_d"
        a(f"s_mov_b32 s{sCnt}, 0")
        if first_issued:
            a(first_wait)
            a(f"s_branch {Lc}")
        a(f"{L}:")
        issue()
        a("s_waitcnt vmcnt(0)")
        if first_issued: a(f"{Lc}:")
        self.check(regs, 6)
        a("s_cmp_eq_u64 s[6:7], 0")
        a(f"s_cbranch_scc1 {Ld}")
        a(f"s_add_u32 s{sCnt}, s{sCnt}, 1")
        a(f"s_cmp_lt_u32 s{sCnt}, {self.spin}")
        a(f"s_cbranch_scc0 {Ld}")
        if sleep: a(f"s_sleep {sleep}")
        a(f"s_branch {L}")
        a(f"{Ld}:")
        if self.prof:
            a(f"s_min_u32 s{sCnt}, s{sCnt}, 255"); a("s_lshl_b32 s100, s100, 8"); a(f"s_or_b32 s100, s100, s{sCnt}")
    def lds_spin(self, reads, regs, name):
        a = self.a
        L = self.lab(name)
        a(f"s_mov_b32 s{sCnt}, 0")
        a(f"{L}:")
        reads()
        a("s_waitcnt lgkmcnt(0)")
        self.check(regs, 6, "1")
        a("s_cmp_eq_u64 s[6:7], 0"); a(f"s_cbranch_scc1 {L}_d")
        a(f"s_add_u32 s{sCnt}, s{sCnt}, 1"); a(f"s_cmp_lt_u32 s{sCnt}, {self.spin * 8}"); a(f"s_cbranch_scc1 {L}")
        a(f"{L}_d:")
    def masks(self, m0, vlane, t0, t1):
        a = self.a
        a(f"v_and_b32 v{t0}, 1, v{vlane}")
        a(f"v_lshlrev_b32 v{t0}, 4, v{t0}")
        a(f"v_mov_b32 v{t1}, 0xffff")
        a(f"v_lshlrev_b32 v{t0}, v{t0}, v{t1}")
        a(f"v_bfe_u32 v{t1}, v{vlane}, 1, 2")
        for t in range(4):
            a(f"v_cmp_eq_u32 vcc, {t}, v{t1}")
            a(f"v_cndmask_b32 v{m0+t}, 0, v{t0}, vcc")
    def code_prefetch(self, lab0, lab1, vt, vd, nload, wave=7):
        if not self.pf: return
        a = self.a
        L = self.lab("pf")
        a(f"s_cmp_eq_u32 s{sW}, {wave}"); a(f"s_cbranch_scc0 {L}")
        a("s_getpc_b64 s[70:71]")
        a(f"{L}_pc:")
        a(f"s_sub_u32 s70, s70, {L}_pc-{lab0}"); a("s_subb_u32 s71, s71, 0")
        for k in range(nload):
            a(f"v_lshlrev_b32 v{vt}, 7, v1")
            if k: a(f"v_add_u32 v{vt}, {8192*k}, v{vt}")
            a(f"v_min_u32 v{vt}, {lab1}-{lab0}-4, v{vt}")
            a(f"global_load_dword v{vd}, v{vt}, s[70:71]")
        a(f"{L}:")
    def exec_lo32(self): self.a("s_mov_b32 exec_hi, 0")
    def exec_full(self): self.a("s_mov_b64 exec, -1")

    def prologue(self):
        a = self.a
        a("s_cmp_ge_u32 s2, 256"); a("s_cbranch_scc1 L_end")
        a("s_load_dwordx4 s[40:43], s[0:1], 96")
        a("s_load_dwordx16 s[16:31], s[0:1], 0")
        a("s_load_dwordx8 s[32:39], s[0:1], 64")
        self.stamp(0)
        if self.prof: a("s_mov_b32 s100, 0")
        a("v_lshrrev_b32 v2, 6, v0")
        a("v_and_b32 v1, 63, v0")
        a(f"v_readfirstlane_b32 s{sW}, v2")
        a("s_and_b32 s6, s2, 7")
        a("s_lshr_b32 s7, s2, 3")
        a(f"s_mov_b32 s{sP0}, 0x07060501"); a(f"s_mov_b32 s{sP1}, 0x07060502"); a(f"s_mov_b32 s{sP2}, 0x07060503")
        a(f"s_mov_b32 s{sU}, 0x0c04000c"); a(f"s_mov_b32 s{sLo}, 0x01000100"); a(f"s_mov_b32 s{sHi}, 0x03020302")
        a(f"s_mov_b32 s{sC1}, {f2u(C1):#x}")
        a("s_lshl_b32 s6, s6, 2")
        a("s_cmp_lt_u32 s7, 8"); a("s_cbranch_scc1 L_PR")
        a("s_cmp_lt_u32 s7, 12"); a("s_cbranch_scc1 L_Q")
    def common2(self):
        a = self.a
        a(f"s_load_dword s{sEpoch}, s[{pWS}:{pWS+1}], 0")
        self.srd(8, pWS, WS_SIZE)
        self.srd(12, pOUT, 2560)
    def tag(self, vtag):
        a = self.a
        a("s_waitcnt lgkmcnt(0)")
        a(f"s_mul_i32 s{sTag}, s{sEpoch}, 0x9E3779B1")
        a(f"s_add_u32 s{sTag}, s{sTag}, 0x85EBCA6B")
        a(f"v_mov_b32 v{vtag}, s{sTag}")
    def finish(self, role=None):
        a = self.a
        if self.prof:
            a("s_waitcnt lgkmcnt(0)")
            a("s_mov_b64 exec, -1")
            a("v_mov_b32 v250, 0")
            for k in range(17):
                a(f"v_writelane_b32 v250, s{sProf+k}, {k}")
            a("v_and_b32 v251, 63, v0"); a("v_lshlrev_b32 v251, 2, v251")
            a(f"s_lshl_b32 s6, s2, 3"); a(f"s_add_u32 s6, s6, s{sW}"); a("s_lshl_b32 s6, s6, 7"); a(f"s_add_u32 s6, s6, {WS_PROF}")
            a("s_mov_b32 exec_hi, 0"); a("s_mov_b32 exec_lo, 0x1ffff")
            a(f"buffer_store_dword v250, v251, {WS}, s6 offen")
        if self.dbgst and role:
            wg, base, ks = {"PR": (0, 0, [1, 4, 5, 6, 7]), "B": (255, 5, [2, 4, 5, 7]), "Q": (64, 9, [1, 2, 3, 4, 5, 6, 7])}[role]
            Ls = self.lab("dbg")
            a("s_waitcnt lgkmcnt(0)")
            a(f"s_cmp_eq_u32 s{sW}, 0"); a(f"s_cbranch_scc0 {Ls}")
            a(f"s_cmp_eq_u32 s2, {wg}"); a(f"s_cbranch_scc0 {Ls}")
            a("s_mov_b64 exec, -1")
            a("v_mov_b32 v250, 0")
            for n, k in enumerate(ks):
                a(f"s_sub_u32 s7, s{sProf+2*k}, s{sProf}"); a(f"v_writelane_b32 v250, s7, {n}")
            a("v_and_b32 v251, 63, v0"); a("v_lshlrev_b32 v251, 2, v251"); a(f"v_add_u32 v251, {4*base}, v251")
            a("s_mov_b32 exec_hi, 0"); a(f"s_mov_b32 exec_lo, {(1 << len(ks)) - 1}")
            a(f"global_store_dword v251, v250, s[{pDBG}:{pDBG+1}]")
            a(f"{Ls}:")
        a("s_endpgm")

    def role_B(self):
        a = self.a; D = self.D; V = self.V; S = self.S
        vL16, vLast, M0, QF, DD, AB, T, T0, T1, U, vTag, vA, vB = 2, 3, 4, 8, 12, 16, 24, 28, 29, 30, 37, 38, 39
        KT, VT = 40, 144
        WA, WB, X, G = 144, 160, 176, 180
        DA = 24
        tmp = 248; vOne = vB
        NK = 26
        L_PB, L_Q, L_O, L_M, L_L, L_F, L_PA, L_Y = 0, 4096, 8192, 12288, 12416, 12544, 16384, 20480
        a("; ---------------- role B ----------------")
        a("L_B:")
        self.code_prefetch("L_B", "L_PR", 254, 255, 1)
        a("s_sub_u32 s7, s7, 12")
        a("s_mul_i32 s68, s7, 52"); a("s_lshr_b32 s68, s68, 8")
        a(f"s_add_u32 s{sH}, s6, s68")
        a("s_mul_i32 s68, s68, 5"); a(f"s_sub_u32 s{sSub}, s7, s68")
        a(f"v_lshlrev_b32 v{vL16}, 4, v1")
        a(f"v_lshrrev_b32 v{tmp}, 4, v1")
        a(f"v_and_b32 v{tmp+1}, 15, v1")
        a(f"v_lshlrev_b32 v{vB}, 15, v{tmp}"); a(f"v_lshl_add_u32 v{vB}, v{tmp+1}, 4, v{vB}")
        a(f"s_lshl_b32 s68, s{sSub}, 3"); a(f"s_add_u32 s68, s68, s{sW}")
        a("s_lshl_b32 s74, s68, 5"); a(f"v_lshl_add_u32 v{vA}, v{tmp}, 3, s74")
        a("s_lshl_b32 s73, s68, 17"); a(f"s_lshl_b32 s74, s{sH}, 8"); a("s_add_u32 s73, s73, s74")
        a("s_lshl_b32 s69, s68, 7"); a("s_mul_hi_u32 s70, s69, 0xCCCCCCCD"); a("s_lshr_b32 s70, s70, 2")
        a("s_add_u32 s69, s69, 128"); a("s_mul_hi_u32 s71, s69, 0xCCCCCCCD"); a("s_lshr_b32 s71, s71, 2")
        a("s_sub_u32 s71, s71, s70")
        a(f"s_lshl_b32 s72, s{sH}, 20"); a("s_lshl_b32 s70, s70, 10"); a("s_add_u32 s72, s72, s70")
        a("s_cmp_eq_u32 s71, 26")
        a(f"s_cselect_b32 s{sBias}, 0, {f2u(NEG):#x}")
        a(f"s_cselect_b32 s74, 0, 0x7f000000")
        a(f"v_or_b32 v{vLast}, s74, v{vL16}")
        a(f"v_mov_b32 v{tmp+2}, 0"); a(f"v_mov_b32 v{tmp+3}, 0")
        a(f"s_lshl_b32 s68, s{sW}, 3"); a(f"v_mov_b32 v{tmp+4}, s68"); a(f"s_lshl_b32 s68, s{sW}, 2"); a(f"v_mov_b32 v{tmp+5}, s68")
        a("s_mov_b64 exec, 1")
        a(f"ds_write_b64 v{tmp+4}, {V(tmp+2,2)} offset:{L_M}")
        a(f"ds_write_b32 v{tmp+5}, v{tmp+2} offset:{L_F}")
        a(f"ds_write_b32 v{tmp+2}, v{tmp+2} offset:{L_F+32}")
        self.exec_full()
        a("s_waitcnt lgkmcnt(0)")
        if "wq" in self.lin:
            a(f"v_lshlrev_b32 v{vB}, 4, v1"); a(f"s_mul_i32 s68, s{sH}, 5"); a(f"s_add_u32 s68, s68, s{sSub}"); a("s_lshl_b32 s68, s68, 3"); a(f"s_add_u32 s68, s68, s{sW}"); a("s_lshl_b32 s73, s68, 12")
        self.srd(SRD4, pWQB, 640 * 8192)
        a(f"global_load_dwordx2 {V(X+2,2)}, v{vA}, s[{pBX}:{pBX+1}]")
        for i in range(4):
            if i == 0: a("s_mov_b32 s69, s73")
            else: a(f"s_add_u32 s69, s69, {1024 if 'wq' in self.lin else 8192}")
            a(f"buffer_load_dwordx4 {V(WB+4*i)}, v{vB}, {S(SRD4)}, s69 offen {self.nt}")
        self.srd(SRD1, pK, 32 << 20); self.srd(SRD2, pV, 32 << 20)
        a("s_mov_b32 s75, s72")
        def kv_load(srd, base, i, soff):
            if i and i % 4 == 0: a(f"s_add_u32 s{soff}, s{soff}, 4096")
            voff = vLast if i == NK - 1 else vL16
            a(f"buffer_load_dwordx4 {V(base+4*i)}, v{voff}, {S(srd)}, s{soff} offen offset:{1024*(i%4)} {self.nt}")
        D0 = self.D0
        for i in range(D0): kv_load(SRD1, KT, i, 75)
        a(f"v_mov_b32 v{vOne}, 1")
        a("s_barrier")
        self.common2()
        self.masks(M0, 1, tmp, tmp + 1)
        a(f"v_and_b32 v{tmp}, 15, v1"); a(f"v_bfe_u32 v{tmp+1}, v1, 4, 1")
        a(f"v_lshl_add_u32 v{tmp}, v{tmp}, 1, v{tmp+1}"); a(f"v_lshlrev_b32 v{tmp}, 4, v{tmp}")
        a(f"s_lshl_b32 s68, s{sW}, 9"); a(f"v_add_u32 v{vA}, s68, v{tmp}")
        sels = [(0, sLo), (0, sHi), (1, sLo), (1, sHi)]
        a(f"s_waitcnt vmcnt({D0})")
        self.stamp(1)
        for i in range(4):
            xr, sel = sels[i]; xr += X + 2
            a(f"v_perm_b32 v{G+i}, v{xr}, v{xr}, s{sel}")
        self.rowacc(DD, AB, M0, 4, lambda i: (G + i, None), lambda i: WB + 4 * i)
        self.tag(vTag)
        self.exec_lo32()
        a(f"ds_write_b128 v{vA}, {V(DD)} offset:{L_PB}")
        a("s_mov_b32 exec_lo, 1")
        a(f"ds_write_b32 v{tmp+5}, v{vOne} offset:{L_F}")
        self.exec_full()
        L = self.lab("b1"); a(f"s_cmp_eq_u32 s{sW}, 0"); a(f"s_cbranch_scc0 {L}")
        a(f"v_mov_b32 v{tmp+4}, 0")
        def rd():
            a(f"ds_read_b128 {V(G+32)}, v{tmp+4} offset:{L_F}"); a(f"ds_read_b128 {V(G+36)}, v{tmp+4} offset:{L_F+16}")
        self.lds_spin(rd, [G + 32 + k for k in range(8)], "bf1")
        a(f"v_and_b32 v{tmp}, 31, v1"); a(f"v_lshlrev_b32 v{tmp}, 4, v{tmp}")
        for k in range(8): a(f"ds_read_b128 {V(G+4*k)}, v{tmp} offset:{L_PB+512*k}")
        a(f"s_mul_i32 s68, s{sH}, 5"); a(f"s_add_u32 s68, s68, s{sSub}"); a("s_lshl_b32 s68, s68, 9"); a(f"s_add_u32 s68, s68, {WS_QB}")
        a("s_waitcnt lgkmcnt(0)")
        self.tree_add(G, 8)
        self.pack(G, vTag)
        self.exec_lo32()
        a(f"buffer_store_dwordx4 {V(G)}, v{tmp}, {WS}, s68 offen sc1")
        self.exec_full()
        a(f"{L}:")
        n1 = self.n1; n2 = n1 + D + 1
        win = lambda i: self.Ds if i < self.ns else D
        def gather_q():
            for s in range(5):
                a(f"buffer_load_dwordx4 {V(G+4*s)}, v{tmp+3}, {WS}, s76 offen offset:{512*s} sc1")
        for i in range(D0, NK):
            if i >= win(i): a(f"s_waitcnt vmcnt({win(i)-1})")
            kv_load(SRD1, KT, i, 75)
            if i == n1:
                L = self.lab("b2")
                a(f"v_and_b32 v{tmp+3}, 31, v1"); a(f"v_lshlrev_b32 v{tmp+3}, 4, v{tmp+3}")
                a(f"s_mul_i32 s76, s{sH}, 2560"); a(f"s_add_u32 s76, s76, {WS_QB}")
                a(f"s_cmp_eq_u32 s{sW}, 1"); a(f"s_cbranch_scc0 {L}")
                gather_q()
                a(f"{L}:")
            if i == n2:
                L = self.lab("b3"); a(f"s_cmp_eq_u32 s{sW}, 1"); a(f"s_cbranch_scc0 {L}")
                self.poll_loop(gather_q, [G + 4 * s + 3 for s in range(5)], first_issued=True,
                               first_wait=f"s_waitcnt vmcnt({n2-n1})", name="bq")
                for s in range(5): self.unpack(G + 4 * s)
                self.tree_add(G, 5)
                a(f"v_cvt_pk_bf16_f32 v{G}, v{G}, v{G+1}")
                a(f"v_cvt_pk_bf16_f32 v{G+1}, v{G+2}, v{G+3}")
                a(f"v_lshrrev_b32 v{tmp+3}, 1, v{tmp+3}")
                self.exec_lo32()
                a(f"ds_write_b64 v{tmp+3}, {V(G,2)} offset:{L_Q}")
                a("s_mov_b32 exec_lo, 1")
                a(f"v_mov_b32 v{tmp+3}, 0")
                a(f"ds_write_b32 v{tmp+3}, v{vOne} offset:{L_F+32}")
                self.exec_full()
                a(f"{L}:")
        self.stamp(2)
        if self.bar & 1: a("s_barrier")
        a("s_mov_b32 s75, s72")
        def wait_q():
            a(f"v_and_b32 v{tmp}, 15, v1"); a(f"v_lshlrev_b32 v{tmp}, 4, v{tmp}"); a(f"v_mov_b32 v{tmp+4}, 0")
            def rd():
                a(f"ds_read_b32 v{tmp+2}, v{tmp+4} offset:{L_F+32}")
                a(f"ds_read_b128 {V(QF)}, v{tmp} offset:{L_Q}")
            self.lds_spin(rd, [tmp + 2], "bq2")
        def kgroup(k):
            n = min(4, NK - 4 * k)
            for r in range(4):
                for u in range(n):
                    kreg = KT + 4 * (4 * k + u) + r
                    if r == 0: a(f"v_dot2_f32_bf16 v{T+u}, v{kreg}, v{QF}, 0")
                    else: a(f"v_dot2c_f32_bf16 v{T+u}, v{kreg}, v{QF+r}")
            if n < 4:
                a(f"v_mov_b32 v{T0}, {f2u(NEG):#x}"); a(f"v_mov_b32 v{T1}, {f2u(NEG):#x}")
                a(f"v_add_f32 v{T+1}, s{sBias}, v{T+1}")
            a(f"v_add_f32_dpp v{T0}, v{T}, v{T} row_ror:8 row_mask:0xf bank_mask:0x3")
            a(f"v_add_f32_dpp v{T1}, v{T+1}, v{T+1} row_ror:8 row_mask:0xf bank_mask:0x3")
            if n == 4:
                a(f"v_add_f32_dpp v{T0}, v{T+2}, v{T+2} row_ror:8 row_mask:0xf bank_mask:0xc")
                a(f"v_add_f32_dpp v{T1}, v{T+3}, v{T+3} row_ror:8 row_mask:0xf bank_mask:0xc")
            a(f"v_add_f32_dpp v{U+k}, v{T0}, v{T0} row_half_mirror row_mask:0xf bank_mask:0x5")
            a(f"v_add_f32_dpp v{U+k}, v{T1}, v{T1} row_half_mirror row_mask:0xf bank_mask:0xa")
            a(f"v_add_f32_dpp v{U+k}, v{U+k}, v{U+k} quad_perm:[2,3,0,1] row_mask:0xf bank_mask:0xf")
            a(f"v_add_f32_dpp v{U+k}, v{U+k}, v{U+k} quad_perm:[1,0,3,2] row_mask:0xf bank_mask:0xf")
        def allreduce_rows(r, op, t):
            a(f"v_mov_b32 v{t}, v{r}"); a(f"v_permlane16_swap_b32 v{r}, v{t}"); a(f"{op} v{r}, v{r}, v{t}")
            a(f"v_mov_b32 v{t}, v{r}"); a(f"v_permlane32_swap_b32 v{r}, v{t}"); a(f"{op} v{r}, v{r}, v{t}")
        vM, vLs = tmp, tmp + 1
        def softmax():
            a(f"v_max3_f32 v{vM}, v{U}, v{U+1}, v{U+2}")
            a(f"v_max3_f32 v{vM}, v{vM}, v{U+3}, v{U+4}")
            a(f"v_max3_f32 v{vM}, v{vM}, v{U+5}, v{U+6}")
            a(f"v_max_f32_dpp v{vM}, v{vM}, v{vM} row_ror:4 row_mask:0xf bank_mask:0xf")
            a(f"v_max_f32_dpp v{vM}, v{vM}, v{vM} row_ror:8 row_mask:0xf bank_mask:0xf")
            allreduce_rows(vM, "v_max_f32", tmp + 2)
            a(f"v_mul_f32 v{vM}, s{sC1}, v{vM}")
            a(f"v_mov_b32 v{tmp+2}, v{vM}"); a(f"v_mov_b32 v{tmp+3}, 1")
            a(f"s_lshl_b32 s68, s{sW}, 3"); a(f"v_mov_b32 v{tmp+4}, s68")
            a("s_mov_b64 exec, 1")
            a(f"ds_write_b64 v{tmp+4}, {V(tmp+2,2)} offset:{L_M}")
            self.exec_full()
            for k in range(7):
                a(f"v_fma_f32 v{U+k}, v{U+k}, s{sC1}, -v{vM}")
            for k in range(7):
                a(f"v_exp_f32 v{U+k}, v{U+k}")
            a(f"v_add_f32 v{vLs}, v{U}, v{U+1}")
            for k in range(2, 7): a(f"v_add_f32 v{vLs}, v{vLs}, v{U+k}")
            for k in range(7): a(f"v_cvt_pk_bf16_f32 v{U+k}, v{U+k}, v{U+k}")
            a(f"v_add_f32_dpp v{vLs}, v{vLs}, v{vLs} row_ror:4 row_mask:0xf bank_mask:0xf")
            a(f"v_add_f32_dpp v{vLs}, v{vLs}, v{vLs} row_ror:8 row_mask:0xf bank_mask:0xf")
            allreduce_rows(vLs, "v_add_f32", tmp + 2)
        def pv_and(i):
            ab = AB + 4 * (i & 1)
            for t in range(4):
                a(f"v_and_b32_dpp v{ab+t}, v{U+(i>>2)}, v{M0+t} row_newbcast:{4*(i&3)} row_mask:0xf bank_mask:0xf")
        def pv_mfma(i):
            ab = AB + 4 * (i & 1)
            a(f"v_mfma_f32_16x16x32_bf16 {V(DD)}, {V(ab)}, {V(VT+4*i)}, {'0' if i == 0 else V(DD)}")
        pv = 0
        SM = 14
        D = self.Dv
        for i in range(NK):
            a(f"s_waitcnt vmcnt({D-1})")
            kv_load(SRD2, VT, i, 75)
            if i == 1: wait_q()
            if i == 13 and self.bar & 2: a("s_barrier")
            if i < SM and i % 2 == 1 and i // 2 < 7: kgroup(i // 2)
            if i == SM - 1:
                softmax(); pv_and(0)
            if i >= SM:
                lim = i - D
                for _ in range(2):
                    if pv <= lim:
                        pv_and(pv + 1); pv_mfma(pv); pv += 1
        self.stamp(3)
        WO = KT + 24
        a(f"v_lshrrev_b32 v{tmp+4}, 4, v1"); a("s_movk_i32 s68, 5120"); a(f"v_mul_u32_u24 v{tmp+4}, s68, v{tmp+4}")
        a(f"v_and_b32 v{tmp+5}, 15, v1"); a(f"v_lshl_add_u32 v{tmp+4}, v{tmp+5}, 4, v{tmp+4}")
        a(f"s_lshl_b32 s68, s{sH}, 3"); a(f"s_add_u32 s68, s68, s{sW}"); a(f"s_mul_i32 s69, s68, {16*1280}"); a(f"s_lshl_b32 s68, s{sSub}, 8"); a("s_add_u32 s69, s69, s68")
        self.srd(SRD3, pWOB, 4096 * 1280)
        for rg in range(4):
            a(f"buffer_load_dwordx4 {V(WO+4*rg)}, v{tmp+4}, {S(SRD3)}, s69 offen offset:{1280*rg} {self.nt}")
        a(f"v_mov_b32 v{tmp+4}, 0")
        R8 = KT
        def rdm():
            for k in range(4): a(f"ds_read_b128 {V(R8+4*k)}, v{tmp+4} offset:{L_M+16*k}")
        self.lds_spin(rdm, [R8 + 2 * k + 1 for k in range(8)], "bm")
        vMc = R8 + 16; vF = R8 + 17
        a(f"v_max3_f32 v{vMc}, v{R8}, v{R8+2}, v{R8+4}")
        a(f"v_max3_f32 v{vMc}, v{vMc}, v{R8+6}, v{R8+8}")
        a(f"v_max3_f32 v{vMc}, v{vMc}, v{R8+10}, v{R8+12}")
        a(f"v_max_f32 v{vMc}, v{vMc}, v{R8+14}")
        a(f"v_sub_f32 v{vF}, v{vM}, v{vMc}")
        a(f"v_exp_f32 v{vF}, v{vF}")
        a(f"v_mul_f32 v{vLs}, v{vLs}, v{vF}")
        vG = R8 + 18; vZ = R8 + 19
        a(f"v_lshrrev_b32 v{vG}, 4, v1"); a(f"v_lshlrev_b32 v{vG}, 4, v{vG}"); a(f"v_mov_b32 v{vZ}, 0")
        a(f"s_mul_i32 s76, s{sH}, 2560"); a(f"s_add_u32 s78, s76, {WS_OB}"); a(f"s_lshl_b32 s68, s{sW}, 6"); a("s_add_u32 s76, s78, s68")
        a(f"s_lshl_b32 s77, s{sH}, 7"); a(f"s_add_u32 s77, s77, {WS_MLB}")
        while pv < NK:
            a(f"s_waitcnt vmcnt({NK-1-pv+4})")
            if pv + 1 < NK: pv_and(pv + 1)
            pv_mfma(pv); pv += 1
        self.stamp(4)
        for v in range(4): a(f"v_mul_f32 v{DD+v}, v{vF}, v{DD+v}")
        self.exec_lo32()
        a(f"ds_write_b128 v{vA}, {V(DD)} offset:{L_O}")
        a("s_mov_b32 exec_lo, 1")
        a(f"ds_write_b32 v{tmp+5}, v{vLs} offset:{L_L}") if False else None
        a(f"s_lshl_b32 s68, s{sW}, 2"); a(f"v_mov_b32 v{tmp+4}, s68")
        a(f"ds_write_b32 v{tmp+4}, v{vLs} offset:{L_L}")
        self.exec_full()
        a("s_waitcnt lgkmcnt(0)")
        a("s_barrier")
        L = self.lab("b4"); a(f"s_cmp_eq_u32 s{sW}, 0"); a(f"s_cbranch_scc0 {L}")
        a(f"v_and_b32 v{tmp}, 31, v1"); a(f"v_lshlrev_b32 v{tmp}, 4, v{tmp}")
        G2 = VT
        for k in range(8): a(f"ds_read_b128 {V(G2+4*k)}, v{tmp} offset:{L_O+512*k}")
        a(f"v_mov_b32 v{tmp+4}, 0")
        a(f"ds_read_b128 {V(G2+32)}, v{tmp+4} offset:{L_L}")
        a(f"ds_read_b128 {V(G2+36)}, v{tmp+4} offset:{L_L+16}")
        a(f"s_lshl_b32 s68, s{sSub}, 9"); a("s_add_u32 s68, s68, s78")
        a(f"s_lshl_b32 s69, s{sSub}, 4"); a("s_add_u32 s69, s69, s77")
        a("s_waitcnt lgkmcnt(2)")
        self.tree_add(G2, 8)
        self.pack(G2, vTag)
        self.exec_lo32()
        a(f"buffer_store_dwordx4 {V(G2)}, v{tmp}, {WS}, s68 offen sc1")
        a("s_waitcnt lgkmcnt(0)")
        ML = G2 + 40
        a(f"v_pk_add_f32 {V(G2+32,2)}, {V(G2+32,2)}, {V(G2+34,2)}")
        a(f"v_pk_add_f32 {V(G2+36,2)}, {V(G2+36,2)}, {V(G2+38,2)}")
        a(f"v_pk_add_f32 {V(G2+32,2)}, {V(G2+32,2)}, {V(G2+36,2)}")
        a(f"v_mov_b32 v{ML}, v{vMc}")
        a(f"v_add_f32 v{ML+1}, v{G2+32}, v{G2+33}")
        a(f"v_mov_b32 v{ML+2}, 0"); a(f"v_mov_b32 v{ML+3}, v{vTag}")
        a("s_mov_b32 exec_lo, 1")
        a(f"buffer_store_dwordx4 {V(ML)}, v{vZ}, {WS}, s69 offen sc1")
        self.exec_full()
        a(f"{L}:")
        self.stamp(5)
        EG = VT + 48
        def gather_ob():
            for s in range(5): a(f"buffer_load_dwordx4 {V(EG+4*s)}, v{vG}, {WS}, s76 offen offset:{512*s} sc1")
            for s in range(5): a(f"buffer_load_dwordx4 {V(EG+20+4*s)}, v{vZ}, {WS}, s77 offen offset:{16*s} sc1")
        self.poll_loop(gather_ob, [EG + 4 * s + 3 for s in range(10)], sleep=0, name="bob")
        self.stamp(6)
        ME = EG + 20
        vMx = T; vL = T + 1; O = U
        a(f"v_max3_f32 v{vMx}, v{ME}, v{ME+4}, v{ME+8}"); a(f"v_max3_f32 v{vMx}, v{vMx}, v{ME+12}, v{ME+16}")
        for s in range(5): a(f"v_sub_f32 v{ME+4*s}, v{ME+4*s}, v{vMx}")
        for s in range(5): a(f"v_exp_f32 v{ME+4*s}, v{ME+4*s}")
        for s in range(5): self.unpack(EG + 4 * s)
        a(f"v_mul_f32 v{vL}, v{ME}, v{ME+1}")
        for s in range(1, 5): a(f"v_fmac_f32 v{vL}, v{ME+4*s}, v{ME+4*s+1}")
        for v in range(4): a(f"v_mul_f32 v{O+v}, v{ME}, v{EG+v}")
        a(f"v_rcp_f32 v{vL}, v{vL}")
        for s in range(1, 5):
            for v in range(4): a(f"v_fmac_f32 v{O+v}, v{ME+4*s}, v{EG+4*s+v}")
        for v in range(4): a(f"v_mul_f32 v{O+v}, v{vL}, v{O+v}")
        for v in range(4): a(f"v_cvt_pk_bf16_f32 v{O+v}, v{O+v}, v{O+v}")
        self.rowacc(DD, AB, M0, 4, lambda i: (O + i, None), lambda i: WO + 4 * i)
        self.exec_lo32()
        a(f"ds_write_b128 v{vA}, {V(DD)} offset:{L_Y}")
        self.exec_full()
        a("s_waitcnt lgkmcnt(0)")
        a("s_barrier")
        L = self.lab("b5"); a(f"s_cmp_eq_u32 s{sW}, 0"); a(f"s_cbranch_scc0 {L}")
        a(f"v_and_b32 v{tmp}, 31, v1"); a(f"v_lshlrev_b32 v{tmp}, 4, v{tmp}")
        for k in range(8): a(f"ds_read_b128 {V(G2+4*k)}, v{tmp} offset:{L_Y+512*k}")
        a(f"s_mul_i32 s68, s{sH}, 2560"); a(f"s_lshl_b32 s69, s{sSub}, 9"); a("s_add_u32 s68, s68, s69"); a(f"s_add_u32 s68, s68, {WS_YB}")
        a("s_waitcnt lgkmcnt(0)")
        self.tree_add(G2, 8)
        self.pack(G2, vTag)
        self.exec_lo32()
        a(f"buffer_store_dwordx4 {V(G2)}, v{tmp}, {WS}, s68 offen sc1")
        self.exec_full()
        a(f"{L}:")
        self.stamp(7)
        self.finish("B")

    def tree_add(self, base, n):
        a = self.a; V = self.V
        step = 1
        while step < n:
            for k in range(0, n, 2 * step):
                if k + step < n:
                    for hh in (0, 2):
                        a(f"v_pk_add_f32 {V(base+4*k+hh,2)}, {V(base+4*k+hh,2)}, {V(base+4*(k+step)+hh,2)}")
            step *= 2

    def row_allreduce(self, regs, op, steps=(8, 4, 2, 1)):
        a = self.a
        for st in steps:
            for r in regs: a(f"{op}_dpp v{r}, v{r}, v{r} row_ror:{st} row_mask:0xf bank_mask:0xf")
    def rowacc(self, DD, AB, M0, n, coef, tile, first_zero=True):
        a = self.a; V = self.V
        def ands(i):
            src, mod = coef(i); ab = AB + 4 * (i & 1)
            for t in range(4):
                if mod: a(f"v_and_b32_dpp v{ab+t}, v{src}, v{M0+t} {mod} row_mask:0xf bank_mask:0xf")
                else: a(f"v_and_b32 v{ab+t}, v{src}, v{M0+t}")
        ands(0)
        for i in range(n):
            if i + 1 < n: ands(i + 1)
            ab = AB + 4 * (i & 1)
            a(f"v_mfma_f32_16x16x32_bf16 {V(DD)}, {V(ab)}, {V(tile(i))}, {'0' if (i == 0 and first_zero) else V(DD)}")

    def role_PR(self):
        a = self.a; V = self.V; S = self.S
        vWQ, vUK, M0, QF, DD, AB, T, U, vTag = 2, 3, 4, 8, 12, 16, 24, 32, 36
        vUV, vWO, vLD, vX, tmp = 37, 38, 39, 36, 40
        WQ, X, UK, UV, WO, G = 48, 88, 96, 128, 160, 224
        WB = 64
        self.code_prefetch("L_PR", "L_Q", 254, 255, 1)
        a(f"s_lshr_b32 s68, s7, 1"); a(f"s_add_u32 s{sH}, s6, s68"); a(f"s_and_b32 s{sSub}, s7, 1")
        a(f"v_lshrrev_b32 v{tmp}, 3, v1"); a(f"v_and_b32 v{tmp+1}, 7, v1")
        a(f"v_lshrrev_b32 v{tmp+2}, 4, v1"); a(f"v_and_b32 v{tmp+3}, 15, v1")
        a(f"v_lshlrev_b32 v{tmp+1}, 4, v{tmp+1}"); a(f"v_lshlrev_b32 v{tmp+3}, 4, v{tmp+3}")
        a("s_mov_b32 s68, 81920"); a(f"v_mad_u32_u24 v{vWQ}, v{tmp}, s68, v{tmp+1}")
        a(f"v_lshl_add_u32 v{vUK}, v{tmp+2}, 16, v{tmp+3}")
        a(f"v_lshl_add_u32 v{vUV}, v{tmp}, 16, v{tmp+1}")
        a("s_mov_b32 s68, 20480"); a(f"v_mad_u32_u24 v{vWO}, v{tmp+2}, s68, v{tmp+3}")
        a("s_mul_i32 s68, s7, 160"); a(f"v_mul_u32_u24 v{vX}, 20, v{tmp}"); a(f"v_add_u32 v{vX}, s68, v{vX}")
        a(f"s_mul_i32 s72, s7, {80*8192}"); a("s_lshl_b32 s69, s6, 8"); a("s_add_u32 s72, s72, s69"); a(f"s_lshl_b32 s70, s{sW}, 7"); a("s_add_u32 s72, s72, s70")
        a(f"s_lshr_b32 s70, s{sW}, 2"); a("s_lshl_b32 s71, s7, 1"); a("s_add_u32 s70, s70, s71")
        a("s_lshl_b32 s73, s70, 18"); a("s_add_u32 s73, s73, s69"); a(f"s_and_b32 s71, s{sW}, 3"); a("s_lshl_b32 s71, s71, 8"); a("s_add_u32 s73, s73, s71")
        a(f"s_lshl_b32 s69, s{sH}, 8"); a(f"s_lshl_b32 s71, s{sSub}, 7"); a("s_add_u32 s71, s71, s69")
        a(f"s_lshl_b32 s74, s{sW}, 19"); a("s_add_u32 s74, s74, s71")
        a("s_waitcnt lgkmcnt(0)")
        self.srd(SRD1, pWQA, 640 * 8192)
        a(f"global_load_dwordx4 {V(X)}, v{vX}, s[{pAX}:{pAX+1}]")
        a(f"global_load_dword v{X+4}, v{vX}, s[{pAX}:{pAX+1}] offset:16")
        for i in range(10):
            if i: a("s_add_u32 s72, s72, 8192")
            a(f"buffer_load_dwordx4 {V(WQ+4*i)}, v{vWQ}, {S(SRD1)}, s72 offen {self.nt}")
        self.srd(SRD2, pWUK, 512 * 8192)
        a("s_barrier")
        def uk_load(i):
            if i: a("s_add_u32 s73, s73, 8192")
            a(f"buffer_load_dwordx4 {V(UK+4*i)}, v{vUK}, {S(SRD2)}, s73 offen {self.nt}")
        NU = self.nu
        for i in range(NU): uk_load(i)
        self.common2()
        self.srd(SRD3, pWUV, 512 * 8192); self.srd(SRD4, pWOA, 4096 * 1280)
        self.masks(M0, 1, tmp, tmp + 1)
        a(f"v_and_b32 v{tmp}, 7, v1"); a(f"v_bfe_u32 v{tmp+1}, v1, 4, 1"); a(f"v_lshl_add_u32 v{tmp}, v{tmp}, 1, v{tmp+1}")
        a(f"v_lshlrev_b32 v{tmp+2}, 4, v{tmp}")
        a(f"v_lshrrev_b32 v{tmp+1}, 5, v1"); a(f"v_lshl_add_u32 v{tmp}, v{tmp+1}, 4, v{tmp}")
        a(f"v_lshlrev_b32 v{tmp}, 4, v{tmp}"); a(f"s_lshl_b32 s68, s{sW}, 9"); a(f"v_add_u32 v{vLD}, s68, v{tmp}")
        a(f"s_lshr_b32 s68, s{sW}, 1"); a("s_add_u32 s68, s68, s6"); a("s_lshl_b32 s68, s68, 3"); a("s_add_u32 s68, s68, s7"); a("s_lshl_b32 s68, s68, 9")
        a(f"s_and_b32 s69, s{sW}, 1"); a("s_lshl_b32 s69, s69, 8"); a("s_add_u32 s68, s68, s69"); a(f"s_add_u32 s78, s68, {WS_QA}")
        a(f"s_and_b32 s68, s{sW}, 3"); a("s_add_u32 s79, s68, s6"); a("s_lshl_b32 s76, s79, 12"); a(f"s_add_u32 s76, s76, {WS_QA}")
        a(f"s_waitcnt vmcnt({NU})")
        self.stamp(1)
        for i in range(10):
            a(f"v_perm_b32 v{WO+i}, v{X+(i>>1)}, v{X+(i>>1)}, s{sHi if i & 1 else sLo}")
        self.rowacc(DD, AB, M0, 10, lambda i: (WO + i, None), lambda i: WQ + 4 * i)
        self.tag(vTag)
        for v in range(4): a(f"v_mov_b32 v{T+v}, v{DD+v}")
        for v in range(4): a(f"v_permlane32_swap_b32 v{DD+v}, v{T+v}")
        for v in range(4): a(f"v_add_f32_dpp v{DD+v}, v{T+v}, v{DD+v} row_shl:8 row_mask:0xf bank_mask:0x3")
        self.pack(DD, vTag)
        a("s_mov_b32 exec_lo, 0x00ff00ff"); a("s_mov_b32 exec_hi, 0")
        a(f"buffer_store_dwordx4 {V(DD)}, v{tmp+2}, {WS}, s78 offen sc1")
        self.exec_full()
        self.stamp(2)
        for i in range(NU, 8): uk_load(i)
        a(f"v_and_b32 v{tmp}, 31, v1"); a(f"v_lshlrev_b32 v{tmp}, 4, v{tmp}")
        a(f"v_lshrrev_b32 v{tmp+1}, 5, v1"); a(f"v_lshl_add_u32 v{tmp+1}, v{tmp+1}, 9, v{tmp}")
        GQ = 224
        def gather_q():
            for i in range(4): a(f"buffer_load_dwordx4 {V(GQ+4*i)}, v{tmp+1}, {WS}, s76 offen offset:{1024*i} sc1")
        a("s_waitcnt vmcnt(2)")
        self.poll_loop(gather_q, [GQ + 4 * i + 3 for i in range(4)], sleep=0, name="pq")
        for i in range(4): self.unpack(GQ + 4 * i)
        self.tree_add(GQ, 4)
        for v in range(4): a(f"v_mov_b32 v{T+v}, v{GQ+v}")
        for v in range(4): a(f"v_permlane32_swap_b32 v{GQ+v}, v{T+v}")
        for v in range(4): a(f"v_add_f32 v{GQ+v}, v{GQ+v}, v{T+v}")
        a(f"v_cvt_pk_bf16_f32 v{GQ}, v{GQ}, v{GQ+1}"); a(f"v_cvt_pk_bf16_f32 v{GQ+1}, v{GQ+2}, v{GQ+3}")
        a(f"s_lshl_b32 s68, s{sW}, 8"); a(f"v_lshrrev_b32 v{tmp}, 1, v{tmp}"); a(f"v_add_u32 v{tmp}, s68, v{tmp}")
        self.exec_lo32()
        a(f"ds_write_b64 v{tmp}, {V(GQ,2)} offset:8192")
        self.exec_full()
        a(f"v_and_b32 v{tmp}, 15, v1"); a(f"v_lshlrev_b32 v{tmp}, 4, v{tmp}"); a(f"v_add_u32 v{tmp}, s68, v{tmp}")
        a("s_waitcnt lgkmcnt(0)")
        a(f"ds_read_b128 {V(QF)}, v{tmp} offset:8192")
        a("s_waitcnt lgkmcnt(0)")
        self.stamp(3)
        for r in range(4):
            for i in range(8):
                if r == 0: a(f"v_dot2_f32_bf16 v{T+i}, v{UK+4*i}, v{QF}, 0")
                else: a(f"v_dot2c_f32_bf16 v{T+i}, v{UK+4*i+r}, v{QF+r}")
        for k in range(4): a(f"v_add_f32_dpp v{U+k}, v{T+k}, v{T+k} row_ror:8 row_mask:0xf bank_mask:0x3")
        for k in range(4): a(f"v_add_f32_dpp v{U+k}, v{T+k+4}, v{T+k+4} row_ror:8 row_mask:0xf bank_mask:0xc")
        for k in range(4): a(f"v_add_f32_dpp v{U+k}, v{U+k}, v{U+k} row_half_mirror row_mask:0xf bank_mask:0xf")
        for k in range(4): a(f"v_add_f32_dpp v{U+k}, v{U+k}, v{U+k} quad_perm:[2,3,0,1] row_mask:0xf bank_mask:0xf")
        for k in range(4): a(f"v_add_f32_dpp v{U+k}, v{U+k}, v{U+k} quad_perm:[1,0,3,2] row_mask:0xf bank_mask:0xf")
        a(f"v_lshrrev_b32 v{tmp}, 3, v1"); a(f"v_lshlrev_b32 v{tmp}, 4, v{tmp}")
        a("s_lshl_b32 s68, s79, 11"); a("s_lshl_b32 s69, s70, 7"); a("s_add_u32 s68, s68, s69"); a(f"s_add_u32 s68, s68, {WS_QABS}")
        self.pack(U, vTag)
        a("s_mov_b32 exec_lo, 0x01010101"); a("s_mov_b32 exec_hi, 0x01010101")
        a(f"buffer_store_dwordx4 {V(U)}, v{tmp}, {WS}, s68 offen sc1")
        self.exec_full()
        self.stamp(4)
        a("s_barrier")
        for i in range(8):
            if i: a(f"s_add_u32 s74, s74, {1024 if 'uv' in self.lin else 8192}")
            a(f"buffer_load_dwordx4 {V(UV+4*i)}, v{vUV}, {S(SRD3)}, s74 offen {self.nt}")
        a(f"s_lshl_b32 s68, s{sH}, 1"); a(f"s_add_u32 s77, s68, s{sSub}")
        a(f"s_mul_i32 s75, s77, {64*1280}"); a(f"s_lshl_b32 s68, s{sW}, 8"); a("s_add_u32 s75, s75, s68")
        L = self.lab("p2"); a(f"s_cmp_lt_u32 s{sW}, 5"); a(f"s_cbranch_scc0 {L}")
        for i in range(16):
            if i and i % 4 == 0: a("s_add_u32 s75, s75, 5120")
            o = 1280 * (i % 4)
            a(f"buffer_load_dwordx4 {V(WO+4*i)}, v{vWO}, {S(SRD4)}, s75 offen offset:{o} {self.nt}")
        a(f"{L}:")
        ML, CT = 48, 224
        a(f"v_bfe_u32 v{tmp}, v1, 2, 2"); a(f"v_and_b32 v{tmp+1}, 3, v1")
        a(f"v_lshlrev_b32 v{tmp+2}, 7, v{tmp}"); a(f"v_lshl_add_u32 v{tmp+2}, v{tmp+1}, 5, v{tmp+2}")
        a(f"v_lshrrev_b32 v{tmp+3}, 4, v1"); a(f"v_lshl_add_u32 v{tmp+3}, v{tmp+3}, 2, v{tmp+1}")
        a(f"v_lshlrev_b32 v{tmp+3}, 4, v{tmp+3}"); a(f"v_lshl_add_u32 v{tmp+3}, v{tmp}, 14, v{tmp+3}")
        a(f"s_lshl_b32 s76, s{sH}, 9"); a(f"s_add_u32 s76, s76, {WS_ML}")
        a(f"s_lshl_b32 s78, s{sH}, 16"); a(f"s_lshl_b32 s68, s{sW}, 8"); a("s_add_u32 s78, s78, s68"); a(f"s_add_u32 s78, s78, {WS_CTX}")
        def gather_ml():
            a(f"buffer_load_dwordx4 {V(ML)}, v{tmp+2}, {WS}, s76 offen sc1")
            a(f"buffer_load_dwordx4 {V(ML+4)}, v{tmp+2}, {WS}, s76 offen offset:16 sc1")
        self.poll_loop(gather_ml, [ML + 3, ML + 7], sleep=4, name="pml")
        self.stamp(5)
        def gather_ctx():
            for i in range(8):
                a(f"s_add_u32 s79, s78, {4096*(i>>1)}") if i % 2 == 0 else None
                a(f"buffer_load_dwordx4 {V(CT+4*i)}, v{tmp+3}, {WS}, s79 offen offset:{2048*(i&1)} sc1")
        gather_ctx()
        vM, wA, wB, vL = T, T + 1, T + 2, T + 3
        a(f"v_max_f32 v{vM}, v{ML}, v{ML+4}")
        self.row_allreduce([vM], "v_max_f32")
        a(f"v_sub_f32 v{wA}, v{ML}, v{vM}"); a(f"v_sub_f32 v{wB}, v{ML+4}, v{vM}")
        a(f"v_exp_f32 v{wA}, v{wA}"); a(f"v_exp_f32 v{wB}, v{wB}")
        a(f"v_mul_f32 v{vL}, v{wA}, v{ML+1}"); a(f"v_fmac_f32 v{vL}, v{wB}, v{ML+5}")
        self.row_allreduce([vL], "v_add_f32")
        a(f"v_rcp_f32 v{vL}, v{vL}")
        a(f"v_mul_f32 v{wA}, v{wA}, v{vL}"); a(f"v_mul_f32 v{wB}, v{wB}, v{vL}")
        self.poll_loop(gather_ctx, [CT + 4 * i + 3 for i in range(8)], first_issued=True, first_wait="s_waitcnt vmcnt(0)", name="pctx")
        self.stamp(6)
        AC = U
        for i in range(8): self.unpack(CT + 4 * i)
        for i in range(8):
            q = i >> 1
            for v in range(4):
                op = "v_mul_f32_dpp" if i == 0 else "v_fmac_f32_dpp"
                a(f"{op} v{AC+v}, v{wB if i & 1 else wA}, v{CT+4*i+v} quad_perm:[{q},{q},{q},{q}] row_mask:0xf bank_mask:0xf")
        self.row_allreduce([AC + v for v in range(4)], "v_add_f32", steps=(4, 8))
        for v in range(4): a(f"v_cvt_pk_bf16_f32 v{AC+v}, v{AC+v}, v{AC+v}")
        for v in range(4): a(f"v_mov_b32_dpp v{AC+v}, v{AC+v} quad_perm:[2,3,0,1] row_mask:0xf bank_mask:0xc")
        self.rowacc(DD, AB, M0, 8, lambda i: (AC + (i & 3), "quad_perm:[%d,%d,%d,%d]" % ((i >> 2,) * 4)), lambda i: UV + 4 * i)
        a("s_mov_b32 exec_lo, 0x00ff00ff"); a("s_mov_b32 exec_hi, 0xff00ff00")
        a(f"ds_write_b128 v{vLD}, {V(DD)} offset:4096")
        self.exec_full()
        a("s_waitcnt lgkmcnt(0)")
        a("s_barrier")
        Le = self.lab("pend")
        a(f"s_cmp_lt_u32 s{sW}, 5"); a(f"s_cbranch_scc0 {Le}")
        CF = 48
        a(f"v_lshrrev_b32 v{tmp}, 4, v1"); a(f"v_and_b32 v{tmp+1}, 3, v1"); a(f"v_lshl_add_u32 v{tmp}, v{tmp}, 2, v{tmp+1}")
        a(f"v_lshlrev_b32 v{tmp+4}, 4, v{tmp}"); a(f"v_bfe_u32 v{tmp+1}, v1, 2, 2"); a(f"v_lshl_add_u32 v{tmp}, v{tmp+1}, 10, v{tmp+4}")
        for k in range(4): a(f"ds_read_b128 {V(CF+4*k)}, v{tmp} offset:{4096+256*k}")
        a(f"v_and_b32 v{tmp+2}, 15, v1"); a(f"v_bfe_u32 v{tmp+3}, v1, 4, 1"); a(f"v_lshl_add_u32 v{tmp+2}, v{tmp+2}, 1, v{tmp+3}"); a(f"v_lshlrev_b32 v{tmp+2}, 4, v{tmp+2}")
        a(f"s_mul_i32 s68, s77, 2560"); a(f"s_lshl_b32 s69, s{sW}, 9"); a("s_add_u32 s68, s68, s69"); a(f"s_add_u32 s68, s68, {WS_YA}")
        a("s_waitcnt lgkmcnt(0)")
        self.tree_add(CF, 4)
        self.row_allreduce([CF + v for v in range(4)], "v_add_f32", steps=(4, 8))
        for v in range(4): a(f"v_cvt_pk_bf16_f32 v{CF+v}, v{CF+v}, v{CF+v}")
        self.rowacc(DD, AB, M0, 16, lambda i: (CF + (i & 3), "quad_perm:[%d,%d,%d,%d]" % ((i >> 2,) * 4)), lambda i: WO + 4 * i)
        self.pack(DD, vTag)
        self.exec_lo32()
        a(f"buffer_store_dwordx4 {V(DD)}, v{tmp+2}, {WS}, s68 offen sc1")
        self.exec_full()
        self.stamp(7)
        a(f"{Le}:")
        self.finish("PR")

    def role_Q(self):
        a = self.a; V = self.V; S = self.S
        vL16, M0, Z, DS, AB, G, vTag = 2, 4, 8, 16, 24, 32, 3
        SA, PA = 64, 192
        tmp = 12
        t2 = 24
        a("; ---------------- role Q ----------------")
        self.code_prefetch("L_Q", "L_end", 14, 32, 1)
        a(f"s_sub_u32 s7, s7, 8"); a(f"s_add_u32 s{sH}, s6, s7")
        a(f"v_lshlrev_b32 v{vL16}, 4, v1")
        a(f"s_lshl_b32 s72, s{sH}, 17"); a(f"s_lshl_b32 s68, s{sW}, 14"); a("s_add_u32 s72, s72, s68")
        a(f"s_lshl_b32 s73, s{sW}, 14")
        a("s_waitcnt lgkmcnt(0)")
        self.srd(SRD1, pCKV, 4096 * 1024)
        for r in range(16):
            f = (r & 8) | ((r & 3) << 1)
            a(f"v_xor_b32 v{tmp + (r & 1)}, {16*f}, v{vL16}")
            a(f"s_add_u32 m0, s73, {1024*r}")
            if r % 4 == 0 and r: a("s_add_u32 s72, s72, 4096")
            a(f"buffer_load_dwordx4 v{tmp + (r & 1)}, {S(SRD1)}, s72 offen offset:{1024*(r%4)} nt lds") if False else None
            a(f"s_add_u32 s74, s72, {1024*(r%4)}")
            a(f"buffer_load_dwordx4 v{tmp + (r & 1)}, {S(SRD1)}, s74 offen {self.nt} lds")
        self.common2()
        a(f"v_and_b32 v{tmp}, 3, v1"); a(f"v_lshlrev_b32 v{tmp}, 1, v{tmp}"); a(f"v_and_b32 v{tmp+1}, 8, v1"); a(f"v_or_b32 v{tmp}, v{tmp}, v{tmp+1}")
        a(f"v_lshrrev_b32 v{tmp+1}, 4, v1"); a(f"v_xor_b32 v{tmp}, v{tmp}, v{tmp+1}"); a(f"v_lshlrev_b32 v{tmp}, 4, v{tmp}")
        for m in range(4): a(f"v_xor_b32 v{Z+m}, {64*m}, v{tmp}")
        a(f"v_and_b32 v{tmp+2}, 15, v1")
        a(f"s_and_b32 s68, s{sW}, 3"); a("s_lshl_b32 s68, s68, 15"); a(f"v_lshl_add_u32 v{tmp+3}, v{tmp+2}, 10, s68")
        for m in range(4): a(f"v_add_u32 v{t2+m}, v{tmp+3}, v{Z+m}")
        a(f"v_bfe_u32 v{tmp}, v1, 2, 2")
        a(f"v_bfe_u32 v{tmp+1}, v1, 4, 1"); a(f"v_lshlrev_b32 v{tmp+1}, 3, v{tmp+1}"); a(f"v_lshl_or_b32 v{tmp+1}, v{tmp}, 1, v{tmp+1}")
        a(f"v_bfe_u32 v{tmp+3}, v1, 1, 1"); a(f"v_xor_b32 v{tmp+1}, v{tmp+1}, v{tmp+3}")
        a(f"s_and_b32 s68, s{sW}, 1"); a("s_lshl_b32 s68, s68, 3"); a(f"v_xor_b32 v{tmp+1}, s68, v{tmp+1}")
        a(f"v_lshrrev_b32 v{tmp+3}, 4, v1"); a(f"v_lshl_add_u32 v{tmp}, v{tmp+3}, 3, v{tmp}")
        a(f"v_lshlrev_b32 v{tmp}, 10, v{tmp}"); a(f"v_and_b32 v{tmp+3}, 1, v1"); a(f"v_lshl_add_u32 v{tmp}, v{tmp+3}, 3, v{tmp}")
        a(f"s_lshr_b32 s68, s{sW}, 1"); a("s_lshl_b32 s68, s68, 8"); a(f"v_add_u32 v{tmp}, s68, v{tmp}")
        for ct in range(4):
            a(f"v_xor_b32 v{t2+4+ct}, {2*ct}, v{tmp+1}"); a(f"v_lshl_add_u32 v{t2+4+ct}, v{t2+4+ct}, 4, v{tmp}")
        a("s_waitcnt vmcnt(0)")
        self.tag(vTag)
        a("s_barrier")
        self.stamp(1)
        for kt in range(2):
            for ks in range(16):
                a(f"ds_read_b128 {V(SA+64*kt+4*ks)}, v{t2+(ks&3)} offset:{256*(ks>>2)+16384*kt}")
            a("s_waitcnt lgkmcnt(8)")
        for half in range(2):
            for ct in range(4):
                for kk in range(2):
                    for hh in range(2):
                        r = PA + 16 * ct + 4 * (2 * half + kk) + 2 * hh
                        a(f"ds_read_b64_tr_b16 {V(r,2)}, v{t2+4+ct} offset:{(32*kk+4*hh)*1024}")
                a("s_waitcnt lgkmcnt(8)")
            if half == 0:
                for ct in range(4): a(f"v_add_u32 v{t2+4+ct}, 0x10000, v{t2+4+ct}")
        a("s_waitcnt lgkmcnt(0)")
        a("s_barrier")
        self.stamp(2)
        a(f"s_lshl_b32 s76, s{sW}, 13"); a(f"s_add_u32 s76, s76, {WS_QABS}"); a("s_add_u32 s77, s76, 4096")
        a(f"v_mov_b32 v{tmp}, 0")
        def gather_ind(): a(f"buffer_load_dwordx4 {V(G)}, v{tmp}, {WS}, s76 offen sc1")
        self.poll_loop(gather_ind, [G + 3], sleep=2, name="qind")
        def gather_qabs():
            for i in range(8):
                a(f"buffer_load_dwordx4 {V(G+4*i)}, v{vL16}, {WS}, s{76 if i < 4 else 77} offen offset:{1024*(i&3)} sc1")
        self.poll_loop(gather_qabs, [G + 4 * i + 3 for i in range(8)], sleep=0, name="qabs")
        self.stamp(3)
        a(f"s_bfe_u32 s68, s{sW}, 0x10001"); a("s_lshl_b32 s68, s68, 7"); a(f"v_lshlrev_b32 v{tmp}, 3, v1"); a(f"v_xor_b32 v{tmp}, s68, v{tmp}")
        a(f"s_lshl_b32 s68, s{sW}, 12")
        for ii in range(4):
            a(f"v_xor_b32 v{t2+ii}, {32*ii}, v{tmp}"); a(f"v_add_u32 v{t2+ii}, s68, v{t2+ii}")
        for i in range(8):
            r = G + 4 * i
            self.unpack(r)
            a(f"v_cvt_pk_bf16_f32 v{r}, v{r}, v{r+1}"); a(f"v_cvt_pk_bf16_f32 v{r+1}, v{r+2}, v{r+3}")
            a(f"ds_write_b64 v{t2+(i>>1)}, {V(r,2)} offset:{1024*(i>>1)+512*(i&1)}")
        a(f"s_lshr_b32 s68, s{sW}, 2"); a("s_lshl_b32 s68, s68, 14"); a(f"v_lshl_add_u32 v{tmp+3}, v{tmp+2}, 10, s68")
        for m in range(4): a(f"v_add_u32 v{t2+4+m}, v{tmp+3}, v{Z+m}")
        a("s_waitcnt lgkmcnt(0)")
        a("s_barrier")
        for ks in range(8): a(f"ds_read_b128 {V(G+4*ks)}, v{t2+4+(ks&3)} offset:{256*(ks>>2)}")
        for ks in range(16):
            a(f"s_waitcnt lgkmcnt({min(7, 15-ks)})")
            for kt in range(2):
                a(f"v_mfma_f32_16x16x32_bf16 {V(DS+4*kt)}, {V(SA+64*kt+4*ks)}, {V(G+4*(ks&7))}, {'0' if ks == 0 else V(DS+4*kt)}")
            if ks < 8:
                k2 = ks + 8
                a(f"ds_read_b128 {V(G+4*ks)}, v{t2+4+(k2&3)} offset:{256*(k2>>2)}")
        vM = tmp; SM, SS, PO = 32768, 33280, 36864
        a(f"v_max3_f32 v{vM}, v{DS}, v{DS+1}, v{DS+2}"); a(f"v_max3_f32 v{vM}, v{vM}, v{DS+3}, v{DS+4}")
        a(f"v_max3_f32 v{vM}, v{vM}, v{DS+5}, v{DS+6}"); a(f"v_max_f32 v{vM}, v{vM}, v{DS+7}")
        def allrows(r, op, t):
            a(f"v_mov_b32 v{t}, v{r}"); a(f"v_permlane16_swap_b32 v{r}, v{t}"); a(f"{op} v{r}, v{r}, v{t}")
            a(f"v_mov_b32 v{t}, v{r}"); a(f"v_permlane32_swap_b32 v{r}, v{t}"); a(f"{op} v{r}, v{r}, v{t}")
        allrows(vM, "v_max_f32", tmp + 1)
        a(f"s_lshr_b32 s68, s{sW}, 2"); a("s_lshl_b32 s68, s68, 8"); a(f"v_lshl_add_u32 v{t2}, v{tmp+2}, 4, s68")
        a(f"s_and_b32 s69, s{sW}, 3"); a("s_lshl_b32 s69, s69, 2"); a(f"v_add_u32 v{t2+1}, s69, v{t2}")
        a("s_mov_b32 exec_hi, 0"); a("s_mov_b32 exec_lo, 0xffff")
        a(f"ds_write_b32 v{t2+1}, v{vM} offset:{SM}")
        self.exec_full()
        a("s_waitcnt lgkmcnt(0)")
        a("s_barrier")
        a(f"ds_read_b128 {V(G)}, v{t2} offset:{SM}")
        a(f"v_and_b32 v{t2+2}, 3, v1"); a(f"v_lshlrev_b32 v{t2+2}, 1, v{t2+2}"); a(f"v_and_b32 v{t2+3}, 8, v1"); a(f"v_or_b32 v{t2+2}, v{t2+2}, v{t2+3}")
        a(f"v_lshrrev_b32 v{t2+3}, 5, v1"); a(f"v_xor_b32 v{t2+2}, v{t2+2}, v{t2+3}")
        a(f"s_and_b32 s69, s{sW}, 3"); a("s_lshl_b32 s69, s69, 2"); a(f"v_xor_b32 v{t2+2}, s69, v{t2+2}")
        a(f"v_bfe_u32 v{t2+3}, v1, 4, 1"); a(f"v_lshlrev_b32 v{t2+3}, 3, v{t2+3}")
        a(f"v_lshl_add_u32 v{t2+3}, v{tmp+2}, 8, v{t2+3}"); a("s_lshl_b32 s68, s68, 4"); a(f"v_add_u32 v{t2+3}, s68, v{t2+3}")
        a(f"v_lshl_add_u32 v{t2+4}, v{t2+2}, 4, v{t2+3}")
        a(f"v_xor_b32 v{t2+2}, 2, v{t2+2}"); a(f"v_lshl_add_u32 v{t2+5}, v{t2+2}, 4, v{t2+3}")
        a("s_waitcnt lgkmcnt(0)")
        a(f"v_max3_f32 v{vM}, v{G}, v{G+1}, v{G+2}"); a(f"v_max_f32 v{vM}, v{vM}, v{G+3}")
        a(f"v_mul_f32 v{vM}, s{sC1}, v{vM}")
        for k in range(8): a(f"v_fma_f32 v{DS+k}, v{DS+k}, s{sC1}, -v{vM}")
        for k in range(8): a(f"v_exp_f32 v{DS+k}, v{DS+k}")
        vS = tmp + 3
        a(f"v_add_f32 v{vS}, v{DS}, v{DS+1}")
        for k in range(2, 8): a(f"v_add_f32 v{vS}, v{vS}, v{DS+k}")
        for kt in range(2):
            a(f"v_cvt_pk_bf16_f32 v{DS+4*kt}, v{DS+4*kt}, v{DS+4*kt+1}"); a(f"v_cvt_pk_bf16_f32 v{DS+4*kt+1}, v{DS+4*kt+2}, v{DS+4*kt+3}")
            a(f"ds_write_b64 v{t2+4+kt}, {V(DS+4*kt,2)} offset:{PO}")
        allrows(vS, "v_add_f32", tmp + 1)
        a("s_mov_b32 exec_hi, 0"); a("s_mov_b32 exec_lo, 0xffff")
        a(f"ds_write_b32 v{t2+1}, v{vS} offset:{SS}")
        self.exec_full()
        a("s_waitcnt lgkmcnt(0)")
        a("s_barrier")
        self.stamp(4)
        a(f"v_lshlrev_b32 v{tmp+3}, 8, v{tmp+2}")
        for kk in range(4): a(f"v_add_u32 v{t2+kk}, v{tmp+3}, v{Z+kk}")
        for ht in range(2):
            for kk in range(4): a(f"ds_read_b128 {V(G+16*ht+4*kk)}, v{t2+kk} offset:{PO+4096*ht}")
        PD = SA
        for ht in range(2):
            a(f"s_waitcnt lgkmcnt({4 if ht == 0 else 0})")
            for kk in range(4):
                for ct in range(4):
                    d = PD + 16 * ht + 4 * ct
                    a(f"v_mfma_f32_16x16x32_bf16 {V(d)}, {V(PA+16*ct+4*kk)}, {V(G+16*ht+4*kk)}, {'0' if kk == 0 else V(d)}")
        TO = 65536
        a(f"v_lshrrev_b32 v{t2}, 4, v1"); a(f"v_lshlrev_b32 v{t2}, 4, v{t2}")
        a(f"v_and_b32 v{t2+1}, 3, v1"); a(f"v_lshlrev_b32 v{t2+1}, 6, v{t2+1}")
        a(f"v_lshl_add_u32 v{t2+2}, v{tmp+2}, 8, v{t2}")
        a(f"s_lshl_b32 s68, s{sW}, 13"); a(f"s_add_u32 s68, s68, {TO}"); a(f"v_add_u32 v{t2+2}, s68, v{t2+2}")
        for ct in range(4):
            a(f"v_xor_b32 v{t2+4+ct}, {64*ct}, v{t2+1}"); a(f"v_add_u32 v{t2+4+ct}, v{t2+2}, v{t2+4+ct}")
        for ht in range(2):
            for ct in range(4):
                d = PD + 16 * ht + 4 * ct
                self.pack(d, vTag)
                a(f"ds_write_b128 v{t2+4+ct}, {V(d)} offset:{4096*ht}")
        a(f"v_lshrrev_b32 v{t2}, 4, v1")
        a(f"v_lshlrev_b32 v{t2+1}, 6, v{t2}"); a(f"v_lshlrev_b32 v{t2+2}, 4, v{tmp+2}"); a(f"v_xor_b32 v{t2+1}, v{t2+1}, v{t2+2}")
        a(f"v_lshl_add_u32 v{t2+1}, v{t2}, 8, v{t2+1}"); a(f"v_add_u32 v{t2+1}, s68, v{t2+1}")
        a(f"v_lshl_add_u32 v{t2+2}, v{t2}, 16, v{t2+2}")
        a(f"s_lshl_b32 s76, s{sH}, 11"); a(f"s_lshl_b32 s69, s{sW}, 8"); a("s_add_u32 s76, s76, s69"); a(f"s_add_u32 s76, s76, {WS_CTX}")
        a("s_waitcnt lgkmcnt(0)")
        for i in range(8): a(f"ds_read_b128 {V(G+4*i)}, v{t2+1} offset:{1024*i}")
        for i in range(8):
            a(f"s_waitcnt lgkmcnt({7-i})")
            a(f"buffer_store_dwordx4 {V(G+4*i)}, v{t2+2}, {WS}, s76 offen sc1")
            if i < 7: a("s_add_u32 s76, s76, 0x40000")
        a("s_barrier")
        L = self.lab("q1"); a(f"s_cmp_eq_u32 s{sW}, 0"); a(f"s_cbranch_scc0 {L}")
        a(f"v_and_b32 v{tmp}, 31, v1"); a(f"v_lshlrev_b32 v{tmp+1}, 4, v{tmp}")
        a(f"ds_read_b128 {V(G)}, v{tmp+1} offset:{SM}"); a(f"ds_read_b128 {V(G+4)}, v{tmp+1} offset:{SS}")
        a(f"v_lshlrev_b32 v{tmp}, 9, v{tmp}"); a(f"s_lshl_b32 s68, s{sH}, 4"); a(f"s_add_u32 s68, s68, {WS_ML}")
        a("s_waitcnt lgkmcnt(0)")
        a(f"v_max3_f32 v{G}, v{G}, v{G+1}, v{G+2}"); a(f"v_max_f32 v{G}, v{G}, v{G+3}"); a(f"v_mul_f32 v{G}, s{sC1}, v{G}")
        a(f"v_pk_add_f32 {V(G+4,2)}, {V(G+4,2)}, {V(G+6,2)}"); a(f"v_add_f32 v{G+1}, v{G+4}, v{G+5}")
        a(f"v_mov_b32 v{G+2}, 0"); a(f"v_mov_b32 v{G+3}, v{vTag}")
        self.exec_lo32()
        a(f"buffer_store_dwordx4 {V(G)}, v{tmp}, {WS}, s68 offen sc1")
        self.exec_full()
        a(f"{L}:")
        self.stamp(5)
        Le = self.lab("qend")
        a(f"s_lshl_b32 s79, s{sH}, 3"); a(f"s_add_u32 s79, s79, s{sW}")
        a("s_movk_i32 s68, 2560"); a(f"v_mul_u32_u24 v{tmp}, s68, v1"); a(f"v_mov_b32 v{tmp+1}, 0")
        a("s_cmp_lt_u32 s79, 160"); a(f"s_cbranch_scc0 {Le}")
        regs = [G + v for v in range(4)]
        for br in range(2):
            a(f"s_lshl_b32 s76, s79, 4"); a(f"s_add_u32 s76, s76, {WS_YB if br else WS_YA}")
            a(f"s_lshl_b32 s78, s79, 3")
            if br:
                a("s_add_u32 s78, s78, 1280")
                a("s_and_b32 s68, s79, 31"); a("s_lshl_b32 s68, s68, 7"); a(f"s_add_u32 s77, s68, {WS_MLB}")
                def gather_ind(): a(f"buffer_load_dwordx4 {V(G)}, v{tmp+1}, {WS}, s77 offen sc1")
                self.poll_loop(gather_ind, [G + 3], sleep=8, name="qind2")
                a(f"v_and_b32 v{tmp}, 31, v1"); a("s_movk_i32 s68, 2560"); a(f"v_mul_u32_u24 v{tmp}, s68, v{tmp}")
            def gather_y(): a(f"buffer_load_dwordx4 {V(G)}, v{tmp}, {WS}, s76 offen sc1")
            self.poll_loop(gather_y, [G + 3], sleep=(0 if br else 4), name="qy")
            self.unpack(G)
            self.row_allreduce(regs, "v_add_f32")
            for r in regs: a(f"v_add_f32_dpp v{r}, v{r}, v{r} row_bcast:15 row_mask:0xa bank_mask:0xf")
            if not br:
                for r in regs: a(f"v_add_f32_dpp v{r}, v{r}, v{r} row_bcast:31 row_mask:0xc bank_mask:0xf")
            a(f"v_cvt_pk_bf16_f32 v{G}, v{G}, v{G+1}"); a(f"v_cvt_pk_bf16_f32 v{G+1}, v{G+2}, v{G+3}")
            if br: a("s_mov_b32 exec_lo, 0x80000000"); a("s_mov_b32 exec_hi, 0")
            else: a("s_mov_b32 exec_lo, 0"); a("s_mov_b32 exec_hi, 0x80000000")
            a(f"buffer_store_dwordx2 {V(G,2)}, v{tmp+1}, {OUT}, s78 offen")
            self.exec_full()
            self.stamp(6 + br)
        a("s_cmp_eq_u32 s79, 0"); a(f"s_cbranch_scc0 {Le}")
        a(f"s_add_u32 s68, s{sEpoch}, 1"); a(f"v_mov_b32 v{tmp}, s68")
        a("s_mov_b64 exec, 1")
        a(f"buffer_store_dword v{tmp}, v{tmp+1}, {WS}, 0 offen")
        self.exec_full()
        a(f"{Le}:")
        self.finish("Q")

    def build(self):
        a = self.a
        self.prologue()
        if "B" in self.roles: self.role_B()
        else: a("s_endpgm")
        a("L_PR:")
        if "P" in self.roles: self.role_PR()
        else: a("s_endpgm")
        a("L_Q:")
        if "Q" in self.roles: self.role_Q()
        else: a("s_endpgm")
        a("L_end:"); a("s_endpgm")
        head = [
            "; concat_heads__compressed_kv_cla__mha_block_cached__decode: one persistent launch, 256 workgroups of 8 waves",
            "; @launch grid=(256,1,1) block=(512,1,1) lds=131072",
            '.amdgcn_target "amdgcn-amd-amdhsa--gfx950"', ".text", f".globl {KN}", ".p2align 8", f".type {KN},@function", f"{KN}:"]
        tail = ['.section .rodata,"a"', ".p2align 6", f".amdhsa_kernel {KN}",
            "  .amdhsa_next_free_vgpr 256", "  .amdhsa_next_free_sgpr 102", "  .amdhsa_accum_offset 256",
            "  .amdhsa_group_segment_fixed_size 0", "  .amdhsa_kernarg_size 112", "  .amdhsa_user_sgpr_count 2",
            "  .amdhsa_user_sgpr_kernarg_segment_ptr 1", "  .amdhsa_system_sgpr_workgroup_id_x 1",
            "  .amdhsa_float_denorm_mode_32 3", ".end_amdhsa_kernel"]
        return "\n".join(head) + "\n" + a.text() + "\n".join(tail) + "\n"

if __name__ == "__main__":
    import argparse
    ap = argparse.ArgumentParser()
    ap.add_argument("-o", default="k.s"); ap.add_argument("--prof", action="store_true")
    ap.add_argument("--nt", default="nt"); ap.add_argument("--dbgst", action="store_true"); ap.add_argument("--D0", type=int, default=2); ap.add_argument("--Ds", type=int, default=2); ap.add_argument("--ns", type=int, default=8); ap.add_argument("--Dv", type=int, default=5); ap.add_argument("--pf", type=int, default=1); ap.add_argument("--lin", default=""); ap.add_argument("--bar", type=int, default=0); ap.add_argument("--roles", default="BPQ"); ap.add_argument("-D", type=int, default=5); ap.add_argument("--spin", type=int, default=20000)
    args = ap.parse_args()
    g = Gen(prof=args.prof, D=args.D, spin=args.spin, roles=args.roles, nt=args.nt, dbgst=args.dbgst, D0=args.D0, Ds=args.Ds, ns=args.ns, Dv=args.Dv, pf=args.pf, lin=args.lin, bar=args.bar)
    open(args.o, "w").write(g.build())
    sys.path.insert(0, "exp"); import build
    print(build.build(args.o))
```

```python
import sys, struct
from asmlib import Asm

KN = "concat_heads__compressed_kv_cla__mha_block_cached__decode_kernel"

WS_QB   = 0x1000
WS_QA   = 0xA0000
WS_QABS = 0x20000
WS_ML   = 0x30000
WS_MLB  = 0x34000
WS_OB   = 0x38000
WS_YA   = 0x50000
WS_YB   = 0x78000
WS_PROF = 0xC0000
WS_CTX  = 0x100000
WS_SIZE = 0x300000

def f2u(x): return struct.unpack("<I", struct.pack("<f", x))[0]
C1 = 1.4426950408889634 / (128 ** 0.5)
NEG = -1.0e30

sW, sH, sSub = 3, 4, 5
WS = "s[8:11]"; OUT = "s[12:15]"
pAX, pCKV, pWQA, pWUK, pWUV, pWOA, pBX, pK, pV, pWQB, pWOB, pOUT, pDBG, pWS = 16, 18, 20, 22, 24, 26, 28, 30, 32, 34, 36, 38, 40, 42
SRD1, SRD2, SRD3, SRD4 = 44, 48, 52, 56
sEpoch, sTag = 60, 61
sP0, sP1, sP2, sU, sLo, sHi = 62, 63, 64, 65, 66, 67
sT = 68
sC1 = 80
sCnt = 81
sBias = 82
sProf = 84

class Gen:
    def __init__(self, prof=False, D=5, spin=20000, roles="BPQ", dbg=False, nt="nt", dbgst=False, D0=2, Ds=2, ns=8, Dv=5, pf=1, slp=2, nu=4, n1=12, lin="", bar=0, tlb=0):
        self.a = Asm(); self.prof = prof; self.D = D; self.spin = spin; self.roles = roles; self.dbg = dbg
        self.nlab = 0; self.nstamp = 0; self.nt = nt; self.pf = pf; self.slp = slp; self.nu = nu; self.n1 = n1; self.lin = lin; self.bar = bar; self.tlb = tlb; self.D0 = D0; self.Ds = Ds; self.ns = ns; self.Dv = Dv; self.dbgst = dbgst
    def lab(self, base):
        self.nlab += 1; return f"L_{base}_{self.nlab}"
    def stamp(self, k):
        if self.prof or self.dbgst: self.a(f"s_memrealtime s[{sProf+2*k}:{sProf+2*k+1}]")
    def srd(self, base, ptr, size):
        a = self.a
        a(f"s_mov_b32 s{base}, s{ptr}"); a(f"s_mov_b32 s{base+1}, s{ptr+1}")
        a(f"s_mov_b32 s{base+2}, {size}"); a(f"s_mov_b32 s{base+3}, 0x20000")
    @staticmethod
    def S(base): return f"s[{base}:{base+3}]"
    @staticmethod
    def V(r, n=4): return f"v[{r}:{r+n-1}]"
    def pack(self, r, vtag):
        a = self.a
        a(f"v_perm_b32 v{r}, v{r}, v{r+3}, s{sP0}")
        a(f"v_perm_b32 v{r+1}, v{r+1}, v{r+3}, s{sP1}")
        a(f"v_perm_b32 v{r+2}, v{r+2}, v{r+3}, s{sP2}")
        a(f"v_mov_b32 v{r+3}, v{vtag}")
    def unpack(self, r):
        a = self.a
        a(f"v_perm_b32 v{r+3}, v{r+1}, v{r}, s{sU}")
        a(f"v_lshl_or_b32 v{r+3}, v{r+2}, 24, v{r+3}")
    def check(self, regs, acc, val=None):
        a = self.a
        val = val or f"s{sTag}"
        for i, r in enumerate(regs):
            if i == 0: a(f"v_cmp_ne_u32 s[{acc}:{acc+1}], {val}, v{r}")
            else:
                a(f"v_cmp_ne_u32 vcc, {val}, v{r}")
                a(f"s_or_b64 s[{acc}:{acc+1}], s[{acc}:{acc+1}], vcc")
    def poll_loop(self, issue, regs, first_issued=False, first_wait=None, sleep=1, name="poll"):
        a = self.a
        L = self.lab(name); Lc = L + "_c"; Ld = L + "_d"
        a(f"s_mov_b32 s{sCnt}, 0")
        if first_issued:
            a(first_wait)
            a(f"s_branch {Lc}")
        a(f"{L}:")
        issue()
        a("s_waitcnt vmcnt(0)")
        if first_issued: a(f"{Lc}:")
        self.check(regs, 6)
        a("s_cmp_eq_u64 s[6:7], 0")
        a(f"s_cbranch_scc1 {Ld}")
        a(f"s_add_u32 s{sCnt}, s{sCnt}, 1")
        a(f"s_cmp_lt_u32 s{sCnt}, {self.spin}")
        a(f"s_cbranch_scc0 {Ld}")
        if sleep: a(f"s_sleep {sleep}")
        a(f"s_branch {L}")
        a(f"{Ld}:")
        if self.prof:
            a(f"s_min_u32 s{sCnt}, s{sCnt}, 255"); a("s_lshl_b32 s100, s100, 8"); a(f"s_or_b32 s100, s100, s{sCnt}")
    def lds_spin(self, reads, regs, name):
        a = self.a
        L = self.lab(name)
        a(f"s_mov_b32 s{sCnt}, 0")
        a(f"{L}:")
        reads()
        a("s_waitcnt lgkmcnt(0)")
        self.check(regs, 6, "1")
        a("s_cmp_eq_u64 s[6:7], 0"); a(f"s_cbranch_scc1 {L}_d")
        a(f"s_add_u32 s{sCnt}, s{sCnt}, 1"); a(f"s_cmp_lt_u32 s{sCnt}, {self.spin * 8}"); a(f"s_cbranch_scc1 {L}")
        a(f"{L}_d:")
    def masks(self, m0, vlane, t0, t1):
        a = self.a
        a(f"v_and_b32 v{t0}, 1, v{vlane}")
        a(f"v_lshlrev_b32 v{t0}, 4, v{t0}")
        a(f"v_mov_b32 v{t1}, 0xffff")
        a(f"v_lshlrev_b32 v{t0}, v{t0}, v{t1}")
        a(f"v_bfe_u32 v{t1}, v{vlane}, 1, 2")
        for t in range(4):
            a(f"v_cmp_eq_u32 vcc, {t}, v{t1}")
            a(f"v_cndmask_b32 v{m0+t}, 0, v{t0}, vcc")
    def code_prefetch(self, lab0, lab1, vt, vd, nload, wave=7):
        if self.pf != 1: return
        a = self.a
        L = self.lab("pf")
        a(f"s_cmp_eq_u32 s{sW}, {wave}"); a(f"s_cbranch_scc0 {L}")
        a("s_getpc_b64 s[70:71]")
        a(f"{L}_pc:")
        a(f"s_sub_u32 s70, s70, {L}_pc-{lab0}"); a("s_subb_u32 s71, s71, 0")
        for k in range(nload):
            a(f"v_lshlrev_b32 v{vt}, 7, v1")
            if k: a(f"v_add_u32 v{vt}, {8192*k}, v{vt}")
            a(f"v_min_u32 v{vt}, {lab1}-{lab0}-4, v{vt}")
            a(f"global_load_dword v{vd}, v{vt}, s[70:71]")
        a(f"{L}:")
    def tlb_warm(self, items, vz, vd, wave=6):
        if not self.tlb: return
        a = self.a
        L = self.lab("tw")
        a(f"s_cmp_eq_u32 s{sW}, {wave}"); a(f"s_cbranch_scc0 {L}")
        a(f"v_mov_b32 v{vz}, 0")
        a("s_mov_b64 exec, 1")
        for srd, soff in items:
            a(f"buffer_load_dword v{vd}, v{vz}, {srd}, {soff} offen")
        self.exec_full()
        a(f"{L}:")
    def exec_lo32(self): self.a("s_mov_b32 exec_hi, 0")
    def exec_full(self): self.a("s_mov_b64 exec, -1")

    def prologue(self):
        a = self.a
        a("s_cmp_ge_u32 s2, 256"); a("s_cbranch_scc1 L_end")
        a("s_load_dwordx4 s[40:43], s[0:1], 96")
        a("s_load_dwordx16 s[16:31], s[0:1], 0")
        a("s_load_dwordx8 s[32:39], s[0:1], 64")
        self.stamp(0)
        if self.prof: a("s_mov_b32 s100, 0")
        a("v_lshrrev_b32 v2, 6, v0")
        a("v_and_b32 v1, 63, v0")
        a(f"v_readfirstlane_b32 s{sW}, v2")
        if self.pf == 2:
            a(f"s_cmp_eq_u32 s{sW}, 7"); a("s_cbranch_scc0 L_pf0")
            a("s_getpc_b64 s[70:71]")
            a("L_pf0_pc:")
            for k in range(3):
                a("v_lshlrev_b32 v254, 7, v1")
                if k: a(f"v_add_u32 v254, {8192*k}, v254")
                a("v_min_u32 v254, L_end-L_pf0_pc-4, v254")
                a(f"global_load_dword v{32 if False else 255}, v254, s[70:71]")
            a("L_pf0:")
        a("s_and_b32 s6, s2, 7")
        a("s_lshr_b32 s7, s2, 3")
        a(f"s_mov_b32 s{sP0}, 0x07060501"); a(f"s_mov_b32 s{sP1}, 0x07060502"); a(f"s_mov_b32 s{sP2}, 0x07060503")
        a(f"s_mov_b32 s{sU}, 0x0c04000c"); a(f"s_mov_b32 s{sLo}, 0x01000100"); a(f"s_mov_b32 s{sHi}, 0x03020302")
        a(f"s_mov_b32 s{sC1}, {f2u(C1):#x}")
        a("s_lshl_b32 s6, s6, 2")
        a("s_cmp_lt_u32 s7, 8"); a("s_cbranch_scc1 L_PR")
        a("s_cmp_lt_u32 s7, 12"); a("s_cbranch_scc1 L_Q")
    def common2(self):
        a = self.a
        a(f"s_load_dword s{sEpoch}, s[{pWS}:{pWS+1}], 0")
        self.srd(8, pWS, WS_SIZE)
        self.srd(12, pOUT, 2560)
    def tag(self, vtag):
        a = self.a
        a("s_waitcnt lgkmcnt(0)")
        a(f"s_mul_i32 s{sTag}, s{sEpoch}, 0x9E3779B1")
        a(f"s_add_u32 s{sTag}, s{sTag}, 0x85EBCA6B")
        a(f"v_mov_b32 v{vtag}, s{sTag}")
    def finish(self, role=None):
        a = self.a
        if self.prof:
            a("s_waitcnt lgkmcnt(0)")
            a("s_mov_b64 exec, -1")
            a("v_mov_b32 v250, 0")
            for k in range(17):
                a(f"v_writelane_b32 v250, s{sProf+k}, {k}")
            a("v_and_b32 v251, 63, v0"); a("v_lshlrev_b32 v251, 2, v251")
            a(f"s_lshl_b32 s6, s2, 3"); a(f"s_add_u32 s6, s6, s{sW}"); a("s_lshl_b32 s6, s6, 7"); a(f"s_add_u32 s6, s6, {WS_PROF}")
            a("s_mov_b32 exec_hi, 0"); a("s_mov_b32 exec_lo, 0x1ffff")
            a(f"buffer_store_dword v250, v251, {WS}, s6 offen")
        if self.dbgst and role:
            wg, base, ks = {"PR": (0, 0, [1, 4, 5, 6, 7]), "B": (255, 5, [2, 4, 5, 7]), "Q": (64, 9, [1, 2, 3, 4, 5, 6, 7])}[role]
            Ls = self.lab("dbg")
            a("s_waitcnt lgkmcnt(0)")
            a(f"s_cmp_eq_u32 s{sW}, 0"); a(f"s_cbranch_scc0 {Ls}")
            a(f"s_cmp_eq_u32 s2, {wg}"); a(f"s_cbranch_scc0 {Ls}")
            a("s_mov_b64 exec, -1")
            a("v_mov_b32 v250, 0")
            for n, k in enumerate(ks):
                a(f"s_sub_u32 s7, s{sProf+2*k}, s{sProf}"); a(f"v_writelane_b32 v250, s7, {n}")
            a("v_and_b32 v251, 63, v0"); a("v_lshlrev_b32 v251, 2, v251"); a(f"v_add_u32 v251, {4*base}, v251")
            a("s_mov_b32 exec_hi, 0"); a(f"s_mov_b32 exec_lo, {(1 << len(ks)) - 1}")
            a(f"global_store_dword v251, v250, s[{pDBG}:{pDBG+1}]")
            a(f"{Ls}:")
        a("s_endpgm")

    def role_B(self):
        a = self.a; D = self.D; V = self.V; S = self.S
        vL16, vLast, M0, QF, DD, AB, T, T0, T1, U, vTag, vA, vB = 2, 3, 4, 8, 12, 16, 24, 28, 29, 30, 37, 38, 39
        KT, VT = 40, 144
        WA, WB, X, G = 144, 160, 176, 180
        DA = 24
        tmp = 248; vOne = vB
        NK = 26
        L_PB, L_Q, L_O, L_M, L_L, L_F, L_PA, L_Y = 0, 4096, 8192, 12288, 12416, 12544, 16384, 20480
        a("; ---------------- role B ----------------")
        a("L_B:")
        self.code_prefetch("L_B", "L_PR", 254, 255, 1)
        a("s_sub_u32 s7, s7, 12")
        a("s_mul_i32 s68, s7, 52"); a("s_lshr_b32 s68, s68, 8")
        a(f"s_add_u32 s{sH}, s6, s68")
        a("s_mul_i32 s68, s68, 5"); a(f"s_sub_u32 s{sSub}, s7, s68")
        a(f"v_lshlrev_b32 v{vL16}, 4, v1")
        a(f"v_lshrrev_b32 v{tmp}, 4, v1")
        a(f"v_and_b32 v{tmp+1}, 15, v1")
        a(f"v_lshlrev_b32 v{vB}, 15, v{tmp}"); a(f"v_lshl_add_u32 v{vB}, v{tmp+1}, 4, v{vB}")
        a(f"s_lshl_b32 s68, s{sSub}, 3"); a(f"s_add_u32 s68, s68, s{sW}")
        a("s_lshl_b32 s74, s68, 5"); a(f"v_lshl_add_u32 v{vA}, v{tmp}, 3, s74")
        a("s_lshl_b32 s73, s68, 17"); a(f"s_lshl_b32 s74, s{sH}, 8"); a("s_add_u32 s73, s73, s74")
        a("s_lshl_b32 s69, s68, 7"); a("s_mul_hi_u32 s70, s69, 0xCCCCCCCD"); a("s_lshr_b32 s70, s70, 2")
        a("s_add_u32 s69, s69, 128"); a("s_mul_hi_u32 s71, s69, 0xCCCCCCCD"); a("s_lshr_b32 s71, s71, 2")
        a("s_sub_u32 s71, s71, s70")
        a(f"s_lshl_b32 s72, s{sH}, 20"); a("s_lshl_b32 s70, s70, 10"); a("s_add_u32 s72, s72, s70")
        a("s_cmp_eq_u32 s71, 26")
        a(f"s_cselect_b32 s{sBias}, 0, {f2u(NEG):#x}")
        a(f"s_cselect_b32 s74, 0, 0x7f000000")
        a(f"v_or_b32 v{vLast}, s74, v{vL16}")
        a(f"v_mov_b32 v{tmp+2}, 0"); a(f"v_mov_b32 v{tmp+3}, 0")
        a(f"s_lshl_b32 s68, s{sW}, 3"); a(f"v_mov_b32 v{tmp+4}, s68"); a(f"s_lshl_b32 s68, s{sW}, 2"); a(f"v_mov_b32 v{tmp+5}, s68")
        a("s_mov_b64 exec, 1")
        a(f"ds_write_b64 v{tmp+4}, {V(tmp+2,2)} offset:{L_M}")
        a(f"ds_write_b32 v{tmp+5}, v{tmp+2} offset:{L_F}")
        a(f"ds_write_b32 v{tmp+2}, v{tmp+2} offset:{L_F+32}")
        self.exec_full()
        a("s_waitcnt lgkmcnt(0)")
        if "wq" in self.lin:
            a(f"v_lshlrev_b32 v{vB}, 4, v1"); a(f"s_mul_i32 s68, s{sH}, 5"); a(f"s_add_u32 s68, s68, s{sSub}"); a("s_lshl_b32 s68, s68, 3"); a(f"s_add_u32 s68, s68, s{sW}"); a("s_lshl_b32 s73, s68, 12")
        self.srd(SRD4, pWQB, 640 * 8192)
        a(f"global_load_dwordx2 {V(X+2,2)}, v{vA}, s[{pBX}:{pBX+1}]")
        for i in range(4):
            if i == 0: a("s_mov_b32 s69, s73")
            else: a(f"s_add_u32 s69, s69, {1024 if 'wq' in self.lin else 8192}")
            a(f"buffer_load_dwordx4 {V(WB+4*i)}, v{vB}, {S(SRD4)}, s69 offen {self.nt}")
        self.srd(SRD1, pK, 32 << 20); self.srd(SRD2, pV, 32 << 20)
        a("s_mov_b32 s75, s72")
        def kv_load(srd, base, i, soff):
            if i and i % 4 == 0: a(f"s_add_u32 s{soff}, s{soff}, 4096")
            voff = vLast if i == NK - 1 else vL16
            a(f"buffer_load_dwordx4 {V(base+4*i)}, v{voff}, {S(srd)}, s{soff} offen offset:{1024*(i%4)} {self.nt}")
        D0 = self.D0
        for i in range(D0): kv_load(SRD1, KT, i, 75)
        a(f"v_mov_b32 v{vOne}, 1")
        a("s_barrier")
        self.common2()
        if self.tlb:
            self.srd(SRD3, pWOB, 4096 * 1280)
            a(f"s_mul_i32 s68, s{sH}, {128*1280}"); a("s_add_u32 s69, s72, 24576"); a(f"s_mov_b32 s70, {WS_OB}")
            self.tlb_warm([(S(SRD2), "s72"), (S(SRD2), "s69"), (S(SRD3), "s68"), (WS, "s70")], 254, 255)
        self.masks(M0, 1, tmp, tmp + 1)
        a(f"v_and_b32 v{tmp}, 15, v1"); a(f"v_bfe_u32 v{tmp+1}, v1, 4, 1")
        a(f"v_lshl_add_u32 v{tmp}, v{tmp}, 1, v{tmp+1}"); a(f"v_lshlrev_b32 v{tmp}, 4, v{tmp}")
        a(f"s_lshl_b32 s68, s{sW}, 9"); a(f"v_add_u32 v{vA}, s68, v{tmp}")
        sels = [(0, sLo), (0, sHi), (1, sLo), (1, sHi)]
        a(f"s_waitcnt vmcnt({D0})")
        self.stamp(1)
        for i in range(4):
            xr, sel = sels[i]; xr += X + 2
            a(f"v_perm_b32 v{G+i}, v{xr}, v{xr}, s{sel}")
        self.rowacc(DD, AB, M0, 4, lambda i: (G + i, None), lambda i: WB + 4 * i)
        self.tag(vTag)
        self.exec_lo32()
        a(f"ds_write_b128 v{vA}, {V(DD)} offset:{L_PB}")
        a("s_mov_b32 exec_lo, 1")
        a(f"ds_write_b32 v{tmp+5}, v{vOne} offset:{L_F}")
        self.exec_full()
        L = self.lab("b1"); a(f"s_cmp_eq_u32 s{sW}, 0"); a(f"s_cbranch_scc0 {L}")
        a(f"v_mov_b32 v{tmp+4}, 0")
        def rd():
            a(f"ds_read_b128 {V(G+32)}, v{tmp+4} offset:{L_F}"); a(f"ds_read_b128 {V(G+36)}, v{tmp+4} offset:{L_F+16}")
        self.lds_spin(rd, [G + 32 + k for k in range(8)], "bf1")
        a(f"v_and_b32 v{tmp}, 31, v1"); a(f"v_lshlrev_b32 v{tmp}, 4, v{tmp}")
        for k in range(8): a(f"ds_read_b128 {V(G+4*k)}, v{tmp} offset:{L_PB+512*k}")
        a(f"s_mul_i32 s68, s{sH}, 5"); a(f"s_add_u32 s68, s68, s{sSub}"); a("s_lshl_b32 s68, s68, 9"); a(f"s_add_u32 s68, s68, {WS_QB}")
        a("s_waitcnt lgkmcnt(0)")
        self.tree_add(G, 8)
        self.pack(G, vTag)
        self.exec_lo32()
        a(f"buffer_store_dwordx4 {V(G)}, v{tmp}, {WS}, s68 offen sc1")
        self.exec_full()
        a(f"{L}:")
        n1 = self.n1; n2 = n1 + D + 1
        win = lambda i: self.Ds if i < self.ns else D
        def gather_q():
            for s in range(5):
                a(f"buffer_load_dwordx4 {V(G+4*s)}, v{tmp+3}, {WS}, s76 offen offset:{512*s} sc1")
        for i in range(D0, NK):
            if i >= win(i): a(f"s_waitcnt vmcnt({win(i)-1})")
            kv_load(SRD1, KT, i, 75)
            if i == n1:
                L = self.lab("b2")
                a(f"v_and_b32 v{tmp+3}, 31, v1"); a(f"v_lshlrev_b32 v{tmp+3}, 4, v{tmp+3}")
                a(f"s_mul_i32 s76, s{sH}, 2560"); a(f"s_add_u32 s76, s76, {WS_QB}")
                a(f"s_cmp_eq_u32 s{sW}, 1"); a(f"s_cbranch_scc0 {L}")
                gather_q()
                a(f"{L}:")
            if i == n2:
                L = self.lab("b3"); a(f"s_cmp_eq_u32 s{sW}, 1"); a(f"s_cbranch_scc0 {L}")
                self.poll_loop(gather_q, [G + 4 * s + 3 for s in range(5)], first_issued=True,
                               first_wait=f"s_waitcnt vmcnt({n2-n1})", name="bq")
                for s in range(5): self.unpack(G + 4 * s)
                self.tree_add(G, 5)
                a(f"v_cvt_pk_bf16_f32 v{G}, v{G}, v{G+1}")
                a(f"v_cvt_pk_bf16_f32 v{G+1}, v{G+2}, v{G+3}")
                a(f"v_lshrrev_b32 v{tmp+3}, 1, v{tmp+3}")
                self.exec_lo32()
                a(f"ds_write_b64 v{tmp+3}, {V(G,2)} offset:{L_Q}")
                a("s_mov_b32 exec_lo, 1")
                a(f"v_mov_b32 v{tmp+3}, 0")
                a(f"ds_write_b32 v{tmp+3}, v{vOne} offset:{L_F+32}")
                self.exec_full()
                a(f"{L}:")
        self.stamp(2)
        if self.bar & 1: a("s_barrier")
        a("s_mov_b32 s75, s72")
        def wait_q():
            a(f"v_and_b32 v{tmp}, 15, v1"); a(f"v_lshlrev_b32 v{tmp}, 4, v{tmp}"); a(f"v_mov_b32 v{tmp+4}, 0")
            def rd():
                a(f"ds_read_b32 v{tmp+2}, v{tmp+4} offset:{L_F+32}")
                a(f"ds_read_b128 {V(QF)}, v{tmp} offset:{L_Q}")
            self.lds_spin(rd, [tmp + 2], "bq2")
        def kgroup(k):
            n = min(4, NK - 4 * k)
            for r in range(4):
                for u in range(n):
                    kreg = KT + 4 * (4 * k + u) + r
                    if r == 0: a(f"v_dot2_f32_bf16 v{T+u}, v{kreg}, v{QF}, 0")
                    else: a(f"v_dot2c_f32_bf16 v{T+u}, v{kreg}, v{QF+r}")
            if n < 4:
                a(f"v_mov_b32 v{T0}, {f2u(NEG):#x}"); a(f"v_mov_b32 v{T1}, {f2u(NEG):#x}")
                a(f"v_add_f32 v{T+1}, s{sBias}, v{T+1}")
            a(f"v_add_f32_dpp v{T0}, v{T}, v{T} row_ror:8 row_mask:0xf bank_mask:0x3")
            a(f"v_add_f32_dpp v{T1}, v{T+1}, v{T+1} row_ror:8 row_mask:0xf bank_mask:0x3")
            if n == 4:
                a(f"v_add_f32_dpp v{T0}, v{T+2}, v{T+2} row_ror:8 row_mask:0xf bank_mask:0xc")
                a(f"v_add_f32_dpp v{T1}, v{T+3}, v{T+3} row_ror:8 row_mask:0xf bank_mask:0xc")
            a(f"v_add_f32_dpp v{U+k}, v{T0}, v{T0} row_half_mirror row_mask:0xf bank_mask:0x5")
            a(f"v_add_f32_dpp v{U+k}, v{T1}, v{T1} row_half_mirror row_mask:0xf bank_mask:0xa")
            a(f"v_add_f32_dpp v{U+k}, v{U+k}, v{U+k} quad_perm:[2,3,0,1] row_mask:0xf bank_mask:0xf")
            a(f"v_add_f32_dpp v{U+k}, v{U+k}, v{U+k} quad_perm:[1,0,3,2] row_mask:0xf bank_mask:0xf")
        def allreduce_rows(r, op, t):
            a(f"v_mov_b32 v{t}, v{r}"); a(f"v_permlane16_swap_b32 v{r}, v{t}"); a(f"{op} v{r}, v{r}, v{t}")
            a(f"v_mov_b32 v{t}, v{r}"); a(f"v_permlane32_swap_b32 v{r}, v{t}"); a(f"{op} v{r}, v{r}, v{t}")
        vM, vLs = tmp, tmp + 1
        def softmax():
            a(f"v_max3_f32 v{vM}, v{U}, v{U+1}, v{U+2}")
            a(f"v_max3_f32 v{vM}, v{vM}, v{U+3}, v{U+4}")
            a(f"v_max3_f32 v{vM}, v{vM}, v{U+5}, v{U+6}")
            a(f"v_max_f32_dpp v{vM}, v{vM}, v{vM} row_ror:4 row_mask:0xf bank_mask:0xf")
            a(f"v_max_f32_dpp v{vM}, v{vM}, v{vM} row_ror:8 row_mask:0xf bank_mask:0xf")
            allreduce_rows(vM, "v_max_f32", tmp + 2)
            a(f"v_mul_f32 v{vM}, s{sC1}, v{vM}")
            a(f"v_mov_b32 v{tmp+2}, v{vM}"); a(f"v_mov_b32 v{tmp+3}, 1")
            a(f"s_lshl_b32 s68, s{sW}, 3"); a(f"v_mov_b32 v{tmp+4}, s68")
            a("s_mov_b64 exec, 1")
            a(f"ds_write_b64 v{tmp+4}, {V(tmp+2,2)} offset:{L_M}")
            self.exec_full()
            for k in range(7):
                a(f"v_fma_f32 v{U+k}, v{U+k}, s{sC1}, -v{vM}")
            for k in range(7):
                a(f"v_exp_f32 v{U+k}, v{U+k}")
            a(f"v_add_f32 v{vLs}, v{U}, v{U+1}")
            for k in range(2, 7): a(f"v_add_f32 v{vLs}, v{vLs}, v{U+k}")
            for k in range(7): a(f"v_cvt_pk_bf16_f32 v{U+k}, v{U+k}, v{U+k}")
            a(f"v_add_f32_dpp v{vLs}, v{vLs}, v{vLs} row_ror:4 row_mask:0xf bank_mask:0xf")
            a(f"v_add_f32_dpp v{vLs}, v{vLs}, v{vLs} row_ror:8 row_mask:0xf bank_mask:0xf")
            allreduce_rows(vLs, "v_add_f32", tmp + 2)
        def pv_and(i):
            ab = AB + 4 * (i & 1)
            for t in range(4):
                a(f"v_and_b32_dpp v{ab+t}, v{U+(i>>2)}, v{M0+t} row_newbcast:{4*(i&3)} row_mask:0xf bank_mask:0xf")
        def pv_mfma(i):
            ab = AB + 4 * (i & 1)
            a(f"v_mfma_f32_16x16x32_bf16 {V(DD)}, {V(ab)}, {V(VT+4*i)}, {'0' if i == 0 else V(DD)}")
        pv = 0
        SM = 14
        D = self.Dv
        for i in range(NK):
            a(f"s_waitcnt vmcnt({D-1})")
            kv_load(SRD2, VT, i, 75)
            if i == 1: wait_q()
            if i == 13 and self.bar & 2: a("s_barrier")
            if i < SM and i % 2 == 1 and i // 2 < 7: kgroup(i // 2)
            if i == SM - 1:
                softmax(); pv_and(0)
            if i >= SM:
                lim = i - D
                for _ in range(2):
                    if pv <= lim:
                        pv_and(pv + 1); pv_mfma(pv); pv += 1
        self.stamp(3)
        WO = KT + 24
        a(f"v_lshrrev_b32 v{tmp+4}, 4, v1"); a("s_movk_i32 s68, 5120"); a(f"v_mul_u32_u24 v{tmp+4}, s68, v{tmp+4}")
        a(f"v_and_b32 v{tmp+5}, 15, v1"); a(f"v_lshl_add_u32 v{tmp+4}, v{tmp+5}, 4, v{tmp+4}")
        a(f"s_lshl_b32 s68, s{sH}, 3"); a(f"s_add_u32 s68, s68, s{sW}"); a(f"s_mul_i32 s69, s68, {16*1280}"); a(f"s_lshl_b32 s68, s{sSub}, 8"); a("s_add_u32 s69, s69, s68")
        self.srd(SRD3, pWOB, 4096 * 1280)
        for rg in range(4):
            a(f"buffer_load_dwordx4 {V(WO+4*rg)}, v{tmp+4}, {S(SRD3)}, s69 offen offset:{1280*rg} {self.nt}")
        a(f"v_mov_b32 v{tmp+4}, 0")
        R8 = KT
        def rdm():
            for k in range(4): a(f"ds_read_b128 {V(R8+4*k)}, v{tmp+4} offset:{L_M+16*k}")
        self.lds_spin(rdm, [R8 + 2 * k + 1 for k in range(8)], "bm")
        vMc = R8 + 16; vF = R8 + 17
        a(f"v_max3_f32 v{vMc}, v{R8}, v{R8+2}, v{R8+4}")
        a(f"v_max3_f32 v{vMc}, v{vMc}, v{R8+6}, v{R8+8}")
        a(f"v_max3_f32 v{vMc}, v{vMc}, v{R8+10}, v{R8+12}")
        a(f"v_max_f32 v{vMc}, v{vMc}, v{R8+14}")
        a(f"v_sub_f32 v{vF}, v{vM}, v{vMc}")
        a(f"v_exp_f32 v{vF}, v{vF}")
        a(f"v_mul_f32 v{vLs}, v{vLs}, v{vF}")
        vG = R8 + 18; vZ = R8 + 19
        a(f"v_lshrrev_b32 v{vG}, 4, v1"); a(f"v_lshlrev_b32 v{vG}, 4, v{vG}"); a(f"v_mov_b32 v{vZ}, 0")
        a(f"s_mul_i32 s76, s{sH}, 2560"); a(f"s_add_u32 s78, s76, {WS_OB}"); a(f"s_lshl_b32 s68, s{sW}, 6"); a("s_add_u32 s76, s78, s68")
        a(f"s_lshl_b32 s77, s{sH}, 7"); a(f"s_add_u32 s77, s77, {WS_MLB}")
        while pv < NK:
            a(f"s_waitcnt vmcnt({NK-1-pv+4})")
            if pv + 1 < NK: pv_and(pv + 1)
            pv_mfma(pv); pv += 1
        self.stamp(4)
        for v in range(4): a(f"v_mul_f32 v{DD+v}, v{vF}, v{DD+v}")
        self.exec_lo32()
        a(f"ds_write_b128 v{vA}, {V(DD)} offset:{L_O}")
        a("s_mov_b32 exec_lo, 1")
        a(f"ds_write_b32 v{tmp+5}, v{vLs} offset:{L_L}") if False else None
        a(f"s_lshl_b32 s68, s{sW}, 2"); a(f"v_mov_b32 v{tmp+4}, s68")
        a(f"ds_write_b32 v{tmp+4}, v{vLs} offset:{L_L}")
        self.exec_full()
        a("s_waitcnt lgkmcnt(0)")
        a("s_barrier")
        L = self.lab("b4"); a(f"s_cmp_eq_u32 s{sW}, 0"); a(f"s_cbranch_scc0 {L}")
        a(f"v_and_b32 v{tmp}, 31, v1"); a(f"v_lshlrev_b32 v{tmp}, 4, v{tmp}")
        G2 = VT
        for k in range(8): a(f"ds_read_b128 {V(G2+4*k)}, v{tmp} offset:{L_O+512*k}")
        a(f"v_mov_b32 v{tmp+4}, 0")
        a(f"ds_read_b128 {V(G2+32)}, v{tmp+4} offset:{L_L}")
        a(f"ds_read_b128 {V(G2+36)}, v{tmp+4} offset:{L_L+16}")
        a(f"s_lshl_b32 s68, s{sSub}, 9"); a("s_add_u32 s68, s68, s78")
        a(f"s_lshl_b32 s69, s{sSub}, 4"); a("s_add_u32 s69, s69, s77")
        a("s_waitcnt lgkmcnt(2)")
        self.tree_add(G2, 8)
        self.pack(G2, vTag)
        self.exec_lo32()
        a(f"buffer_store_dwordx4 {V(G2)}, v{tmp}, {WS}, s68 offen sc1")
        a("s_waitcnt lgkmcnt(0)")
        ML = G2 + 40
        a(f"v_pk_add_f32 {V(G2+32,2)}, {V(G2+32,2)}, {V(G2+34,2)}")
        a(f"v_pk_add_f32 {V(G2+36,2)}, {V(G2+36,2)}, {V(G2+38,2)}")
        a(f"v_pk_add_f32 {V(G2+32,2)}, {V(G2+32,2)}, {V(G2+36,2)}")
        a(f"v_mov_b32 v{ML}, v{vMc}")
        a(f"v_add_f32 v{ML+1}, v{G2+32}, v{G2+33}")
        a(f"v_mov_b32 v{ML+2}, 0"); a(f"v_mov_b32 v{ML+3}, v{vTag}")
        a("s_mov_b32 exec_lo, 1")
        a(f"buffer_store_dwordx4 {V(ML)}, v{vZ}, {WS}, s69 offen sc1")
        self.exec_full()
        a(f"{L}:")
        self.stamp(5)
        EG = VT + 48
        def gather_ob():
            for s in range(5): a(f"buffer_load_dwordx4 {V(EG+4*s)}, v{vG}, {WS}, s76 offen offset:{512*s} sc1")
            for s in range(5): a(f"buffer_load_dwordx4 {V(EG+20+4*s)}, v{vZ}, {WS}, s77 offen offset:{16*s} sc1")
        self.poll_loop(gather_ob, [EG + 4 * s + 3 for s in range(10)], sleep=0, name="bob")
        self.stamp(6)
        ME = EG + 20
        vMx = T; vL = T + 1; O = U
        a(f"v_max3_f32 v{vMx}, v{ME}, v{ME+4}, v{ME+8}"); a(f"v_max3_f32 v{vMx}, v{vMx}, v{ME+12}, v{ME+16}")
        for s in range(5): a(f"v_sub_f32 v{ME+4*s}, v{ME+4*s}, v{vMx}")
        for s in range(5): a(f"v_exp_f32 v{ME+4*s}, v{ME+4*s}")
        for s in range(5): self.unpack(EG + 4 * s)
        a(f"v_mul_f32 v{vL}, v{ME}, v{ME+1}")
        for s in range(1, 5): a(f"v_fmac_f32 v{vL}, v{ME+4*s}, v{ME+4*s+1}")
        for v in range(4): a(f"v_mul_f32 v{O+v}, v{ME}, v{EG+v}")
        a(f"v_rcp_f32 v{vL}, v{vL}")
        for s in range(1, 5):
            for v in range(4): a(f"v_fmac_f32 v{O+v}, v{ME+4*s}, v{EG+4*s+v}")
        for v in range(4): a(f"v_mul_f32 v{O+v}, v{vL}, v{O+v}")
        for v in range(4): a(f"v_cvt_pk_bf16_f32 v{O+v}, v{O+v}, v{O+v}")
        self.rowacc(DD, AB, M0, 4, lambda i: (O + i, None), lambda i: WO + 4 * i)
        self.exec_lo32()
        a(f"ds_write_b128 v{vA}, {V(DD)} offset:{L_Y}")
        self.exec_full()
        a("s_waitcnt lgkmcnt(0)")
        a("s_barrier")
        L = self.lab("b5"); a(f"s_cmp_eq_u32 s{sW}, 0"); a(f"s_cbranch_scc0 {L}")
        a(f"v_and_b32 v{tmp}, 31, v1"); a(f"v_lshlrev_b32 v{tmp}, 4, v{tmp}")
        for k in range(8): a(f"ds_read_b128 {V(G2+4*k)}, v{tmp} offset:{L_Y+512*k}")
        a(f"s_mul_i32 s68, s{sH}, 2560"); a(f"s_lshl_b32 s69, s{sSub}, 9"); a("s_add_u32 s68, s68, s69"); a(f"s_add_u32 s68, s68, {WS_YB}")
        a("s_waitcnt lgkmcnt(0)")
        self.tree_add(G2, 8)
        self.pack(G2, vTag)
        self.exec_lo32()
        a(f"buffer_store_dwordx4 {V(G2)}, v{tmp}, {WS}, s68 offen sc1")
        self.exec_full()
        a(f"{L}:")
        self.stamp(7)
        self.finish("B")

    def tree_add(self, base, n):
        a = self.a; V = self.V
        step = 1
        while step < n:
            for k in range(0, n, 2 * step):
                if k + step < n:
                    for hh in (0, 2):
                        a(f"v_pk_add_f32 {V(base+4*k+hh,2)}, {V(base+4*k+hh,2)}, {V(base+4*(k+step)+hh,2)}")
            step *= 2

    def row_allreduce(self, regs, op, steps=(8, 4, 2, 1)):
        a = self.a
        for st in steps:
            for r in regs: a(f"{op}_dpp v{r}, v{r}, v{r} row_ror:{st} row_mask:0xf bank_mask:0xf")
    def rowacc(self, DD, AB, M0, n, coef, tile, first_zero=True):
        a = self.a; V = self.V
        def ands(i):
            src, mod = coef(i); ab = AB + 4 * (i & 1)
            for t in range(4):
                if mod: a(f"v_and_b32_dpp v{ab+t}, v{src}, v{M0+t} {mod} row_mask:0xf bank_mask:0xf")
                else: a(f"v_and_b32 v{ab+t}, v{src}, v{M0+t}")
        ands(0)
        for i in range(n):
            if i + 1 < n: ands(i + 1)
            ab = AB + 4 * (i & 1)
            a(f"v_mfma_f32_16x16x32_bf16 {V(DD)}, {V(ab)}, {V(tile(i))}, {'0' if (i == 0 and first_zero) else V(DD)}")

    def role_PR(self):
        a = self.a; V = self.V; S = self.S
        vWQ, vUK, M0, QF, DD, AB, T, U, vTag = 2, 3, 4, 8, 12, 16, 24, 32, 36
        vUV, vWO, vLD, vX, tmp = 37, 38, 39, 36, 40
        WQ, X, UK, UV, WO, G = 48, 88, 96, 128, 160, 224
        WB = 64
        self.code_prefetch("L_PR", "L_Q", 254, 255, 1)
        a(f"s_lshr_b32 s68, s7, 1"); a(f"s_add_u32 s{sH}, s6, s68"); a(f"s_and_b32 s{sSub}, s7, 1")
        a(f"v_lshrrev_b32 v{tmp}, 3, v1"); a(f"v_and_b32 v{tmp+1}, 7, v1")
        a(f"v_lshrrev_b32 v{tmp+2}, 4, v1"); a(f"v_and_b32 v{tmp+3}, 15, v1")
        a(f"v_lshlrev_b32 v{tmp+1}, 4, v{tmp+1}"); a(f"v_lshlrev_b32 v{tmp+3}, 4, v{tmp+3}")
        a("s_mov_b32 s68, 81920"); a(f"v_mad_u32_u24 v{vWQ}, v{tmp}, s68, v{tmp+1}")
        a(f"v_lshl_add_u32 v{vUK}, v{tmp+2}, 16, v{tmp+3}")
        a(f"v_lshl_add_u32 v{vUV}, v{tmp}, 16, v{tmp+1}")
        a("s_mov_b32 s68, 20480"); a(f"v_mad_u32_u24 v{vWO}, v{tmp+2}, s68, v{tmp+3}")
        a("s_mul_i32 s68, s7, 160"); a(f"v_mul_u32_u24 v{vX}, 20, v{tmp}"); a(f"v_add_u32 v{vX}, s68, v{vX}")
        a(f"s_mul_i32 s72, s7, {80*8192}"); a("s_lshl_b32 s69, s6, 8"); a("s_add_u32 s72, s72, s69"); a(f"s_lshl_b32 s70, s{sW}, 7"); a("s_add_u32 s72, s72, s70")
        a(f"s_lshr_b32 s70, s{sW}, 2"); a("s_lshl_b32 s71, s7, 1"); a("s_add_u32 s70, s70, s71")
        a("s_lshl_b32 s73, s70, 18"); a("s_add_u32 s73, s73, s69"); a(f"s_and_b32 s71, s{sW}, 3"); a("s_lshl_b32 s71, s71, 8"); a("s_add_u32 s73, s73, s71")
        a(f"s_lshl_b32 s69, s{sH}, 8"); a(f"s_lshl_b32 s71, s{sSub}, 7"); a("s_add_u32 s71, s71, s69")
        a(f"s_lshl_b32 s74, s{sW}, 19"); a("s_add_u32 s74, s74, s71")
        a("s_waitcnt lgkmcnt(0)")
        self.srd(SRD1, pWQA, 640 * 8192)
        a(f"global_load_dwordx4 {V(X)}, v{vX}, s[{pAX}:{pAX+1}]")
        a(f"global_load_dword v{X+4}, v{vX}, s[{pAX}:{pAX+1}] offset:16")
        for i in range(10):
            if i: a("s_add_u32 s72, s72, 8192")
            a(f"buffer_load_dwordx4 {V(WQ+4*i)}, v{vWQ}, {S(SRD1)}, s72 offen {self.nt}")
        self.srd(SRD2, pWUK, 512 * 8192)
        a("s_barrier")
        def uk_load(i):
            if i: a("s_add_u32 s73, s73, 8192")
            a(f"buffer_load_dwordx4 {V(UK+4*i)}, v{vUK}, {S(SRD2)}, s73 offen {self.nt}")
        NU = self.nu
        for i in range(NU): uk_load(i)
        self.common2()
        self.srd(SRD3, pWUV, 512 * 8192); self.srd(SRD4, pWOA, 4096 * 1280)
        if self.tlb:
            a(f"s_mul_i32 s68, s{sH}, {128*1280}"); a(f"s_lshl_b32 s69, s{sH}, 16"); a(f"s_add_u32 s69, s69, {WS_CTX}")
            a(f"s_mov_b32 s70, {WS_QA}"); a("s_mov_b32 s71, 0x200000")
            self.tlb_warm([(S(SRD3), "0"), (S(SRD3), "s71"), (S(SRD4), "s68"), (WS, "s69"), (WS, "s70")], 254, 255)
            a(f"s_lshr_b32 s70, s{sW}, 2"); a("s_lshl_b32 s71, s7, 1"); a("s_add_u32 s70, s70, s71")
        self.masks(M0, 1, tmp, tmp + 1)
        a(f"v_and_b32 v{tmp}, 7, v1"); a(f"v_bfe_u32 v{tmp+1}, v1, 4, 1"); a(f"v_lshl_add_u32 v{tmp}, v{tmp}, 1, v{tmp+1}")
        a(f"v_lshlrev_b32 v{tmp+2}, 4, v{tmp}")
        a(f"v_lshrrev_b32 v{tmp+1}, 5, v1"); a(f"v_lshl_add_u32 v{tmp}, v{tmp+1}, 4, v{tmp}")
        a(f"v_lshlrev_b32 v{tmp}, 4, v{tmp}"); a(f"s_lshl_b32 s68, s{sW}, 9"); a(f"v_add_u32 v{vLD}, s68, v{tmp}")
        a(f"s_lshr_b32 s68, s{sW}, 1"); a("s_add_u32 s68, s68, s6"); a("s_lshl_b32 s68, s68, 3"); a("s_add_u32 s68, s68, s7"); a("s_lshl_b32 s68, s68, 9")
        a(f"s_and_b32 s69, s{sW}, 1"); a("s_lshl_b32 s69, s69, 8"); a("s_add_u32 s68, s68, s69"); a(f"s_add_u32 s78, s68, {WS_QA}")
        a(f"s_and_b32 s68, s{sW}, 3"); a("s_add_u32 s79, s68, s6"); a("s_lshl_b32 s76, s79, 12"); a(f"s_add_u32 s76, s76, {WS_QA}")
        a(f"s_waitcnt vmcnt({NU})")
        self.stamp(1)
        for i in range(10):
            a(f"v_perm_b32 v{WO+i}, v{X+(i>>1)}, v{X+(i>>1)}, s{sHi if i & 1 else sLo}")
        self.rowacc(DD, AB, M0, 10, lambda i: (WO + i, None), lambda i: WQ + 4 * i)
        self.tag(vTag)
        for v in range(4): a(f"v_mov_b32 v{T+v}, v{DD+v}")
        for v in range(4): a(f"v_permlane32_swap_b32 v{DD+v}, v{T+v}")
        for v in range(4): a(f"v_add_f32_dpp v{DD+v}, v{T+v}, v{DD+v} row_shl:8 row_mask:0xf bank_mask:0x3")
        self.pack(DD, vTag)
        a("s_mov_b32 exec_lo, 0x00ff00ff"); a("s_mov_b32 exec_hi, 0")
        a(f"buffer_store_dwordx4 {V(DD)}, v{tmp+2}, {WS}, s78 offen sc1")
        self.exec_full()
        self.stamp(2)
        for i in range(NU, 8): uk_load(i)
        a(f"v_and_b32 v{tmp}, 31, v1"); a(f"v_lshlrev_b32 v{tmp}, 4, v{tmp}")
        a(f"v_lshrrev_b32 v{tmp+1}, 5, v1"); a(f"v_lshl_add_u32 v{tmp+1}, v{tmp+1}, 9, v{tmp}")
        GQ = 224
        def gather_q():
            for i in range(4): a(f"buffer_load_dwordx4 {V(GQ+4*i)}, v{tmp+1}, {WS}, s76 offen offset:{1024*i} sc1")
        a("s_waitcnt vmcnt(2)")
        self.poll_loop(gather_q, [GQ + 4 * i + 3 for i in range(4)], sleep=0, name="pq")
        for i in range(4): self.unpack(GQ + 4 * i)
        self.tree_add(GQ, 4)
        for v in range(4): a(f"v_mov_b32 v{T+v}, v{GQ+v}")
        for v in range(4): a(f"v_permlane32_swap_b32 v{GQ+v}, v{T+v}")
        for v in range(4): a(f"v_add_f32 v{GQ+v}, v{GQ+v}, v{T+v}")
        a(f"v_cvt_pk_bf16_f32 v{GQ}, v{GQ}, v{GQ+1}"); a(f"v_cvt_pk_bf16_f32 v{GQ+1}, v{GQ+2}, v{GQ+3}")
        a(f"s_lshl_b32 s68, s{sW}, 8"); a(f"v_lshrrev_b32 v{tmp}, 1, v{tmp}"); a(f"v_add_u32 v{tmp}, s68, v{tmp}")
        self.exec_lo32()
        a(f"ds_write_b64 v{tmp}, {V(GQ,2)} offset:8192")
        self.exec_full()
        a(f"v_and_b32 v{tmp}, 15, v1"); a(f"v_lshlrev_b32 v{tmp}, 4, v{tmp}"); a(f"v_add_u32 v{tmp}, s68, v{tmp}")
        a("s_waitcnt lgkmcnt(0)")
        a(f"ds_read_b128 {V(QF)}, v{tmp} offset:8192")
        a("s_waitcnt lgkmcnt(0)")
        self.stamp(3)
        for r in range(4):
            for i in range(8):
                if r == 0: a(f"v_dot2_f32_bf16 v{T+i}, v{UK+4*i}, v{QF}, 0")
                else: a(f"v_dot2c_f32_bf16 v{T+i}, v{UK+4*i+r}, v{QF+r}")
        for k in range(4): a(f"v_add_f32_dpp v{U+k}, v{T+k}, v{T+k} row_ror:8 row_mask:0xf bank_mask:0x3")
        for k in range(4): a(f"v_add_f32_dpp v{U+k}, v{T+k+4}, v{T+k+4} row_ror:8 row_mask:0xf bank_mask:0xc")
        for k in range(4): a(f"v_add_f32_dpp v{U+k}, v{U+k}, v{U+k} row_half_mirror row_mask:0xf bank_mask:0xf")
        for k in range(4): a(f"v_add_f32_dpp v{U+k}, v{U+k}, v{U+k} quad_perm:[2,3,0,1] row_mask:0xf bank_mask:0xf")
        for k in range(4): a(f"v_add_f32_dpp v{U+k}, v{U+k}, v{U+k} quad_perm:[1,0,3,2] row_mask:0xf bank_mask:0xf")
        a(f"v_lshrrev_b32 v{tmp}, 3, v1"); a(f"v_lshlrev_b32 v{tmp}, 4, v{tmp}")
        a("s_lshl_b32 s68, s79, 11"); a("s_lshl_b32 s69, s70, 7"); a("s_add_u32 s68, s68, s69"); a(f"s_add_u32 s68, s68, {WS_QABS}")
        self.pack(U, vTag)
        a("s_mov_b32 exec_lo, 0x01010101"); a("s_mov_b32 exec_hi, 0x01010101")
        a(f"buffer_store_dwordx4 {V(U)}, v{tmp}, {WS}, s68 offen sc1")
        self.exec_full()
        self.stamp(4)
        a("s_barrier")
        for i in range(8):
            if i: a(f"s_add_u32 s74, s74, {1024 if 'uv' in self.lin else 8192}")
            a(f"buffer_load_dwordx4 {V(UV+4*i)}, v{vUV}, {S(SRD3)}, s74 offen {self.nt}")
        a(f"s_lshl_b32 s68, s{sH}, 1"); a(f"s_add_u32 s77, s68, s{sSub}")
        a(f"s_mul_i32 s75, s77, {64*1280}"); a(f"s_lshl_b32 s68, s{sW}, 8"); a("s_add_u32 s75, s75, s68")
        L = self.lab("p2"); a(f"s_cmp_lt_u32 s{sW}, 5"); a(f"s_cbranch_scc0 {L}")
        for i in range(16):
            if i and i % 4 == 0: a("s_add_u32 s75, s75, 5120")
            o = 1280 * (i % 4)
            a(f"buffer_load_dwordx4 {V(WO+4*i)}, v{vWO}, {S(SRD4)}, s75 offen offset:{o} {self.nt}")
        a(f"{L}:")
        ML, CT = 48, 224
        a(f"v_bfe_u32 v{tmp}, v1, 2, 2"); a(f"v_and_b32 v{tmp+1}, 3, v1")
        a(f"v_lshlrev_b32 v{tmp+2}, 7, v{tmp}"); a(f"v_lshl_add_u32 v{tmp+2}, v{tmp+1}, 5, v{tmp+2}")
        a(f"v_lshrrev_b32 v{tmp+3}, 4, v1"); a(f"v_lshl_add_u32 v{tmp+3}, v{tmp+3}, 2, v{tmp+1}")
        a(f"v_lshlrev_b32 v{tmp+3}, 4, v{tmp+3}"); a(f"v_lshl_add_u32 v{tmp+3}, v{tmp}, 14, v{tmp+3}")
        a(f"s_lshl_b32 s76, s{sH}, 9"); a(f"s_add_u32 s76, s76, {WS_ML}")
        a(f"s_lshl_b32 s78, s{sH}, 16"); a(f"s_lshl_b32 s68, s{sW}, 8"); a("s_add_u32 s78, s78, s68"); a(f"s_add_u32 s78, s78, {WS_CTX}")
        def gather_ml():
            a(f"buffer_load_dwordx4 {V(ML)}, v{tmp+2}, {WS}, s76 offen sc1")
            a(f"buffer_load_dwordx4 {V(ML+4)}, v{tmp+2}, {WS}, s76 offen offset:16 sc1")
        self.poll_loop(gather_ml, [ML + 3, ML + 7], sleep=4, name="pml")
        self.stamp(5)
        def gather_ctx():
            for i in range(8):
                a(f"s_add_u32 s79, s78, {4096*(i>>1)}") if i % 2 == 0 else None
                a(f"buffer_load_dwordx4 {V(CT+4*i)}, v{tmp+3}, {WS}, s79 offen offset:{2048*(i&1)} sc1")
        gather_ctx()
        vM, wA, wB, vL = T, T + 1, T + 2, T + 3
        a(f"v_max_f32 v{vM}, v{ML}, v{ML+4}")
        self.row_allreduce([vM], "v_max_f32")
        a(f"v_sub_f32 v{wA}, v{ML}, v{vM}"); a(f"v_sub_f32 v{wB}, v{ML+4}, v{vM}")
        a(f"v_exp_f32 v{wA}, v{wA}"); a(f"v_exp_f32 v{wB}, v{wB}")
        a(f"v_mul_f32 v{vL}, v{wA}, v{ML+1}"); a(f"v_fmac_f32 v{vL}, v{wB}, v{ML+5}")
        self.row_allreduce([vL], "v_add_f32")
        a(f"v_rcp_f32 v{vL}, v{vL}")
        a(f"v_mul_f32 v{wA}, v{wA}, v{vL}"); a(f"v_mul_f32 v{wB}, v{wB}, v{vL}")
        self.poll_loop(gather_ctx, [CT + 4 * i + 3 for i in range(8)], first_issued=True, first_wait="s_waitcnt vmcnt(0)", name="pctx")
        self.stamp(6)
        AC = U
        for i in range(8): self.unpack(CT + 4 * i)
        for i in range(8):
            q = i >> 1
            for v in range(4):
                op = "v_mul_f32_dpp" if i == 0 else "v_fmac_f32_dpp"
                a(f"{op} v{AC+v}, v{wB if i & 1 else wA}, v{CT+4*i+v} quad_perm:[{q},{q},{q},{q}] row_mask:0xf bank_mask:0xf")
        self.row_allreduce([AC + v for v in range(4)], "v_add_f32", steps=(4, 8))
        for v in range(4): a(f"v_cvt_pk_bf16_f32 v{AC+v}, v{AC+v}, v{AC+v}")
        for v in range(4): a(f"v_mov_b32_dpp v{AC+v}, v{AC+v} quad_perm:[2,3,0,1] row_mask:0xf bank_mask:0xc")
        self.rowacc(DD, AB, M0, 8, lambda i: (AC + (i & 3), "quad_perm:[%d,%d,%d,%d]" % ((i >> 2,) * 4)), lambda i: UV + 4 * i)
        a("s_mov_b32 exec_lo, 0x00ff00ff"); a("s_mov_b32 exec_hi, 0xff00ff00")
        a(f"ds_write_b128 v{vLD}, {V(DD)} offset:4096")
        self.exec_full()
        a("s_waitcnt lgkmcnt(0)")
        a("s_barrier")
        Le = self.lab("pend")
        a(f"s_cmp_lt_u32 s{sW}, 5"); a(f"s_cbranch_scc0 {Le}")
        CF = 48
        a(f"v_lshrrev_b32 v{tmp}, 4, v1"); a(f"v_and_b32 v{tmp+1}, 3, v1"); a(f"v_lshl_add_u32 v{tmp}, v{tmp}, 2, v{tmp+1}")
        a(f"v_lshlrev_b32 v{tmp+4}, 4, v{tmp}"); a(f"v_bfe_u32 v{tmp+1}, v1, 2, 2"); a(f"v_lshl_add_u32 v{tmp}, v{tmp+1}, 10, v{tmp+4}")
        for k in range(4): a(f"ds_read_b128 {V(CF+4*k)}, v{tmp} offset:{4096+256*k}")
        a(f"v_and_b32 v{tmp+2}, 15, v1"); a(f"v_bfe_u32 v{tmp+3}, v1, 4, 1"); a(f"v_lshl_add_u32 v{tmp+2}, v{tmp+2}, 1, v{tmp+3}"); a(f"v_lshlrev_b32 v{tmp+2}, 4, v{tmp+2}")
        a(f"s_mul_i32 s68, s77, 2560"); a(f"s_lshl_b32 s69, s{sW}, 9"); a("s_add_u32 s68, s68, s69"); a(f"s_add_u32 s68, s68, {WS_YA}")
        a("s_waitcnt lgkmcnt(0)")
        self.tree_add(CF, 4)
        self.row_allreduce([CF + v for v in range(4)], "v_add_f32", steps=(4, 8))
        for v in range(4): a(f"v_cvt_pk_bf16_f32 v{CF+v}, v{CF+v}, v{CF+v}")
        self.rowacc(DD, AB, M0, 16, lambda i: (CF + (i & 3), "quad_perm:[%d,%d,%d,%d]" % ((i >> 2,) * 4)), lambda i: WO + 4 * i)
        self.pack(DD, vTag)
        self.exec_lo32()
        a(f"buffer_store_dwordx4 {V(DD)}, v{tmp+2}, {WS}, s68 offen sc1")
        self.exec_full()
        self.stamp(7)
        a(f"{Le}:")
        self.finish("PR")

    def role_Q(self):
        a = self.a; V = self.V; S = self.S
        vL16, M0, Z, DS, AB, G, vTag = 2, 4, 8, 16, 24, 32, 3
        SA, PA = 64, 192
        tmp = 12
        t2 = 24
        a("; ---------------- role Q ----------------")
        self.code_prefetch("L_Q", "L_end", 14, 32, 1)
        a(f"s_sub_u32 s7, s7, 8"); a(f"s_add_u32 s{sH}, s6, s7")
        a(f"v_lshlrev_b32 v{vL16}, 4, v1")
        a(f"s_lshl_b32 s72, s{sH}, 17"); a(f"s_lshl_b32 s68, s{sW}, 14"); a("s_add_u32 s72, s72, s68")
        a(f"s_lshl_b32 s73, s{sW}, 14")
        a("s_waitcnt lgkmcnt(0)")
        self.srd(SRD1, pCKV, 4096 * 1024)
        for r in range(16):
            f = (r & 8) | ((r & 3) << 1)
            a(f"v_xor_b32 v{tmp + (r & 1)}, {16*f}, v{vL16}")
            a(f"s_add_u32 m0, s73, {1024*r}")
            if r % 4 == 0 and r: a("s_add_u32 s72, s72, 4096")
            a(f"buffer_load_dwordx4 v{tmp + (r & 1)}, {S(SRD1)}, s72 offen offset:{1024*(r%4)} nt lds") if False else None
            a(f"s_add_u32 s74, s72, {1024*(r%4)}")
            a(f"buffer_load_dwordx4 v{tmp + (r & 1)}, {S(SRD1)}, s74 offen {self.nt} lds")
        self.common2()
        if self.tlb:
            a(f"s_mov_b32 s68, {WS_QABS}"); a(f"s_mov_b32 s69, {WS_CTX}"); a(f"s_mov_b32 s70, {WS_CTX + 0x100000}")
            self.tlb_warm([(WS, "s68"), (WS, "s69"), (WS, "s70"), (OUT, "0")], 33, 32)
        a(f"v_and_b32 v{tmp}, 3, v1"); a(f"v_lshlrev_b32 v{tmp}, 1, v{tmp}"); a(f"v_and_b32 v{tmp+1}, 8, v1"); a(f"v_or_b32 v{tmp}, v{tmp}, v{tmp+1}")
        a(f"v_lshrrev_b32 v{tmp+1}, 4, v1"); a(f"v_xor_b32 v{tmp}, v{tmp}, v{tmp+1}"); a(f"v_lshlrev_b32 v{tmp}, 4, v{tmp}")
        for m in range(4): a(f"v_xor_b32 v{Z+m}, {64*m}, v{tmp}")
        a(f"v_and_b32 v{tmp+2}, 15, v1")
        a(f"s_and_b32 s68, s{sW}, 3"); a("s_lshl_b32 s68, s68, 15"); a(f"v_lshl_add_u32 v{tmp+3}, v{tmp+2}, 10, s68")
        for m in range(4): a(f"v_add_u32 v{t2+m}, v{tmp+3}, v{Z+m}")
        a(f"v_bfe_u32 v{tmp}, v1, 2, 2")
        a(f"v_bfe_u32 v{tmp+1}, v1, 4, 1"); a(f"v_lshlrev_b32 v{tmp+1}, 3, v{tmp+1}"); a(f"v_lshl_or_b32 v{tmp+1}, v{tmp}, 1, v{tmp+1}")
        a(f"v_bfe_u32 v{tmp+3}, v1, 1, 1"); a(f"v_xor_b32 v{tmp+1}, v{tmp+1}, v{tmp+3}")
        a(f"s_and_b32 s68, s{sW}, 1"); a("s_lshl_b32 s68, s68, 3"); a(f"v_xor_b32 v{tmp+1}, s68, v{tmp+1}")
        a(f"v_lshrrev_b32 v{tmp+3}, 4, v1"); a(f"v_lshl_add_u32 v{tmp}, v{tmp+3}, 3, v{tmp}")
        a(f"v_lshlrev_b32 v{tmp}, 10, v{tmp}"); a(f"v_and_b32 v{tmp+3}, 1, v1"); a(f"v_lshl_add_u32 v{tmp}, v{tmp+3}, 3, v{tmp}")
        a(f"s_lshr_b32 s68, s{sW}, 1"); a("s_lshl_b32 s68, s68, 8"); a(f"v_add_u32 v{tmp}, s68, v{tmp}")
        for ct in range(4):
            a(f"v_xor_b32 v{t2+4+ct}, {2*ct}, v{tmp+1}"); a(f"v_lshl_add_u32 v{t2+4+ct}, v{t2+4+ct}, 4, v{tmp}")
        a("s_waitcnt vmcnt(0)")
        self.tag(vTag)
        a("s_barrier")
        self.stamp(1)
        for kt in range(2):
            for ks in range(16):
                a(f"ds_read_b128 {V(SA+64*kt+4*ks)}, v{t2+(ks&3)} offset:{256*(ks>>2)+16384*kt}")
            a("s_waitcnt lgkmcnt(8)")
        for half in range(2):
            for ct in range(4):
                for kk in range(2):
                    for hh in range(2):
                        r = PA + 16 * ct + 4 * (2 * half + kk) + 2 * hh
                        a(f"ds_read_b64_tr_b16 {V(r,2)}, v{t2+4+ct} offset:{(32*kk+4*hh)*1024}")
                a("s_waitcnt lgkmcnt(8)")
            if half == 0:
                for ct in range(4): a(f"v_add_u32 v{t2+4+ct}, 0x10000, v{t2+4+ct}")
        a("s_waitcnt lgkmcnt(0)")
        a("s_barrier")
        self.stamp(2)
        a(f"s_lshl_b32 s76, s{sW}, 13"); a(f"s_add_u32 s76, s76, {WS_QABS}"); a("s_add_u32 s77, s76, 4096")
        a(f"v_mov_b32 v{tmp}, 0")
        def gather_ind(): a(f"buffer_load_dwordx4 {V(G)}, v{tmp}, {WS}, s76 offen sc1")
        self.poll_loop(gather_ind, [G + 3], sleep=2, name="qind")
        def gather_qabs():
            for i in range(8):
                a(f"buffer_load_dwordx4 {V(G+4*i)}, v{vL16}, {WS}, s{76 if i < 4 else 77} offen offset:{1024*(i&3)} sc1")
        self.poll_loop(gather_qabs, [G + 4 * i + 3 for i in range(8)], sleep=0, name="qabs")
        self.stamp(3)
        a(f"s_bfe_u32 s68, s{sW}, 0x10001"); a("s_lshl_b32 s68, s68, 7"); a(f"v_lshlrev_b32 v{tmp}, 3, v1"); a(f"v_xor_b32 v{tmp}, s68, v{tmp}")
        a(f"s_lshl_b32 s68, s{sW}, 12")
        for ii in range(4):
            a(f"v_xor_b32 v{t2+ii}, {32*ii}, v{tmp}"); a(f"v_add_u32 v{t2+ii}, s68, v{t2+ii}")
        for i in range(8):
            r = G + 4 * i
            self.unpack(r)
            a(f"v_cvt_pk_bf16_f32 v{r}, v{r}, v{r+1}"); a(f"v_cvt_pk_bf16_f32 v{r+1}, v{r+2}, v{r+3}")
            a(f"ds_write_b64 v{t2+(i>>1)}, {V(r,2)} offset:{1024*(i>>1)+512*(i&1)}")
        a(f"s_lshr_b32 s68, s{sW}, 2"); a("s_lshl_b32 s68, s68, 14"); a(f"v_lshl_add_u32 v{tmp+3}, v{tmp+2}, 10, s68")
        for m in range(4): a(f"v_add_u32 v{t2+4+m}, v{tmp+3}, v{Z+m}")
        a("s_waitcnt lgkmcnt(0)")
        a("s_barrier")
        for ks in range(8): a(f"ds_read_b128 {V(G+4*ks)}, v{t2+4+(ks&3)} offset:{256*(ks>>2)}")
        for ks in range(16):
            a(f"s_waitcnt lgkmcnt({min(7, 15-ks)})")
            for kt in range(2):
                a(f"v_mfma_f32_16x16x32_bf16 {V(DS+4*kt)}, {V(SA+64*kt+4*ks)}, {V(G+4*(ks&7))}, {'0' if ks == 0 else V(DS+4*kt)}")
            if ks < 8:
                k2 = ks + 8
                a(f"ds_read_b128 {V(G+4*ks)}, v{t2+4+(k2&3)} offset:{256*(k2>>2)}")
        vM = tmp; SM, SS, PO = 32768, 33280, 36864
        a(f"v_max3_f32 v{vM}, v{DS}, v{DS+1}, v{DS+2}"); a(f"v_max3_f32 v{vM}, v{vM}, v{DS+3}, v{DS+4}")
        a(f"v_max3_f32 v{vM}, v{vM}, v{DS+5}, v{DS+6}"); a(f"v_max_f32 v{vM}, v{vM}, v{DS+7}")
        def allrows(r, op, t):
            a(f"v_mov_b32 v{t}, v{r}"); a(f"v_permlane16_swap_b32 v{r}, v{t}"); a(f"{op} v{r}, v{r}, v{t}")
            a(f"v_mov_b32 v{t}, v{r}"); a(f"v_permlane32_swap_b32 v{r}, v{t}"); a(f"{op} v{r}, v{r}, v{t}")
        allrows(vM, "v_max_f32", tmp + 1)
        a(f"s_lshr_b32 s68, s{sW}, 2"); a("s_lshl_b32 s68, s68, 8"); a(f"v_lshl_add_u32 v{t2}, v{tmp+2}, 4, s68")
        a(f"s_and_b32 s69, s{sW}, 3"); a("s_lshl_b32 s69, s69, 2"); a(f"v_add_u32 v{t2+1}, s69, v{t2}")
        a("s_mov_b32 exec_hi, 0"); a("s_mov_b32 exec_lo, 0xffff")
        a(f"ds_write_b32 v{t2+1}, v{vM} offset:{SM}")
        self.exec_full()
        a("s_waitcnt lgkmcnt(0)")
        a("s_barrier")
        a(f"ds_read_b128 {V(G)}, v{t2} offset:{SM}")
        a(f"v_and_b32 v{t2+2}, 3, v1"); a(f"v_lshlrev_b32 v{t2+2}, 1, v{t2+2}"); a(f"v_and_b32 v{t2+3}, 8, v1"); a(f"v_or_b32 v{t2+2}, v{t2+2}, v{t2+3}")
        a(f"v_lshrrev_b32 v{t2+3}, 5, v1"); a(f"v_xor_b32 v{t2+2}, v{t2+2}, v{t2+3}")
        a(f"s_and_b32 s69, s{sW}, 3"); a("s_lshl_b32 s69, s69, 2"); a(f"v_xor_b32 v{t2+2}, s69, v{t2+2}")
        a(f"v_bfe_u32 v{t2+3}, v1, 4, 1"); a(f"v_lshlrev_b32 v{t2+3}, 3, v{t2+3}")
        a(f"v_lshl_add_u32 v{t2+3}, v{tmp+2}, 8, v{t2+3}"); a("s_lshl_b32 s68, s68, 4"); a(f"v_add_u32 v{t2+3}, s68, v{t2+3}")
        a(f"v_lshl_add_u32 v{t2+4}, v{t2+2}, 4, v{t2+3}")
        a(f"v_xor_b32 v{t2+2}, 2, v{t2+2}"); a(f"v_lshl_add_u32 v{t2+5}, v{t2+2}, 4, v{t2+3}")
        a("s_waitcnt lgkmcnt(0)")
        a(f"v_max3_f32 v{vM}, v{G}, v{G+1}, v{G+2}"); a(f"v_max_f32 v{vM}, v{vM}, v{G+3}")
        a(f"v_mul_f32 v{vM}, s{sC1}, v{vM}")
        for k in range(8): a(f"v_fma_f32 v{DS+k}, v{DS+k}, s{sC1}, -v{vM}")
        for k in range(8): a(f"v_exp_f32 v{DS+k}, v{DS+k}")
        vS = tmp + 3
        a(f"v_add_f32 v{vS}, v{DS}, v{DS+1}")
        for k in range(2, 8): a(f"v_add_f32 v{vS}, v{vS}, v{DS+k}")
        for kt in range(2):
            a(f"v_cvt_pk_bf16_f32 v{DS+4*kt}, v{DS+4*kt}, v{DS+4*kt+1}"); a(f"v_cvt_pk_bf16_f32 v{DS+4*kt+1}, v{DS+4*kt+2}, v{DS+4*kt+3}")
            a(f"ds_write_b64 v{t2+4+kt}, {V(DS+4*kt,2)} offset:{PO}")
        allrows(vS, "v_add_f32", tmp + 1)
        a("s_mov_b32 exec_hi, 0"); a("s_mov_b32 exec_lo, 0xffff")
        a(f"ds_write_b32 v{t2+1}, v{vS} offset:{SS}")
        self.exec_full()
        a("s_waitcnt lgkmcnt(0)")
        a("s_barrier")
        self.stamp(4)
        a(f"v_lshlrev_b32 v{tmp+3}, 8, v{tmp+2}")
        for kk in range(4): a(f"v_add_u32 v{t2+kk}, v{tmp+3}, v{Z+kk}")
        for ht in range(2):
            for kk in range(4): a(f"ds_read_b128 {V(G+16*ht+4*kk)}, v{t2+kk} offset:{PO+4096*ht}")
        PD = SA
        for ht in range(2):
            a(f"s_waitcnt lgkmcnt({4 if ht == 0 else 0})")
            for kk in range(4):
                for ct in range(4):
                    d = PD + 16 * ht + 4 * ct
                    a(f"v_mfma_f32_16x16x32_bf16 {V(d)}, {V(PA+16*ct+4*kk)}, {V(G+16*ht+4*kk)}, {'0' if kk == 0 else V(d)}")
        TO = 65536
        a(f"v_lshrrev_b32 v{t2}, 4, v1"); a(f"v_lshlrev_b32 v{t2}, 4, v{t2}")
        a(f"v_and_b32 v{t2+1}, 3, v1"); a(f"v_lshlrev_b32 v{t2+1}, 6, v{t2+1}")
        a(f"v_lshl_add_u32 v{t2+2}, v{tmp+2}, 8, v{t2}")
        a(f"s_lshl_b32 s68, s{sW}, 13"); a(f"s_add_u32 s68, s68, {TO}"); a(f"v_add_u32 v{t2+2}, s68, v{t2+2}")
        for ct in range(4):
            a(f"v_xor_b32 v{t2+4+ct}, {64*ct}, v{t2+1}"); a(f"v_add_u32 v{t2+4+ct}, v{t2+2}, v{t2+4+ct}")
        for ht in range(2):
            for ct in range(4):
                d = PD + 16 * ht + 4 * ct
                self.pack(d, vTag)
                a(f"ds_write_b128 v{t2+4+ct}, {V(d)} offset:{4096*ht}")
        a(f"v_lshrrev_b32 v{t2}, 4, v1")
        a(f"v_lshlrev_b32 v{t2+1}, 6, v{t2}"); a(f"v_lshlrev_b32 v{t2+2}, 4, v{tmp+2}"); a(f"v_xor_b32 v{t2+1}, v{t2+1}, v{t2+2}")
        a(f"v_lshl_add_u32 v{t2+1}, v{t2}, 8, v{t2+1}"); a(f"v_add_u32 v{t2+1}, s68, v{t2+1}")
        a(f"v_lshl_add_u32 v{t2+2}, v{t2}, 16, v{t2+2}")
        a(f"s_lshl_b32 s76, s{sH}, 11"); a(f"s_lshl_b32 s69, s{sW}, 8"); a("s_add_u32 s76, s76, s69"); a(f"s_add_u32 s76, s76, {WS_CTX}")
        a("s_waitcnt lgkmcnt(0)")
        for i in range(8): a(f"ds_read_b128 {V(G+4*i)}, v{t2+1} offset:{1024*i}")
        for i in range(8):
            a(f"s_waitcnt lgkmcnt({7-i})")
            a(f"buffer_store_dwordx4 {V(G+4*i)}, v{t2+2}, {WS}, s76 offen sc1")
            if i < 7: a("s_add_u32 s76, s76, 0x40000")
        a("s_barrier")
        L = self.lab("q1"); a(f"s_cmp_eq_u32 s{sW}, 0"); a(f"s_cbranch_scc0 {L}")
        a(f"v_and_b32 v{tmp}, 31, v1"); a(f"v_lshlrev_b32 v{tmp+1}, 4, v{tmp}")
        a(f"ds_read_b128 {V(G)}, v{tmp+1} offset:{SM}"); a(f"ds_read_b128 {V(G+4)}, v{tmp+1} offset:{SS}")
        a(f"v_lshlrev_b32 v{tmp}, 9, v{tmp}"); a(f"s_lshl_b32 s68, s{sH}, 4"); a(f"s_add_u32 s68, s68, {WS_ML}")
        a("s_waitcnt lgkmcnt(0)")
        a(f"v_max3_f32 v{G}, v{G}, v{G+1}, v{G+2}"); a(f"v_max_f32 v{G}, v{G}, v{G+3}"); a(f"v_mul_f32 v{G}, s{sC1}, v{G}")
        a(f"v_pk_add_f32 {V(G+4,2)}, {V(G+4,2)}, {V(G+6,2)}"); a(f"v_add_f32 v{G+1}, v{G+4}, v{G+5}")
        a(f"v_mov_b32 v{G+2}, 0"); a(f"v_mov_b32 v{G+3}, v{vTag}")
        self.exec_lo32()
        a(f"buffer_store_dwordx4 {V(G)}, v{tmp}, {WS}, s68 offen sc1")
        self.exec_full()
        a(f"{L}:")
        self.stamp(5)
        Le = self.lab("qend")
        a(f"s_lshl_b32 s79, s{sH}, 3"); a(f"s_add_u32 s79, s79, s{sW}")
        a("s_movk_i32 s68, 2560"); a(f"v_mul_u32_u24 v{tmp}, s68, v1"); a(f"v_mov_b32 v{tmp+1}, 0")
        a("s_cmp_lt_u32 s79, 160"); a(f"s_cbranch_scc0 {Le}")
        regs = [G + v for v in range(4)]
        for br in range(2):
            a(f"s_lshl_b32 s76, s79, 4"); a(f"s_add_u32 s76, s76, {WS_YB if br else WS_YA}")
            a(f"s_lshl_b32 s78, s79, 3")
            if br:
                a("s_add_u32 s78, s78, 1280")
                a("s_and_b32 s68, s79, 31"); a("s_lshl_b32 s68, s68, 7"); a(f"s_add_u32 s77, s68, {WS_MLB}")
                def gather_ind(): a(f"buffer_load_dwordx4 {V(G)}, v{tmp+1}, {WS}, s77 offen sc1")
                self.poll_loop(gather_ind, [G + 3], sleep=8, name="qind2")
                a(f"v_and_b32 v{tmp}, 31, v1"); a("s_movk_i32 s68, 2560"); a(f"v_mul_u32_u24 v{tmp}, s68, v{tmp}")
            def gather_y(): a(f"buffer_load_dwordx4 {V(G)}, v{tmp}, {WS}, s76 offen sc1")
            self.poll_loop(gather_y, [G + 3], sleep=(0 if br else 4), name="qy")
            self.unpack(G)
            self.row_allreduce(regs, "v_add_f32")
            for r in regs: a(f"v_add_f32_dpp v{r}, v{r}, v{r} row_bcast:15 row_mask:0xa bank_mask:0xf")
            if not br:
                for r in regs: a(f"v_add_f32_dpp v{r}, v{r}, v{r} row_bcast:31 row_mask:0xc bank_mask:0xf")
            a(f"v_cvt_pk_bf16_f32 v{G}, v{G}, v{G+1}"); a(f"v_cvt_pk_bf16_f32 v{G+1}, v{G+2}, v{G+3}")
            if br: a("s_mov_b32 exec_lo, 0x80000000"); a("s_mov_b32 exec_hi, 0")
            else: a("s_mov_b32 exec_lo, 0"); a("s_mov_b32 exec_hi, 0x80000000")
            a(f"buffer_store_dwordx2 {V(G,2)}, v{tmp+1}, {OUT}, s78 offen")
            self.exec_full()
            self.stamp(6 + br)
        a("s_cmp_eq_u32 s79, 0"); a(f"s_cbranch_scc0 {Le}")
        a(f"s_add_u32 s68, s{sEpoch}, 1"); a(f"v_mov_b32 v{tmp}, s68")
        a("s_mov_b64 exec, 1")
        a(f"buffer_store_dword v{tmp}, v{tmp+1}, {WS}, 0 offen")
        self.exec_full()
        a(f"{Le}:")
        self.finish("Q")

    def build(self):
        a = self.a
        self.prologue()
        if "B" in self.roles: self.role_B()
        else: a("s_endpgm")
        a("L_PR:")
        if "P" in self.roles: self.role_PR()
        else: a("s_endpgm")
        a("L_Q:")
        if "Q" in self.roles: self.role_Q()
        else: a("s_endpgm")
        a("L_end:"); a("s_endpgm")
        head = [
            "; concat_heads__compressed_kv_cla__mha_block_cached__decode: one persistent launch, 256 workgroups of 8 waves",
            "; @launch grid=(256,1,1) block=(512,1,1) lds=131072",
            '.amdgcn_target "amdgcn-amd-amdhsa--gfx950"', ".text", f".globl {KN}", ".p2align 8", f".type {KN},@function", f"{KN}:"]
        tail = ['.section .rodata,"a"', ".p2align 6", f".amdhsa_kernel {KN}",
            "  .amdhsa_next_free_vgpr 256", "  .amdhsa_next_free_sgpr 102", "  .amdhsa_accum_offset 256",
            "  .amdhsa_group_segment_fixed_size 0", "  .amdhsa_kernarg_size 112", "  .amdhsa_user_sgpr_count 2",
            "  .amdhsa_user_sgpr_kernarg_segment_ptr 1", "  .amdhsa_system_sgpr_workgroup_id_x 1",
            "  .amdhsa_float_denorm_mode_32 3", ".end_amdhsa_kernel"]
        return "\n".join(head) + "\n" + a.text() + "\n".join(tail) + "\n"

if __name__ == "__main__":
    import argparse
    ap = argparse.ArgumentParser()
    ap.add_argument("-o", default="k.s"); ap.add_argument("--prof", action="store_true")
    ap.add_argument("--nt", default="nt"); ap.add_argument("--dbgst", action="store_true"); ap.add_argument("--D0", type=int, default=2); ap.add_argument("--Ds", type=int, default=2); ap.add_argument("--ns", type=int, default=8); ap.add_argument("--Dv", type=int, default=5); ap.add_argument("--pf", type=int, default=1); ap.add_argument("--lin", default=""); ap.add_argument("--bar", type=int, default=0); ap.add_argument("--tlb", type=int, default=0); ap.add_argument("--roles", default="BPQ"); ap.add_argument("-D", type=int, default=5); ap.add_argument("--spin", type=int, default=20000)
    args = ap.parse_args()
    g = Gen(prof=args.prof, D=args.D, spin=args.spin, roles=args.roles, nt=args.nt, dbgst=args.dbgst, D0=args.D0, Ds=args.Ds, ns=args.ns, Dv=args.Dv, pf=args.pf, lin=args.lin, bar=args.bar, tlb=args.tlb)
    open(args.o, "w").write(g.build())
    sys.path.insert(0, "exp"); import build
    print(build.build(args.o))
```

```python
import sys
import gen as G0
from gen import (Gen, f2u, C1, NEG, KN, sW, sH, sSub, WS, OUT, pAX, pCKV, pWQA, pWUK, pWUV, pWOA, pBX, pK, pV, pWQB, pWOB, pOUT, pDBG, pWS,
                 SRD1, SRD2, SRD3, SRD4, sEpoch, sTag, sP0, sP1, sP2, sU, sLo, sHi, sC1, sCnt, sBias, sProf)

WS_QB   = 0x01000
WS_QA   = 0x1A000
WS_OB   = 0x33000
WS_MLB  = 0x4C000
WS_ML   = 0x50000
WS_CTXF = 0x54000
WS_QABS = 0x60000
WS_YA   = 0x70000
WS_YB   = 0x88000
WS_PROF = 0xC0000
WS_CTX  = 0x100000
G0.WS_PROF = WS_PROF
NS = 6

class Gen3(Gen):
    prioA = 1; light = 1; exp = 0; NE = 5
    def prologue(self):
        a = self.a
        a("s_cmp_ge_u32 s2, 256"); a("s_cbranch_scc1 L_end")
        a("s_load_dwordx4 s[40:43], s[0:1], 96")
        a("s_load_dwordx16 s[16:31], s[0:1], 0")
        a("s_load_dwordx8 s[32:39], s[0:1], 64")
        self.stamp(0)
        if self.prof: a("s_mov_b32 s100, 0")
        a("v_lshrrev_b32 v2, 6, v0")
        a("v_and_b32 v1, 63, v0")
        a(f"v_readfirstlane_b32 s{sW}, v2")
        a("s_and_b32 s6, s2, 7")
        a("s_lshr_b32 s7, s2, 3")
        a(f"s_mov_b32 s{sP0}, 0x07060501"); a(f"s_mov_b32 s{sP1}, 0x07060502"); a(f"s_mov_b32 s{sP2}, 0x07060503")
        a(f"s_mov_b32 s{sU}, 0x0c04000c"); a(f"s_mov_b32 s{sLo}, 0x01000100"); a(f"s_mov_b32 s{sHi}, 0x03020302")
        a(f"s_mov_b32 s{sC1}, {f2u(C1):#x}")
        a("s_lshl_b32 s6, s6, 2")
        a("s_cmp_lt_u32 s7, 4"); a("s_cbranch_scc1 L_PR")
        a("s_cmp_lt_u32 s7, 8"); a("s_cbranch_scc1 L_Q")

    def role_B(self):
        a = self.a; D = self.D; V = self.V; S = self.S
        vL16, vLast, M0, QF, DD, AB, T, T0, T1, U, vTag, vA, vB = 2, 3, 4, 8, 12, 16, 24, 28, 29, 30, 37, 38, 39
        NK = 22; NG = 6
        KT, VT = 40, 128
        WA, WB, X, G = 128, 144, 160, 164
        DA = 24
        tmp = 248; vOne = 216
        L_PB, L_Q, L_O, L_M, L_L, L_F, L_PA, L_Y = 0, 4096, 8192, 12288, 12416, 12544, 16384, 20480
        a("; ---------------- role B ----------------")
        a("L_B:")
        self.code_prefetch("L_B", "L_PR", 254, 255, 1)
        a("s_sub_u32 s7, s7, 8")
        a("s_mul_i32 s68, s7, 43"); a("s_lshr_b32 s68, s68, 8")
        a(f"s_add_u32 s{sH}, s6, s68")
        a("s_mul_i32 s68, s68, 6"); a(f"s_sub_u32 s{sSub}, s7, s68")
        a(f"v_lshlrev_b32 v{vL16}, 4, v1")
        a(f"v_lshrrev_b32 v{tmp}, 4, v1")
        a(f"v_and_b32 v{tmp+1}, 15, v1")
        a(f"v_lshlrev_b32 v{vB}, 15, v{tmp}"); a(f"v_lshl_add_u32 v{vB}, v{tmp+1}, 4, v{vB}")
        a(f"s_mul_i32 s68, s{sSub}, 7"); a(f"s_add_u32 s68, s68, s{sW}")
        a("s_cmp_lt_u32 s68, 40"); a("s_cselect_b32 s69, 0, 0x7f000000")
        a(f"s_cmp_lt_u32 s{sW}, 7"); a("s_cselect_b32 s69, s69, 0x7f000000")
        a("s_cmp_eq_u32 s69, 0"); a("s_cselect_b32 s68, s68, 0")
        a(f"v_or_b32 v{vB}, s69, v{vB}")
        a("s_lshl_b32 s74, s68, 5"); a(f"v_lshl_add_u32 v{vA}, v{tmp}, 3, s74")
        a("s_lshl_b32 s73, s68, 17"); a(f"s_lshl_b32 s74, s{sH}, 8"); a("s_add_u32 s73, s73, s74")
        a(f"s_lshl_b32 s68, s{sSub}, 3"); a(f"s_add_u32 s68, s68, s{sW}")
        a("s_lshl_b32 s69, s68, 6"); a("s_mul_hi_u32 s70, s69, 0x55555556")
        a("s_add_u32 s69, s69, 64"); a("s_mul_hi_u32 s71, s69, 0x55555556")
        a("s_sub_u32 s71, s71, s70")
        a(f"s_lshl_b32 s72, s{sH}, 20"); a("s_lshl_b32 s70, s70, 10"); a("s_add_u32 s72, s72, s70")
        a(f"s_cmp_eq_u32 s71, {NK}")
        a(f"s_cselect_b32 s{sBias}, 0, {f2u(NEG):#x}")
        a(f"s_cselect_b32 s74, 0, 0x7f000000")
        a(f"v_or_b32 v{vLast}, s74, v{vL16}")
        a(f"v_mov_b32 v{tmp+2}, 0"); a(f"v_mov_b32 v{tmp+3}, 0")
        a(f"s_lshl_b32 s68, s{sW}, 3"); a(f"v_mov_b32 v{tmp+4}, s68"); a(f"s_lshl_b32 s68, s{sW}, 2"); a(f"v_mov_b32 v{tmp+5}, s68")
        a("s_mov_b64 exec, 1")
        a(f"ds_write_b64 v{tmp+4}, {V(tmp+2,2)} offset:{L_M}")
        a(f"ds_write_b32 v{tmp+5}, v{tmp+2} offset:{L_F}")
        a(f"ds_write_b32 v{tmp+2}, v{tmp+2} offset:{L_F+32}")
        a(f"ds_write_b32 v{tmp+5}, v{tmp+2} offset:{L_F+64}")
        self.exec_full()
        a(f"v_mov_b32 v{vOne}, 1")
        a("s_waitcnt lgkmcnt(0)")
        self.srd(SRD3, pWQA, 640 * 8192); self.srd(SRD4, pWQB, 640 * 8192)
        a(f"global_load_dwordx2 {V(X,2)}, v{vA}, s[{pAX}:{pAX+1}]")
        a(f"global_load_dwordx2 {V(X+2,2)}, v{vA}, s[{pBX}:{pBX+1}]")
        def wq_loads(br):
            for i in range(4):
                if i == 0: a("s_mov_b32 s69, s73")
                else: a("s_add_u32 s69, s69, 8192")
                a(f"buffer_load_dwordx4 {V((WB if br else WA)+4*i)}, v{vB}, {S(SRD4 if br else SRD3)}, s69 offen {self.nt}")
        self.srd(SRD1, pK, 32 << 20); self.srd(SRD2, pV, 32 << 20)
        a("s_mov_b32 s75, s72")
        def kv_load(srd, base, i, soff):
            if i and i % 4 == 0: a(f"s_add_u32 s{soff}, s{soff}, 4096")
            voff = vLast if i == NK - 1 else vL16
            a(f"buffer_load_dwordx4 {V(base+4*i)}, v{voff}, {S(srd)}, s{soff} offen offset:{1024*(i%4)} {self.nt}")
        D0 = self.D0
        late = self.prioA
        wq_loads(0)
        if not late:
            wq_loads(1)
            for i in range(D0): kv_load(SRD1, KT, i, 75)
        a("s_barrier")
        self.common2()
        self.masks(M0, 1, tmp, tmp + 1)
        a(f"v_and_b32 v{tmp}, 15, v1"); a(f"v_bfe_u32 v{tmp+1}, v1, 4, 1")
        a(f"v_lshl_add_u32 v{tmp}, v{tmp}, 1, v{tmp+1}"); a(f"v_lshlrev_b32 v{tmp}, 4, v{tmp}")
        a(f"s_lshl_b32 s68, s{sW}, 9"); a(f"v_add_u32 v{vA}, s68, v{tmp}")
        sels = [(0, sLo), (0, sHi), (1, sLo), (1, sHi)]
        def project(br):
            for i in range(4):
                xr, sel = sels[i]; xr += X + 2 * br
                a(f"v_perm_b32 v{G+i}, v{xr}, v{xr}, s{sel}")
            self.rowacc(DD if br else DA, AB, M0, 4, lambda i: (G + i, None), lambda i: (WB if br else WA) + 4 * i)
        def publish(wv, fl, lo, wsb):
            L = self.lab("b1"); a(f"s_cmp_eq_u32 s{sW}, {wv}"); a(f"s_cbranch_scc0 {L}")
            a(f"v_mov_b32 v{tmp+4}, 0")
            def rd():
                a(f"ds_read_b128 {V(G+32)}, v{tmp+4} offset:{fl}"); a(f"ds_read_b128 {V(G+36)}, v{tmp+4} offset:{fl+16}")
            self.lds_spin(rd, [G + 32 + k for k in range(8)], "bf1")
            a(f"v_and_b32 v{tmp}, 31, v1"); a(f"v_lshlrev_b32 v{tmp}, 4, v{tmp}")
            for k in range(8): a(f"ds_read_b128 {V(G+4*k)}, v{tmp} offset:{lo+512*k}")
            a(f"s_mul_i32 s68, s{sH}, {NS}"); a(f"s_add_u32 s68, s68, s{sSub}"); a("s_lshl_b32 s68, s68, 9"); a(f"s_add_u32 s68, s68, {wsb}")
            a("s_waitcnt lgkmcnt(0)")
            self.tree_add(G, 8)
            self.pack(G, vTag)
            self.exec_lo32()
            a(f"buffer_store_dwordx4 {V(G)}, v{tmp}, {WS}, s68 offen sc1")
            self.exec_full()
            a(f"{L}:")
        def write_part(br):
            self.exec_lo32()
            a(f"ds_write_b128 v{vA}, {V(DD if br else DA)} offset:{L_PB if br else L_PA}")
            a("s_mov_b32 exec_lo, 1")
            a(f"ds_write_b32 v{tmp+5}, v{vOne} offset:{L_F + (64 if br == 0 else 0)}")
            self.exec_full()
        a(f"s_waitcnt vmcnt({0 if late else 4 + D0})")
        self.stamp(1)
        a(f"v_mov_b32 v{vOne + 0}, 1") if False else None
        project(0)
        self.tag(vTag)
        write_part(0)
        publish(0, L_F + 64, L_PA, WS_QA)
        if late:
            wq_loads(1)
            for i in range(D0): kv_load(SRD1, KT, i, 75)
        a(f"s_waitcnt vmcnt({D0})")
        project(1)
        write_part(1)
        publish(2, L_F, L_PB, WS_QB)
        n1 = self.n1; n2 = n1 + D + 1
        assert n2 < NK
        win = lambda i: self.Ds if i < self.ns else D
        def gather_q():
            for s in range(NS):
                a(f"buffer_load_dwordx4 {V(G+4*s)}, v{tmp+3}, {WS}, s76 offen offset:{512*s} sc1")
        for i in range(D0, NK):
            if i >= win(i): a(f"s_waitcnt vmcnt({win(i)-1})")
            kv_load(SRD1, KT, i, 75)
            if i == n1:
                L = self.lab("b2")
                a(f"v_and_b32 v{tmp+3}, 31, v1"); a(f"v_lshlrev_b32 v{tmp+3}, 4, v{tmp+3}")
                a(f"s_mul_i32 s76, s{sH}, {512*NS}"); a(f"s_add_u32 s76, s76, {WS_QB}")
                a(f"s_cmp_eq_u32 s{sW}, 1"); a(f"s_cbranch_scc0 {L}")
                gather_q()
                a(f"{L}:")
            if i == n2:
                L = self.lab("b3"); a(f"s_cmp_eq_u32 s{sW}, 1"); a(f"s_cbranch_scc0 {L}")
                self.poll_loop(gather_q, [G + 4 * s + 3 for s in range(NS)], first_issued=True,
                               first_wait=f"s_waitcnt vmcnt({n2-n1})", name="bq")
                for s in range(NS): self.unpack(G + 4 * s)
                self.tree_add(G, NS)
                a(f"v_cvt_pk_bf16_f32 v{G}, v{G}, v{G+1}")
                a(f"v_cvt_pk_bf16_f32 v{G+1}, v{G+2}, v{G+3}")
                a(f"v_lshrrev_b32 v{tmp+3}, 1, v{tmp+3}")
                self.exec_lo32()
                a(f"ds_write_b64 v{tmp+3}, {V(G,2)} offset:{L_Q}")
                a("s_mov_b32 exec_lo, 1")
                a(f"v_mov_b32 v{tmp+3}, 0")
                a(f"ds_write_b32 v{tmp+3}, v{vOne} offset:{L_F+32}")
                self.exec_full()
                a(f"{L}:")
        self.stamp(2)
        if self.bar & 1: a("s_barrier")
        a("s_mov_b32 s75, s72")
        def wait_q():
            a(f"v_and_b32 v{tmp}, 15, v1"); a(f"v_lshlrev_b32 v{tmp}, 4, v{tmp}"); a(f"v_mov_b32 v{tmp+4}, 0")
            def rd():
                a(f"ds_read_b32 v{tmp+2}, v{tmp+4} offset:{L_F+32}")
                a(f"ds_read_b128 {V(QF)}, v{tmp} offset:{L_Q}")
            self.lds_spin(rd, [tmp + 2], "bq2")
        def kgroup(k):
            n = min(4, NK - 4 * k)
            for r in range(4):
                for u in range(n):
                    kreg = KT + 4 * (4 * k + u) + r
                    if r == 0: a(f"v_dot2_f32_bf16 v{T+u}, v{kreg}, v{QF}, 0")
                    else: a(f"v_dot2c_f32_bf16 v{T+u}, v{kreg}, v{QF+r}")
            if n < 4:
                a(f"v_mov_b32 v{T0}, {f2u(NEG):#x}"); a(f"v_mov_b32 v{T1}, {f2u(NEG):#x}")
                a(f"v_add_f32 v{T+1}, s{sBias}, v{T+1}")
            a(f"v_add_f32_dpp v{T0}, v{T}, v{T} row_ror:8 row_mask:0xf bank_mask:0x3")
            a(f"v_add_f32_dpp v{T1}, v{T+1}, v{T+1} row_ror:8 row_mask:0xf bank_mask:0x3")
            if n == 4:
                a(f"v_add_f32_dpp v{T0}, v{T+2}, v{T+2} row_ror:8 row_mask:0xf bank_mask:0xc")
                a(f"v_add_f32_dpp v{T1}, v{T+3}, v{T+3} row_ror:8 row_mask:0xf bank_mask:0xc")
            a(f"v_add_f32_dpp v{U+k}, v{T0}, v{T0} row_half_mirror row_mask:0xf bank_mask:0x5")
            a(f"v_add_f32_dpp v{U+k}, v{T1}, v{T1} row_half_mirror row_mask:0xf bank_mask:0xa")
            a(f"v_add_f32_dpp v{U+k}, v{U+k}, v{U+k} quad_perm:[2,3,0,1] row_mask:0xf bank_mask:0xf")
            a(f"v_add_f32_dpp v{U+k}, v{U+k}, v{U+k} quad_perm:[1,0,3,2] row_mask:0xf bank_mask:0xf")
        def allreduce_rows(r, op, t):
            a(f"v_mov_b32 v{t}, v{r}"); a(f"v_permlane16_swap_b32 v{r}, v{t}"); a(f"{op} v{r}, v{r}, v{t}")
            a(f"v_mov_b32 v{t}, v{r}"); a(f"v_permlane32_swap_b32 v{r}, v{t}"); a(f"{op} v{r}, v{r}, v{t}")
        vM, vLs = tmp, tmp + 1
        def softmax():
            a(f"v_max3_f32 v{vM}, v{U}, v{U+1}, v{U+2}")
            a(f"v_max3_f32 v{vM}, v{vM}, v{U+3}, v{U+4}")
            a(f"v_max_f32 v{vM}, v{vM}, v{U+5}")
            a(f"v_max_f32_dpp v{vM}, v{vM}, v{vM} row_ror:4 row_mask:0xf bank_mask:0xf")
            a(f"v_max_f32_dpp v{vM}, v{vM}, v{vM} row_ror:8 row_mask:0xf bank_mask:0xf")
            allreduce_rows(vM, "v_max_f32", tmp + 2)
            a(f"v_mul_f32 v{vM}, s{sC1}, v{vM}")
            a(f"v_mov_b32 v{tmp+2}, v{vM}"); a(f"v_mov_b32 v{tmp+3}, 1")
            a(f"s_lshl_b32 s68, s{sW}, 3"); a(f"v_mov_b32 v{tmp+4}, s68")
            a("s_mov_b64 exec, 1")
            a(f"ds_write_b64 v{tmp+4}, {V(tmp+2,2)} offset:{L_M}")
            self.exec_full()
            for k in range(NG): a(f"v_fma_f32 v{U+k}, v{U+k}, s{sC1}, -v{vM}")
            for k in range(NG): a(f"v_exp_f32 v{U+k}, v{U+k}")
            a(f"v_add_f32 v{vLs}, v{U}, v{U+1}")
            for k in range(2, NG): a(f"v_add_f32 v{vLs}, v{vLs}, v{U+k}")
            for k in range(NG): a(f"v_cvt_pk_bf16_f32 v{U+k}, v{U+k}, v{U+k}")
            a(f"v_add_f32_dpp v{vLs}, v{vLs}, v{vLs} row_ror:4 row_mask:0xf bank_mask:0xf")
            a(f"v_add_f32_dpp v{vLs}, v{vLs}, v{vLs} row_ror:8 row_mask:0xf bank_mask:0xf")
            allreduce_rows(vLs, "v_add_f32", tmp + 2)
        def pv_and(i):
            ab = AB + 4 * (i & 1)
            for t in range(4):
                a(f"v_and_b32_dpp v{ab+t}, v{U+(i>>2)}, v{M0+t} row_newbcast:{4*(i&3)} row_mask:0xf bank_mask:0xf")
        def pv_mfma(i):
            ab = AB + 4 * (i & 1)
            a(f"v_mfma_f32_16x16x32_bf16 {V(DD)}, {V(ab)}, {V(VT+4*i)}, {'0' if i == 0 else V(DD)}")
        pv = 0
        SM = 2 * NG
        D = self.Dv
        for i in range(NK):
            a(f"s_waitcnt vmcnt({D-1})")
            kv_load(SRD2, VT, i, 75)
            if i == 1: wait_q()
            if i == SM - 1 and self.bar & 2: a("s_barrier")
            if i < SM and i % 2 == 1: kgroup(i // 2)
            if i == SM - 1:
                softmax(); pv_and(0)
            if i >= SM:
                lim = i - D
                for _ in range(2):
                    if pv <= lim:
                        pv_and(pv + 1); pv_mfma(pv); pv += 1
        self.stamp(3)
        WO = KT + 24
        a(f"v_lshrrev_b32 v{tmp+4}, 4, v1"); a("s_movk_i32 s68, 5120"); a(f"v_mul_u32_u24 v{tmp+4}, s68, v{tmp+4}")
        a(f"v_and_b32 v{tmp+5}, 15, v1"); a(f"v_lshl_add_u32 v{tmp+4}, v{tmp+5}, 4, v{tmp+4}")
        a(f"s_cmp_lt_u32 s{sSub}, 5"); a("s_cselect_b32 s68, 0, 0x7f000000"); a(f"v_or_b32 v{tmp+4}, s68, v{tmp+4}")
        a(f"s_lshl_b32 s68, s{sH}, 3"); a(f"s_add_u32 s68, s68, s{sW}"); a(f"s_mul_i32 s69, s68, {16*1280}"); a(f"s_lshl_b32 s68, s{sSub}, 8"); a("s_add_u32 s69, s69, s68")
        self.srd(SRD3, pWOB, 4096 * 1280)
        for rg in range(4):
            a(f"buffer_load_dwordx4 {V(WO+4*rg)}, v{tmp+4}, {S(SRD3)}, s69 offen offset:{1280*rg} {self.nt}")
        a(f"v_mov_b32 v{tmp+4}, 0")
        R8 = KT
        def rdm():
            for k in range(4): a(f"ds_read_b128 {V(R8+4*k)}, v{tmp+4} offset:{L_M+16*k}")
        self.lds_spin(rdm, [R8 + 2 * k + 1 for k in range(8)], "bm")
        vMc = R8 + 16; vF = R8 + 17
        a(f"v_max3_f32 v{vMc}, v{R8}, v{R8+2}, v{R8+4}")
        a(f"v_max3_f32 v{vMc}, v{vMc}, v{R8+6}, v{R8+8}")
        a(f"v_max3_f32 v{vMc}, v{vMc}, v{R8+10}, v{R8+12}")
        a(f"v_max_f32 v{vMc}, v{vMc}, v{R8+14}")
        a(f"v_sub_f32 v{vF}, v{vM}, v{vMc}")
        a(f"v_exp_f32 v{vF}, v{vF}")
        a(f"v_mul_f32 v{vLs}, v{vLs}, v{vF}")
        vG = R8 + 18; vZ = R8 + 19
        a(f"v_lshrrev_b32 v{vG}, 4, v1"); a(f"v_lshlrev_b32 v{vG}, 4, v{vG}"); a(f"v_mov_b32 v{vZ}, 0")
        a(f"s_mul_i32 s76, s{sH}, {512*NS}"); a(f"s_add_u32 s78, s76, {WS_OB}"); a(f"s_lshl_b32 s68, s{sW}, 6"); a("s_add_u32 s76, s78, s68")
        a(f"s_lshl_b32 s77, s{sH}, 7"); a(f"s_add_u32 s77, s77, {WS_MLB}")
        while pv < NK:
            a(f"s_waitcnt vmcnt({NK-1-pv+4})")
            if pv + 1 < NK: pv_and(pv + 1)
            pv_mfma(pv); pv += 1
        self.stamp(4)
        for v in range(4): a(f"v_mul_f32 v{DD+v}, v{vF}, v{DD+v}")
        a(f"s_lshl_b32 s68, s{sW}, 2"); a(f"v_mov_b32 v{tmp+4}, s68")
        self.exec_lo32()
        a(f"ds_write_b128 v{vA}, {V(DD)} offset:{L_O}")
        a("s_mov_b32 exec_lo, 1")
        a(f"ds_write_b32 v{tmp+4}, v{vLs} offset:{L_L}")
        self.exec_full()
        a("s_waitcnt lgkmcnt(0)")
        a("s_barrier")
        L = self.lab("b4"); a(f"s_cmp_eq_u32 s{sW}, 0"); a(f"s_cbranch_scc0 {L}")
        a(f"v_and_b32 v{tmp}, 31, v1"); a(f"v_lshlrev_b32 v{tmp}, 4, v{tmp}")
        G2 = VT
        for k in range(8): a(f"ds_read_b128 {V(G2+4*k)}, v{tmp} offset:{L_O+512*k}")
        a(f"ds_read_b128 {V(G2+32)}, v{vZ} offset:{L_L}")
        a(f"ds_read_b128 {V(G2+36)}, v{vZ} offset:{L_L+16}")
        a(f"s_lshl_b32 s68, s{sSub}, 9"); a("s_add_u32 s68, s68, s78")
        a(f"s_lshl_b32 s69, s{sSub}, 4"); a("s_add_u32 s69, s69, s77")
        a("s_waitcnt lgkmcnt(2)")
        self.tree_add(G2, 8)
        self.pack(G2, vTag)
        self.exec_lo32()
        a(f"buffer_store_dwordx4 {V(G2)}, v{tmp}, {WS}, s68 offen sc1")
        a("s_waitcnt lgkmcnt(0)")
        ML = R8 + 20
        a(f"v_pk_add_f32 {V(G2+32,2)}, {V(G2+32,2)}, {V(G2+34,2)}")
        a(f"v_pk_add_f32 {V(G2+36,2)}, {V(G2+36,2)}, {V(G2+38,2)}")
        a(f"v_pk_add_f32 {V(G2+32,2)}, {V(G2+32,2)}, {V(G2+36,2)}")
        a(f"v_mov_b32 v{ML}, v{vMc}")
        a(f"v_add_f32 v{ML+1}, v{G2+32}, v{G2+33}")
        a(f"v_mov_b32 v{ML+2}, 0"); a(f"v_mov_b32 v{ML+3}, v{vTag}")
        a("s_mov_b32 exec_lo, 1")
        a(f"buffer_store_dwordx4 {V(ML)}, v{vZ}, {WS}, s69 offen sc1")
        self.exec_full()
        a(f"{L}:")
        self.stamp(5)
        Le = self.lab("bend")
        a(f"s_cmp_lt_u32 s{sSub}, 5"); a(f"s_cbranch_scc0 {Le}")
        EG = VT + 40; ME = EG + 12; L_C = 24576
        O = U
        L = self.lab("bc"); a(f"s_cmp_eq_u32 s{sW}, 0"); a(f"s_cbranch_scc0 {L}")
        a(f"v_lshrrev_b32 v{tmp+1}, 5, v1"); a(f"v_lshlrev_b32 v{tmp+2}, 4, v{tmp+1}")
        a(f"v_lshl_add_u32 v{tmp+1}, v{tmp+1}, 9, v{tmp}")
        def gather_ob():
            for j in range(3): a(f"buffer_load_dwordx4 {V(EG+4*j)}, v{tmp+1}, {WS}, s78 offen offset:{1024*j} sc1")
            for j in range(3): a(f"buffer_load_dwordx4 {V(ME+4*j)}, v{tmp+2}, {WS}, s77 offen offset:{32*j} sc1")
        self.poll_loop(gather_ob, [EG + 4 * j + 3 for j in range(6)], sleep=0, name="bob")
        self.stamp(6)
        vMx = T; vL = T + 1
        def half_allred(r, op, t):
            a(f"v_mov_b32 v{t}, v{r}"); a(f"v_permlane32_swap_b32 v{r}, v{t}"); a(f"{op} v{r}, v{r}, v{t}")
        a(f"v_max3_f32 v{vMx}, v{ME}, v{ME+4}, v{ME+8}")
        half_allred(vMx, "v_max_f32", T + 2)
        for j in range(3): self.unpack(EG + 4 * j)
        for j in range(3): a(f"v_sub_f32 v{ME+4*j}, v{ME+4*j}, v{vMx}")
        for j in range(3): a(f"v_exp_f32 v{ME+4*j}, v{ME+4*j}")
        a(f"v_mul_f32 v{vL}, v{ME}, v{ME+1}")
        for v in range(4): a(f"v_mul_f32 v{O+v}, v{ME}, v{EG+v}")
        for j in range(1, 3):
            a(f"v_fmac_f32 v{vL}, v{ME+4*j}, v{ME+4*j+1}")
            for v in range(4): a(f"v_fmac_f32 v{O+v}, v{ME+4*j}, v{EG+4*j+v}")
        for v in range(4): a(f"v_mov_b32 v{T+4+v}, v{O+v}") if False else None
        a(f"v_mov_b32 v{EG}, v{vL}")
        for v in range(4): a(f"v_mov_b32 v{EG+1+v}, v{O+v}")
        a(f"v_permlane32_swap_b32 v{vL}, v{EG}")
        for v in range(4): a(f"v_permlane32_swap_b32 v{O+v}, v{EG+1+v}")
        a(f"v_add_f32 v{vL}, v{vL}, v{EG}")
        for v in range(4): a(f"v_add_f32 v{O+v}, v{O+v}, v{EG+1+v}")
        a(f"v_rcp_f32 v{vL}, v{vL}")
        for v in range(4): a(f"v_mul_f32 v{O+v}, v{vL}, v{O+v}")
        for v in range(4): a(f"v_cvt_pk_bf16_f32 v{O+v}, v{O+v}, v{O+v}")
        self.exec_lo32()
        a(f"ds_write_b128 v{tmp}, {V(O)} offset:{L_C}")
        self.exec_full()
        a("s_waitcnt lgkmcnt(0)")
        a(f"{L}:")
        a(f"s_lshl_b32 s68, s{sW}, 6"); a(f"v_add_u32 v{vG}, s68, v{vG}")
        a("s_barrier")
        a(f"ds_read_b128 {V(O)}, v{vG} offset:{L_C}")
        a("s_waitcnt vmcnt(0) lgkmcnt(0)")
        self.rowacc(DD, AB, M0, 4, lambda i: (O + i, None), lambda i: WO + 4 * i)
        self.exec_lo32()
        a(f"ds_write_b128 v{vA}, {V(DD)} offset:{L_Y}")
        self.exec_full()
        a("s_waitcnt lgkmcnt(0)")
        a("s_barrier")
        a(f"s_cmp_eq_u32 s{sW}, 0"); a(f"s_cbranch_scc0 {Le}")
        a(f"v_and_b32 v{tmp}, 31, v1"); a(f"v_lshlrev_b32 v{tmp}, 4, v{tmp}")
        for k in range(8): a(f"ds_read_b128 {V(G2+4*k)}, v{tmp} offset:{L_Y+512*k}")
        a(f"s_mul_i32 s68, s{sH}, 2560"); a(f"s_lshl_b32 s69, s{sSub}, 9"); a("s_add_u32 s68, s68, s69"); a(f"s_add_u32 s68, s68, {WS_YB}")
        a("s_waitcnt lgkmcnt(0)")
        self.tree_add(G2, 8)
        self.pack(G2, vTag)
        self.exec_lo32()
        a(f"buffer_store_dwordx4 {V(G2)}, v{tmp}, {WS}, s68 offen sc1")
        self.exec_full()
        a(f"{Le}:")
        self.stamp(7)
        self.finish("B")

    def role_PR(self):
        a = self.a; V = self.V; S = self.S
        vUK, vUV, M0, QF, DD, AB, T, U, vTag, vLD, tmp = 2, 3, 4, 8, 12, 16, 24, 32, 36, 37, 40
        UK, UV, CT, ML, GQ, G = 64, 128, 192, 224, 192, 48
        self.code_prefetch("L_PR", "L_Q", 254, 255, 1)
        a(f"s_add_u32 s{sH}, s6, s7")
        a(f"v_lshrrev_b32 v{tmp+2}, 4, v1"); a(f"v_and_b32 v{tmp+3}, 15, v1"); a(f"v_lshlrev_b32 v{tmp+3}, 4, v{tmp+3}")
        a(f"v_lshl_add_u32 v{vUK}, v{tmp+2}, 16, v{tmp+3}")
        a(f"v_lshl_add_u32 v{vUV}, v{tmp+2}, 17, v{tmp+3}")
        a(f"s_and_b32 s68, s{sW}, 3"); a("s_add_u32 s79, s68, s6")
        a(f"s_lshr_b32 s70, s{sW}, 2"); a("s_lshl_b32 s71, s7, 1"); a("s_add_u32 s70, s70, s71")
        a("s_lshl_b32 s73, s70, 19"); a("s_lshl_b32 s69, s79, 8"); a("s_add_u32 s73, s73, s69")
        a(f"s_lshl_b32 s74, s{sW}, 19"); a(f"s_lshl_b32 s69, s{sH}, 8"); a("s_add_u32 s74, s74, s69")
        a(f"s_mul_i32 s76, s79, {512*NS}"); a(f"s_add_u32 s76, s76, {WS_QA}")
        a("s_waitcnt lgkmcnt(0)")
        self.srd(SRD2, pWUK, 512 * 8192)
        for i in range(16):
            b, ii = i >> 3, i & 7
            if i == 8: a(f"s_add_u32 s73, s73, {8192*25}")
            elif i: a("s_add_u32 s73, s73, 8192")
            a(f"buffer_load_dwordx4 {V(UK+4*i)}, v{vUK}, {S(SRD2)}, s73 offen {self.nt}")
        self.common2()
        self.srd(SRD3, pWUV, 512 * 8192)
        self.masks(M0, 1, tmp, tmp + 1)
        a(f"v_and_b32 v{tmp}, 15, v1"); a(f"v_bfe_u32 v{tmp+1}, v1, 4, 1")
        a(f"v_lshl_add_u32 v{tmp}, v{tmp}, 1, v{tmp+1}"); a(f"v_lshlrev_b32 v{tmp}, 4, v{tmp}")
        a(f"s_lshl_b32 s68, s{sW}, 9"); a(f"v_add_u32 v{vLD}, s68, v{tmp}")
        self.tag(vTag)
        a(f"v_and_b32 v{tmp}, 31, v1"); a(f"v_lshlrev_b32 v{tmp}, 4, v{tmp}")
        def gather_q():
            for i in range(NS): a(f"buffer_load_dwordx4 {V(GQ+4*i)}, v{tmp}, {WS}, s76 offen offset:{512*i} sc1")
        a("s_waitcnt vmcnt(3)")
        self.stamp(1)
        self.poll_loop(gather_q, [GQ + 4 * i + 3 for i in range(NS)], sleep=1, name="pq")
        self.stamp(2)
        for i in range(NS): self.unpack(GQ + 4 * i)
        self.tree_add(GQ, NS)
        a(f"v_cvt_pk_bf16_f32 v{GQ}, v{GQ}, v{GQ+1}"); a(f"v_cvt_pk_bf16_f32 v{GQ+1}, v{GQ+2}, v{GQ+3}")
        a(f"s_lshl_b32 s68, s{sW}, 8"); a(f"v_lshrrev_b32 v{tmp}, 1, v{tmp}"); a(f"v_add_u32 v{tmp}, s68, v{tmp}")
        self.exec_lo32()
        a(f"ds_write_b64 v{tmp}, {V(GQ,2)} offset:8192")
        self.exec_full()
        a(f"v_and_b32 v{tmp}, 15, v1"); a(f"v_lshlrev_b32 v{tmp}, 4, v{tmp}"); a(f"v_add_u32 v{tmp}, s68, v{tmp}")
        a("s_waitcnt lgkmcnt(0)")
        a(f"ds_read_b128 {V(QF)}, v{tmp} offset:8192")
        a(f"v_lshrrev_b32 v{tmp}, 3, v1"); a(f"v_lshlrev_b32 v{tmp}, 4, v{tmp}")
        a("s_lshl_b32 s68, s79, 11"); a("s_lshl_b32 s69, s70, 8"); a("s_add_u32 s68, s68, s69"); a(f"s_add_u32 s68, s68, {WS_QABS}")
        a("s_waitcnt lgkmcnt(0)")
        self.stamp(3)
        for b in range(2):
            Ub = U if b == 0 else 48
            for r in range(4):
                for i in range(8):
                    kr = UK + 4 * (8 * b + i)
                    if r == 0: a(f"v_dot2_f32_bf16 v{T+i}, v{kr}, v{QF}, 0")
                    else: a(f"v_dot2c_f32_bf16 v{T+i}, v{kr+r}, v{QF+r}")
            for k in range(4): a(f"v_add_f32_dpp v{Ub+k}, v{T+k}, v{T+k} row_ror:8 row_mask:0xf bank_mask:0x3")
            for k in range(4): a(f"v_add_f32_dpp v{Ub+k}, v{T+k+4}, v{T+k+4} row_ror:8 row_mask:0xf bank_mask:0xc")
            for k in range(4): a(f"v_add_f32_dpp v{Ub+k}, v{Ub+k}, v{Ub+k} row_half_mirror row_mask:0xf bank_mask:0xf")
            for k in range(4): a(f"v_add_f32_dpp v{Ub+k}, v{Ub+k}, v{Ub+k} quad_perm:[2,3,0,1] row_mask:0xf bank_mask:0xf")
            for k in range(4): a(f"v_add_f32_dpp v{Ub+k}, v{Ub+k}, v{Ub+k} quad_perm:[1,0,3,2] row_mask:0xf bank_mask:0xf")
            self.pack(Ub, vTag)
            a("s_mov_b32 exec_lo, 0x01010101"); a("s_mov_b32 exec_hi, 0x01010101")
            a(f"buffer_store_dwordx4 {V(Ub)}, v{tmp}, {WS}, s68 offen offset:{128*b} sc1")
            self.exec_full()
        self.stamp(4)
        a("s_barrier")
        for i in range(16):
            if i: a("s_add_u32 s74, s74, 8192")
            a(f"buffer_load_dwordx4 {V(UV+4*i)}, v{vUV}, {S(SRD3)}, s74 offen {self.nt}")
        MLr, CO = 208, 48
        a(f"v_lshrrev_b32 v{tmp}, 3, v1"); a(f"v_lshlrev_b32 v{tmp+2}, 4, v{tmp}")
        a(f"v_and_b32 v{tmp+1}, 7, v1"); a(f"v_lshlrev_b32 v{tmp+1}, 4, v{tmp+1}"); a(f"v_lshl_add_u32 v{tmp+3}, v{tmp}, 10, v{tmp+1}")
        a(f"s_lshl_b32 s76, s{sH}, 9"); a(f"s_add_u32 s76, s76, {WS_ML}")
        a(f"s_lshl_b32 s78, s{sH}, 15"); a(f"s_lshl_b32 s68, s{sW}, 7"); a("s_add_u32 s78, s78, s68"); a(f"s_add_u32 s78, s78, {WS_CTX}")
        def gather_ml():
            for i in range(4): a(f"buffer_load_dwordx4 {V(MLr+4*i)}, v{tmp+2}, {WS}, s76 offen offset:{128*i} sc1")
        self.poll_loop(gather_ml, [MLr + 4 * i + 3 for i in range(4)], sleep=2, name="pml")
        self.stamp(5)
        for i in range(4):
            if i: a("s_add_u32 s78, s78, 8192")
            a(f"buffer_load_dwordx4 {V(CT+4*i)}, v{tmp+3}, {WS}, s78 offen sc1")
        vM, vL = T, T + 1
        a(f"v_max3_f32 v{vM}, v{MLr}, v{MLr+4}, v{MLr+8}"); a(f"v_max_f32 v{vM}, v{vM}, v{MLr+12}")
        def allred(r, op, t):
            a(f"{op}_dpp v{r}, v{r}, v{r} row_ror:8 row_mask:0xf bank_mask:0xf")
            a(f"v_mov_b32 v{t}, v{r}"); a(f"v_permlane16_swap_b32 v{r}, v{t}"); a(f"{op} v{r}, v{r}, v{t}")
            a(f"v_mov_b32 v{t}, v{r}"); a(f"v_permlane32_swap_b32 v{r}, v{t}"); a(f"{op} v{r}, v{r}, v{t}")
        allred(vM, "v_max_f32", T + 2)
        for i in range(4): a(f"v_sub_f32 v{MLr+4*i}, v{MLr+4*i}, v{vM}")
        for i in range(4): a(f"v_exp_f32 v{MLr+4*i}, v{MLr+4*i}")
        a(f"v_mul_f32 v{vL}, v{MLr}, v{MLr+1}")
        for i in range(1, 4): a(f"v_fmac_f32 v{vL}, v{MLr+4*i}, v{MLr+4*i+1}")
        allred(vL, "v_add_f32", T + 2)
        a(f"v_rcp_f32 v{vL}, v{vL}")
        for i in range(4): a(f"v_mul_f32 v{MLr+4*i}, v{vL}, v{MLr+4*i}")
        for i in range(4): a(f"v_cvt_pk_bf16_f32 v{MLr+4*i}, v{MLr+4*i}, v{MLr+4*i}")
        a(f"v_and_b32 v{tmp}, 7, v1"); a(f"v_bfe_u32 v{tmp+1}, v1, 4, 1"); a(f"v_lshl_add_u32 v{tmp}, v{tmp}, 1, v{tmp+1}"); a(f"v_lshlrev_b32 v{tmp}, 4, v{tmp}")
        a(f"s_lshl_b32 s68, s{sW}, 8"); a(f"v_add_u32 v{tmp}, s68, v{tmp}")
        a(f"v_lshrrev_b32 v{tmp+1}, 4, v1"); a(f"v_lshlrev_b32 v{tmp+1}, 6, v{tmp+1}"); a(f"v_add_u32 v{tmp+1}, s68, v{tmp+1}")
        a("s_waitcnt vmcnt(0)")
        self.stamp(6)
        self.rowacc(DD, AB, M0, 4, lambda i: (MLr + 4 * i, None), lambda i: CT + 4 * i)
        for v in range(4): a(f"v_mov_b32 v{T+v}, v{DD+v}")
        for v in range(4): a(f"v_permlane32_swap_b32 v{DD+v}, v{T+v}")
        for v in range(4): a(f"v_add_f32_dpp v{DD+v}, v{T+v}, v{DD+v} row_shl:8 row_mask:0xf bank_mask:0x3")
        for v in range(4): a(f"v_cvt_pk_bf16_f32 v{DD+v}, v{DD+v}, v{DD+v}")
        a("s_mov_b32 exec_lo, 0x00ff00ff"); a("s_mov_b32 exec_hi, 0")
        a(f"ds_write_b128 v{tmp}, {V(DD)} offset:8192")
        self.exec_full()
        a("s_waitcnt lgkmcnt(0)")
        for k in range(4): a(f"ds_read_b128 {V(CO+4*k)}, v{tmp+1} offset:{8192+16*k}")
        a("s_waitcnt lgkmcnt(0)")
        self.rowacc(DD, AB, M0, 16, lambda i: (CO + i, None), lambda i: UV + 4 * i)
        self.exec_lo32()
        a(f"ds_write_b128 v{vLD}, {V(DD)}")
        self.exec_full()
        a("s_waitcnt lgkmcnt(0)")
        a("s_barrier")
        L = self.lab("p4"); a(f"s_cmp_eq_u32 s{sW}, 0"); a(f"s_cbranch_scc0 {L}")
        a(f"v_and_b32 v{tmp}, 31, v1"); a(f"v_lshlrev_b32 v{tmp}, 4, v{tmp}")
        for k in range(8): a(f"ds_read_b128 {V(CT+4*k)}, v{tmp} offset:{512*k}")
        a(f"s_lshl_b32 s68, s{sH}, 9"); a(f"s_add_u32 s68, s68, {WS_CTXF}")
        a("s_waitcnt lgkmcnt(0)")
        self.tree_add(CT, 8)
        self.pack(CT, vTag)
        self.exec_lo32()
        a(f"buffer_store_dwordx4 {V(CT)}, v{tmp}, {WS}, s68 offen sc1")
        self.exec_full()
        a(f"{L}:")
        self.stamp(7)
        Le = self.lab("pend")
        a(f"s_lshl_b32 s79, s{sH}, 3"); a(f"s_add_u32 s79, s79, s{sW}")
        a(f"v_and_b32 v{tmp}, 31, v1"); a("s_movk_i32 s68, 2560"); a(f"v_mul_u32_u24 v{tmp}, s68, v{tmp}")
        a(f"v_lshrrev_b32 v{tmp+1}, 5, v1"); a(f"v_lshl_add_u32 v{tmp}, v{tmp+1}, 4, v{tmp}")
        a(f"v_lshlrev_b32 v{tmp+1}, 3, v{tmp+1}"); a(f"v_mov_b32 v{tmp+2}, 0")
        a("s_cmp_lt_u32 s79, 80"); a(f"s_cbranch_scc0 {Le}")
        regs = [G + v for v in range(4)]
        for br in range(2):
            a(f"s_lshl_b32 s76, s79, 5"); a(f"s_add_u32 s76, s76, {WS_YB if br else WS_YA}")
            a("s_lshl_b32 s78, s79, 4")
            if br:
                a("s_add_u32 s78, s78, 1280")
                a("s_and_b32 s68, s79, 31"); a("s_lshl_b32 s68, s68, 7"); a(f"s_add_u32 s77, s68, {WS_MLB}")
                def gather_ind(): a(f"buffer_load_dwordx4 {V(G)}, v{tmp+2}, {WS}, s77 offen sc1")
                self.poll_loop(gather_ind, [G + 3], sleep=4, name="pind")
            def gather_y(): a(f"buffer_load_dwordx4 {V(G)}, v{tmp}, {WS}, s76 offen sc1")
            self.poll_loop(gather_y, [G + 3], sleep=(0 if br else 2), name="py")
            self.unpack(G)
            self.row_allreduce(regs, "v_add_f32")
            for r in regs: a(f"v_add_f32_dpp v{r}, v{r}, v{r} row_bcast:15 row_mask:0xa bank_mask:0xf")
            a(f"v_cvt_pk_bf16_f32 v{G}, v{G}, v{G+1}"); a(f"v_cvt_pk_bf16_f32 v{G+1}, v{G+2}, v{G+3}")
            a("s_mov_b32 exec_lo, 0x80000000"); a("s_mov_b32 exec_hi, 0x80000000")
            a(f"buffer_store_dwordx2 {V(G,2)}, v{tmp+1}, {OUT}, s78 offen")
            self.exec_full()
            self.stamp(1 + br)
        a("s_cmp_eq_u32 s79, 0"); a(f"s_cbranch_scc0 {Le}")
        a(f"s_add_u32 s68, s{sEpoch}, 1"); a(f"v_mov_b32 v{tmp}, s68")
        a("s_mov_b64 exec, 1")
        a(f"buffer_store_dword v{tmp}, v{tmp+2}, {WS}, 0 offen")
        self.exec_full()
        a(f"{Le}:")
        self.finish("PR")

    def role_Q(self):
        a = self.a; V = self.V; S = self.S
        vL16, M0, Z, DS, AB, G, vTag = 2, 4, 8, 16, 24, 32, 3
        SA, PA = 64, 192
        tmp = 12
        t2 = 24
        a("; ---------------- role Q ----------------")
        self.code_prefetch("L_Q", "L_end", 14, 32, 1)
        a(f"s_sub_u32 s7, s7, 4"); a(f"s_add_u32 s{sH}, s6, s7")
        a(f"v_lshlrev_b32 v{vL16}, 4, v1")
        a(f"s_lshl_b32 s72, s{sH}, 17"); a(f"s_lshl_b32 s68, s{sW}, 14"); a("s_add_u32 s72, s72, s68")
        a(f"s_lshl_b32 s73, s{sW}, 14")
        a("s_waitcnt lgkmcnt(0)")
        self.srd(SRD1, pCKV, 4096 * 1024)
        for r in range(16):
            f = (r & 8) | ((r & 3) << 1)
            a(f"v_xor_b32 v{tmp + (r & 1)}, {16*f}, v{vL16}")
            a(f"s_add_u32 m0, s73, {1024*r}")
            a(f"s_add_u32 s74, s72, {1024*r}")
            a(f"buffer_load_dwordx4 v{tmp + (r & 1)}, {S(SRD1)}, s74 offen {self.nt} lds")
        self.common2()
        self.srd(SRD2, pWOA, 4096 * 1280)
        self.masks(M0, 1, tmp, tmp + 1)
        a(f"v_and_b32 v{tmp}, 3, v1"); a(f"v_lshlrev_b32 v{tmp}, 1, v{tmp}"); a(f"v_and_b32 v{tmp+1}, 8, v1"); a(f"v_or_b32 v{tmp}, v{tmp}, v{tmp+1}")
        a(f"v_lshrrev_b32 v{tmp+1}, 4, v1"); a(f"v_xor_b32 v{tmp}, v{tmp}, v{tmp+1}"); a(f"v_lshlrev_b32 v{tmp}, 4, v{tmp}")
        for m in range(4): a(f"v_xor_b32 v{Z+m}, {64*m}, v{tmp}")
        a(f"v_and_b32 v{tmp+2}, 15, v1")
        a(f"s_and_b32 s68, s{sW}, 3"); a("s_lshl_b32 s68, s68, 15"); a(f"v_lshl_add_u32 v{tmp+3}, v{tmp+2}, 10, s68")
        for m in range(4): a(f"v_add_u32 v{t2+m}, v{tmp+3}, v{Z+m}")
        a(f"v_bfe_u32 v{tmp}, v1, 2, 2")
        a(f"v_bfe_u32 v{tmp+1}, v1, 4, 1"); a(f"v_lshlrev_b32 v{tmp+1}, 3, v{tmp+1}"); a(f"v_lshl_or_b32 v{tmp+1}, v{tmp}, 1, v{tmp+1}")
        a(f"v_bfe_u32 v{tmp+3}, v1, 1, 1"); a(f"v_xor_b32 v{tmp+1}, v{tmp+1}, v{tmp+3}")
        a(f"s_and_b32 s68, s{sW}, 1"); a("s_lshl_b32 s68, s68, 3"); a(f"v_xor_b32 v{tmp+1}, s68, v{tmp+1}")
        a(f"v_lshrrev_b32 v{tmp+3}, 4, v1"); a(f"v_lshl_add_u32 v{tmp}, v{tmp+3}, 3, v{tmp}")
        a(f"v_lshlrev_b32 v{tmp}, 10, v{tmp}"); a(f"v_and_b32 v{tmp+3}, 1, v1"); a(f"v_lshl_add_u32 v{tmp}, v{tmp+3}, 3, v{tmp}")
        a(f"s_lshr_b32 s68, s{sW}, 1"); a("s_lshl_b32 s68, s68, 8"); a(f"v_add_u32 v{tmp}, s68, v{tmp}")
        for ct in range(4):
            a(f"v_xor_b32 v{t2+4+ct}, {2*ct}, v{tmp+1}"); a(f"v_lshl_add_u32 v{t2+4+ct}, v{t2+4+ct}, 4, v{tmp}")
        a("s_waitcnt vmcnt(0)")
        self.tag(vTag)
        a("s_barrier")
        self.stamp(1)
        for kt in range(2):
            for ks in range(16):
                a(f"ds_read_b128 {V(SA+64*kt+4*ks)}, v{t2+(ks&3)} offset:{256*(ks>>2)+16384*kt}")
            a("s_waitcnt lgkmcnt(8)")
        for half in range(2):
            for ct in range(4):
                for kk in range(2):
                    for hh in range(2):
                        r = PA + 16 * ct + 4 * (2 * half + kk) + 2 * hh
                        a(f"ds_read_b64_tr_b16 {V(r,2)}, v{t2+4+ct} offset:{(32*kk+4*hh)*1024}")
                a("s_waitcnt lgkmcnt(8)")
            if half == 0:
                for ct in range(4): a(f"v_add_u32 v{t2+4+ct}, 0x10000, v{t2+4+ct}")
        a("s_waitcnt lgkmcnt(0)")
        a("s_barrier")
        self.stamp(2)
        a(f"s_lshl_b32 s76, s{sW}, 13"); a(f"s_add_u32 s76, s76, {WS_QABS}"); a("s_add_u32 s77, s76, 4096")
        a(f"v_mov_b32 v{tmp}, 0")
        def gather_ind(): a(f"buffer_load_dwordx4 {V(G)}, v{tmp}, {WS}, s76 offen sc1")
        self.poll_loop(gather_ind, [G + 3], sleep=2, name="qind")
        def gather_qabs():
            for i in range(8):
                a(f"buffer_load_dwordx4 {V(G+4*i)}, v{vL16}, {WS}, s{76 if i < 4 else 77} offen offset:{1024*(i&3)} sc1")
        self.poll_loop(gather_qabs, [G + 4 * i + 3 for i in range(8)], sleep=0, name="qabs")
        self.stamp(3)
        a(f"s_bfe_u32 s68, s{sW}, 0x10001"); a("s_lshl_b32 s68, s68, 7"); a(f"v_lshlrev_b32 v{tmp}, 3, v1"); a(f"v_xor_b32 v{tmp}, s68, v{tmp}")
        a(f"s_lshl_b32 s68, s{sW}, 12")
        for ii in range(4):
            a(f"v_xor_b32 v{t2+ii}, {32*ii}, v{tmp}"); a(f"v_add_u32 v{t2+ii}, s68, v{t2+ii}")
        for i in range(8):
            r = G + 4 * i
            self.unpack(r)
            a(f"v_cvt_pk_bf16_f32 v{r}, v{r}, v{r+1}"); a(f"v_cvt_pk_bf16_f32 v{r+1}, v{r+2}, v{r+3}")
            a(f"ds_write_b64 v{t2+(i>>1)}, {V(r,2)} offset:{1024*(i>>1)+512*(i&1)}")
        a(f"s_lshr_b32 s68, s{sW}, 2"); a("s_lshl_b32 s68, s68, 14"); a(f"v_lshl_add_u32 v{tmp+3}, v{tmp+2}, 10, s68")
        for m in range(4): a(f"v_add_u32 v{t2+4+m}, v{tmp+3}, v{Z+m}")
        a("s_waitcnt lgkmcnt(0)")
        a("s_barrier")
        for ks in range(8): a(f"ds_read_b128 {V(G+4*ks)}, v{t2+4+(ks&3)} offset:{256*(ks>>2)}")
        for ks in range(16):
            a(f"s_waitcnt lgkmcnt({min(7, 15-ks)})")
            for kt in range(2):
                a(f"v_mfma_f32_16x16x32_bf16 {V(DS+4*kt)}, {V(SA+64*kt+4*ks)}, {V(G+4*(ks&7))}, {'0' if ks == 0 else V(DS+4*kt)}")
            if ks < 8:
                k2 = ks + 8
                a(f"ds_read_b128 {V(G+4*ks)}, v{t2+4+(k2&3)} offset:{256*(k2>>2)}")
        WO, YD = 96, 176
        vWO = 62
        a(f"v_lshrrev_b32 v{vWO}, 4, v1"); a("s_movk_i32 s68, 5120"); a(f"v_mul_u32_u24 v{vWO}, s68, v{vWO}"); a(f"v_lshl_add_u32 v{vWO}, v{tmp+2}, 4, v{vWO}")
        a(f"s_lshl_b32 s68, s{sH}, 3"); a(f"s_add_u32 s68, s68, s{sW}"); a(f"s_mul_i32 s72, s68, {16*1280}")
        def wo_load(n):
            rg, cb = divmod(n, 5)
            a(f"s_add_u32 s73, s72, {1280*rg}")
            a(f"buffer_load_dwordx4 {V(WO+4*n)}, v{vWO}, {S(SRD2)}, s73 offen offset:{256*cb} {self.nt}")
        for n in range(self.NE): wo_load(n)
        vM = tmp; SM, SS, PO = 32768, 33280, 36864
        a(f"v_max3_f32 v{vM}, v{DS}, v{DS+1}, v{DS+2}"); a(f"v_max3_f32 v{vM}, v{vM}, v{DS+3}, v{DS+4}")
        a(f"v_max3_f32 v{vM}, v{vM}, v{DS+5}, v{DS+6}"); a(f"v_max_f32 v{vM}, v{vM}, v{DS+7}")
        def allrows(r, op, t):
            a(f"v_mov_b32 v{t}, v{r}"); a(f"v_permlane16_swap_b32 v{r}, v{t}"); a(f"{op} v{r}, v{r}, v{t}")
            a(f"v_mov_b32 v{t}, v{r}"); a(f"v_permlane32_swap_b32 v{r}, v{t}"); a(f"{op} v{r}, v{r}, v{t}")
        allrows(vM, "v_max_f32", tmp + 1)
        a(f"s_lshr_b32 s68, s{sW}, 2"); a("s_lshl_b32 s68, s68, 8"); a(f"v_lshl_add_u32 v{t2}, v{tmp+2}, 4, s68")
        a(f"s_and_b32 s69, s{sW}, 3"); a("s_lshl_b32 s69, s69, 2"); a(f"v_add_u32 v{t2+1}, s69, v{t2}")
        a("s_mov_b32 exec_hi, 0"); a("s_mov_b32 exec_lo, 0xffff")
        a(f"ds_write_b32 v{t2+1}, v{vM} offset:{SM}")
        self.exec_full()
        a("s_waitcnt lgkmcnt(0)")
        a("s_barrier")
        a(f"ds_read_b128 {V(G)}, v{t2} offset:{SM}")
        a(f"v_and_b32 v{t2+2}, 3, v1"); a(f"v_lshlrev_b32 v{t2+2}, 1, v{t2+2}"); a(f"v_and_b32 v{t2+3}, 8, v1"); a(f"v_or_b32 v{t2+2}, v{t2+2}, v{t2+3}")
        a(f"v_lshrrev_b32 v{t2+3}, 5, v1"); a(f"v_xor_b32 v{t2+2}, v{t2+2}, v{t2+3}")
        a(f"s_and_b32 s69, s{sW}, 3"); a("s_lshl_b32 s69, s69, 2"); a(f"v_xor_b32 v{t2+2}, s69, v{t2+2}")
        a(f"v_bfe_u32 v{t2+3}, v1, 4, 1"); a(f"v_lshlrev_b32 v{t2+3}, 3, v{t2+3}")
        a(f"v_lshl_add_u32 v{t2+3}, v{tmp+2}, 8, v{t2+3}"); a("s_lshl_b32 s68, s68, 4"); a(f"v_add_u32 v{t2+3}, s68, v{t2+3}")
        a(f"v_lshl_add_u32 v{t2+4}, v{t2+2}, 4, v{t2+3}")
        a(f"v_xor_b32 v{t2+2}, 2, v{t2+2}"); a(f"v_lshl_add_u32 v{t2+5}, v{t2+2}, 4, v{t2+3}")
        a("s_waitcnt lgkmcnt(0)")
        a(f"v_max3_f32 v{vM}, v{G}, v{G+1}, v{G+2}"); a(f"v_max_f32 v{vM}, v{vM}, v{G+3}")
        a(f"v_mul_f32 v{vM}, s{sC1}, v{vM}")
        for k in range(8): a(f"v_fma_f32 v{DS+k}, v{DS+k}, s{sC1}, -v{vM}")
        for k in range(8): a(f"v_exp_f32 v{DS+k}, v{DS+k}")
        vS = tmp + 3
        a(f"v_add_f32 v{vS}, v{DS}, v{DS+1}")
        for k in range(2, 8): a(f"v_add_f32 v{vS}, v{vS}, v{DS+k}")
        for kt in range(2):
            a(f"v_cvt_pk_bf16_f32 v{DS+4*kt}, v{DS+4*kt}, v{DS+4*kt+1}"); a(f"v_cvt_pk_bf16_f32 v{DS+4*kt+1}, v{DS+4*kt+2}, v{DS+4*kt+3}")
            a(f"ds_write_b64 v{t2+4+kt}, {V(DS+4*kt,2)} offset:{PO}")
        allrows(vS, "v_add_f32", tmp + 1)
        a("s_mov_b32 exec_hi, 0"); a("s_mov_b32 exec_lo, 0xffff")
        a(f"ds_write_b32 v{t2+1}, v{vS} offset:{SS}")
        self.exec_full()
        a("s_waitcnt lgkmcnt(0)")
        a("s_barrier")
        self.stamp(4)
        a(f"v_lshlrev_b32 v{tmp+3}, 8, v{tmp+2}")
        for kk in range(4): a(f"v_add_u32 v{t2+kk}, v{tmp+3}, v{Z+kk}")
        for ht in range(2):
            for kk in range(4): a(f"ds_read_b128 {V(G+16*ht+4*kk)}, v{t2+kk} offset:{PO+4096*ht}")
        PD = SA
        for ht in range(2):
            a(f"s_waitcnt lgkmcnt({4 if ht == 0 else 0})")
            for kk in range(4):
                for ct in range(4):
                    d = PD + 16 * ht + 4 * ct
                    a(f"v_mfma_f32_16x16x32_bf16 {V(d)}, {V(PA+16*ct+4*kk)}, {V(G+16*ht+4*kk)}, {'0' if kk == 0 else V(d)}")
        TO = 65536
        a(f"v_lshrrev_b32 v{t2}, 4, v1")
        a(f"v_and_b32 v{t2+1}, 7, v1"); a(f"v_lshlrev_b32 v{t2+1}, 1, v{t2+1}"); a(f"v_xor_b32 v{t2+1}, v{t2+1}, v{t2}")
        a(f"s_lshl_b32 s68, s{sW}, 12"); a(f"s_add_u32 s68, s68, {TO}")
        a(f"v_lshl_add_u32 v{t2+2}, v{tmp+2}, 7, s68")
        for ct in range(4):
            a(f"v_xor_b32 v{t2+4+ct}, {4*ct}, v{t2+1}"); a(f"v_lshl_add_u32 v{t2+4+ct}, v{t2+4+ct}, 3, v{t2+2}")
        for ht in range(2):
            for ct in range(4):
                d = PD + 16 * ht + 4 * ct
                a(f"v_cvt_pk_bf16_f32 v{d}, v{d}, v{d+1}"); a(f"v_cvt_pk_bf16_f32 v{d+1}, v{d+2}, v{d+3}")
                a(f"ds_write_b64 v{t2+4+ct}, {V(d,2)} offset:{2048*ht}")
        a(f"v_lshrrev_b32 v{t2}, 3, v1"); a(f"v_and_b32 v{t2+1}, 7, v1")
        a(f"v_xor_b32 v{t2+2}, v{t2}, v{t2+1}"); a(f"v_lshlrev_b32 v{t2+2}, 4, v{t2+2}"); a(f"v_lshl_add_u32 v{t2+2}, v{t2}, 7, v{t2+2}"); a(f"v_add_u32 v{t2+2}, s68, v{t2+2}")
        a(f"v_lshlrev_b32 v{t2+1}, 4, v{t2+1}"); a(f"v_lshl_add_u32 v{t2+1}, v{t2}, 15, v{t2+1}")
        a(f"s_lshl_b32 s76, s{sH}, 10"); a(f"s_lshl_b32 s69, s{sW}, 7"); a("s_add_u32 s76, s76, s69"); a(f"s_add_u32 s76, s76, {WS_CTX}")
        a("s_waitcnt lgkmcnt(0)")
        for i in range(4): a(f"ds_read_b128 {V(G+4*i)}, v{t2+2} offset:{1024*i}")
        for i in range(4):
            a(f"s_waitcnt lgkmcnt({3-i})")
            a(f"buffer_store_dwordx4 {V(G+4*i)}, v{t2+1}, {WS}, s76 offen sc1")
            if i < 3: a("s_add_u32 s76, s76, 0x40000")
        if self.exp == 1: self.stamp(6)
        a("s_waitcnt vmcnt(0)")
        if self.exp == 1: self.stamp(7)
        a("s_barrier")
        L = self.lab("q1"); a(f"s_cmp_eq_u32 s{sW}, 0"); a(f"s_cbranch_scc0 {L}")
        a(f"v_and_b32 v{tmp}, 31, v1"); a(f"v_lshlrev_b32 v{tmp+1}, 4, v{tmp}")
        a(f"ds_read_b128 {V(PA)}, v{tmp+1} offset:{SM}"); a(f"ds_read_b128 {V(PA+4)}, v{tmp+1} offset:{SS}")
        a(f"v_lshlrev_b32 v{tmp}, 9, v{tmp}"); a(f"s_lshl_b32 s68, s{sH}, 4"); a(f"s_add_u32 s68, s68, {WS_ML}")
        a("s_waitcnt lgkmcnt(0)")
        a(f"v_max3_f32 v{PA}, v{PA}, v{PA+1}, v{PA+2}"); a(f"v_max_f32 v{PA}, v{PA}, v{PA+3}"); a(f"v_mul_f32 v{PA}, s{sC1}, v{PA}")
        a(f"v_pk_add_f32 {V(PA+4,2)}, {V(PA+4,2)}, {V(PA+6,2)}"); a(f"v_add_f32 v{PA+1}, v{PA+4}, v{PA+5}")
        a(f"v_mov_b32 v{PA+2}, 0"); a(f"v_mov_b32 v{PA+3}, v{vTag}")
        self.exec_lo32()
        a(f"buffer_store_dwordx4 {V(PA)}, v{tmp}, {WS}, s68 offen sc1")
        self.exec_full()
        a(f"{L}:")
        a("s_barrier")
        self.stamp(5)
        a(f"v_lshrrev_b32 v{vWO}, 4, v1"); a("s_movk_i32 s68, 5120"); a(f"v_mul_u32_u24 v{vWO}, s68, v{vWO}"); a(f"v_lshl_add_u32 v{vWO}, v{tmp+2}, 4, v{vWO}")
        for n in range(self.NE, 20): wo_load(n)
        a(f"v_lshrrev_b32 v{tmp}, 4, v1"); a(f"v_lshlrev_b32 v{tmp}, 4, v{tmp}")
        a(f"s_lshl_b32 s76, s{sH}, 9"); a(f"s_lshl_b32 s68, s{sW}, 6"); a("s_add_u32 s76, s76, s68"); a(f"s_add_u32 s76, s76, {WS_CTXF}")
        O = G
        def gather_cf(): a(f"buffer_load_dwordx4 {V(O)}, v{tmp}, {WS}, s76 offen sc1")
        self.poll_loop(gather_cf, [O + 3], sleep=2, name="qcf")
        if self.exp != 1: self.stamp(6)
        self.unpack(O)
        for v in range(4): a(f"v_cvt_pk_bf16_f32 v{O+v}, v{O+v}, v{O+v}")
        def ands(rg):
            ab = AB + 4 * (rg & 1)
            for t in range(4): a(f"v_and_b32 v{ab+t}, v{O+rg}, v{M0+t}")
        ands(0)
        for rg in range(4):
            if rg + 1 < 4: ands(rg + 1)
            ab = AB + 4 * (rg & 1)
            for cb in range(5):
                a(f"v_mfma_f32_16x16x32_bf16 {V(YD+4*cb)}, {V(ab)}, {V(WO+4*(5*rg+cb))}, {'0' if rg == 0 else V(YD+4*cb)}")
        YO = 45056
        a(f"v_and_b32 v{tmp}, 15, v1"); a(f"v_bfe_u32 v{tmp+1}, v1, 4, 1"); a(f"v_lshl_add_u32 v{tmp}, v{tmp}, 1, v{tmp+1}"); a(f"v_lshlrev_b32 v{tmp}, 4, v{tmp}")
        a(f"s_mul_i32 s68, s{sW}, 2560"); a(f"v_add_u32 v{tmp}, s68, v{tmp}")
        self.exec_lo32()
        for cb in range(5): a(f"ds_write_b128 v{tmp}, {V(YD+4*cb)} offset:{YO+512*cb}")
        self.exec_full()
        a("s_waitcnt lgkmcnt(0)")
        a("s_barrier")
        Le = self.lab("qend")
        a(f"v_lshlrev_b32 v{tmp}, 4, v0")
        a(f"s_cmp_lt_u32 s{sW}, 3"); a(f"s_cbranch_scc0 {Le}")
        for k in range(8): a(f"ds_read_b128 {V(G+4*k)}, v{tmp} offset:{YO+2560*k}")
        a(f"s_mul_i32 s68, s{sH}, 2560"); a(f"s_add_u32 s68, s68, {WS_YA}")
        a("v_cmp_gt_u32 vcc, 160, v0")
        a("s_waitcnt lgkmcnt(0)")
        self.tree_add(G, 8)
        self.pack(G, vTag)
        a("s_and_b64 exec, exec, vcc")
        a(f"buffer_store_dwordx4 {V(G)}, v{tmp}, {WS}, s68 offen sc1")
        self.exec_full()
        a(f"{Le}:")
        if self.exp != 1: self.stamp(7)
        self.finish("Q")

if __name__ == "__main__":
    import argparse
    ap = argparse.ArgumentParser()
    ap.add_argument("-o", default="k.s"); ap.add_argument("--prof", action="store_true"); ap.add_argument("--dbgst", action="store_true")
    ap.add_argument("--roles", default="BPQ"); ap.add_argument("--spin", type=int, default=20000); ap.add_argument("--nt", default="nt")
    for k, d in dict(D=5, D0=2, Ds=5, ns=0, Dv=5, pf=1, bar=3, n1=10, prioA=1, light=1, exp=0, NE=5).items(): ap.add_argument("--" + k, type=int, default=d)
    args = ap.parse_args()
    g = Gen3(prof=args.prof, D=args.D, spin=args.spin, roles=args.roles, nt=args.nt, dbgst=args.dbgst, D0=args.D0, Ds=args.Ds, ns=args.ns, Dv=args.Dv, pf=args.pf, bar=args.bar, n1=args.n1)
    g.prioA = args.prioA; g.light = args.light; g.exp = args.exp; g.NE = args.NE
    open(args.o, "w").write(g.build())
    sys.path.insert(0, "exp"); import build
    print(build.build(args.o))
```

```python
import sys, struct
from asmlib import Asm

KN = "concat_heads__compressed_kv_cla__mha_block_cached__decode_kernel"

WS_QB   = 0x1000
WS_QA   = 0xA0000
WS_QABS = 0x20000
WS_ML   = 0x30000
WS_MLB  = 0x34000
WS_OB   = 0x38000
WS_YA   = 0x50000
WS_YB   = 0x78000
WS_PROF = 0xC0000
WS_CTX  = 0x100000
WS_SIZE = 0x300000

def f2u(x): return struct.unpack("<I", struct.pack("<f", x))[0]
C1 = 1.4426950408889634 / (128 ** 0.5)
NEG = -1.0e30

sW, sH, sSub = 3, 4, 5
WS = "s[8:11]"; OUT = "s[12:15]"
pAX, pCKV, pWQA, pWUK, pWUV, pWOA, pBX, pK, pV, pWQB, pWOB, pOUT, pDBG, pWS = 16, 18, 20, 22, 24, 26, 28, 30, 32, 34, 36, 38, 40, 42
SRD1, SRD2, SRD3, SRD4 = 44, 48, 52, 56
sEpoch, sTag = 60, 61
sP0, sP1, sP2, sU, sLo, sHi = 62, 63, 64, 65, 66, 67
sT = 68
sC1 = 80
sCnt = 81
sBias = 82
sProf = 84

class Gen:
    lds = 131072
    pf2 = 0
    def __init__(self, prof=False, D=5, spin=20000, roles="BPQ", dbg=False, nt="nt", dbgst=False, D0=2, Ds=2, ns=8, Dv=5, pf=1, slp=2, nu=4, n1=12, lin="", bar=0, tlb=0):
        self.a = Asm(); self.prof = prof; self.D = D; self.spin = spin; self.roles = roles; self.dbg = dbg
        self.nlab = 0; self.nstamp = 0; self.nt = nt; self.pf = pf; self.slp = slp; self.nu = nu; self.n1 = n1; self.lin = lin; self.bar = bar; self.tlb = tlb; self.D0 = D0; self.Ds = Ds; self.ns = ns; self.Dv = Dv; self.dbgst = dbgst
    def lab(self, base):
        self.nlab += 1; return f"L_{base}_{self.nlab}"
    def stamp(self, k):
        if self.prof or self.dbgst: self.a(f"s_memrealtime s[{sProf+2*k}:{sProf+2*k+1}]")
    def srd(self, base, ptr, size):
        a = self.a
        a(f"s_mov_b32 s{base}, s{ptr}"); a(f"s_mov_b32 s{base+1}, s{ptr+1}")
        a(f"s_mov_b32 s{base+2}, {size}"); a(f"s_mov_b32 s{base+3}, 0x20000")
    @staticmethod
    def S(base): return f"s[{base}:{base+3}]"
    @staticmethod
    def V(r, n=4): return f"v[{r}:{r+n-1}]"
    def pack(self, r, vtag):
        a = self.a
        a(f"v_perm_b32 v{r}, v{r}, v{r+3}, s{sP0}")
        a(f"v_perm_b32 v{r+1}, v{r+1}, v{r+3}, s{sP1}")
        a(f"v_perm_b32 v{r+2}, v{r+2}, v{r+3}, s{sP2}")
        a(f"v_mov_b32 v{r+3}, v{vtag}")
    def unpack(self, r):
        a = self.a
        a(f"v_perm_b32 v{r+3}, v{r+1}, v{r}, s{sU}")
        a(f"v_lshl_or_b32 v{r+3}, v{r+2}, 24, v{r+3}")
    def check(self, regs, acc, val=None):
        a = self.a
        val = val or f"s{sTag}"
        for i, r in enumerate(regs):
            if i == 0: a(f"v_cmp_ne_u32 s[{acc}:{acc+1}], {val}, v{r}")
            else:
                a(f"v_cmp_ne_u32 vcc, {val}, v{r}")
                a(f"s_or_b64 s[{acc}:{acc+1}], s[{acc}:{acc+1}], vcc")
    def poll_loop(self, issue, regs, first_issued=False, first_wait=None, sleep=1, name="poll"):
        a = self.a
        L = self.lab(name); Lc = L + "_c"; Ld = L + "_d"
        a(f"s_mov_b32 s{sCnt}, 0")
        if first_issued:
            a(first_wait)
            a(f"s_branch {Lc}")
        a(f"{L}:")
        issue()
        a("s_waitcnt vmcnt(0)")
        if first_issued: a(f"{Lc}:")
        self.check(regs, 6)
        a("s_cmp_eq_u64 s[6:7], 0")
        a(f"s_cbranch_scc1 {Ld}")
        a(f"s_add_u32 s{sCnt}, s{sCnt}, 1")
        a(f"s_cmp_lt_u32 s{sCnt}, {self.spin}")
        a(f"s_cbranch_scc0 {Ld}")
        if sleep: a(f"s_sleep {sleep}")
        a(f"s_branch {L}")
        a(f"{Ld}:")
        if self.prof:
            a(f"s_min_u32 s{sCnt}, s{sCnt}, 255"); a("s_lshl_b32 s100, s100, 8"); a(f"s_or_b32 s100, s100, s{sCnt}")
    def lds_spin(self, reads, regs, name):
        a = self.a
        L = self.lab(name)
        a(f"s_mov_b32 s{sCnt}, 0")
        a(f"{L}:")
        reads()
        a("s_waitcnt lgkmcnt(0)")
        self.check(regs, 6, "1")
        a("s_cmp_eq_u64 s[6:7], 0"); a(f"s_cbranch_scc1 {L}_d")
        a(f"s_add_u32 s{sCnt}, s{sCnt}, 1"); a(f"s_cmp_lt_u32 s{sCnt}, {self.spin * 8}"); a(f"s_cbranch_scc1 {L}")
        a(f"{L}_d:")
    def masks(self, m0, vlane, t0, t1):
        a = self.a
        a(f"v_and_b32 v{t0}, 1, v{vlane}")
        a(f"v_lshlrev_b32 v{t0}, 4, v{t0}")
        a(f"v_mov_b32 v{t1}, 0xffff")
        a(f"v_lshlrev_b32 v{t0}, v{t0}, v{t1}")
        a(f"v_bfe_u32 v{t1}, v{vlane}, 1, 2")
        for t in range(4):
            a(f"v_cmp_eq_u32 vcc, {t}, v{t1}")
            a(f"v_cndmask_b32 v{m0+t}, 0, v{t0}, vcc")
    def code_prefetch(self, lab0, lab1, vt, vd, nload, wave=7):
        if self.pf != 1: return
        if lab0.endswith("_t") and not self.pf2: return
        a = self.a
        L = self.lab("pf")
        a(f"s_cmp_eq_u32 s{sW}, {wave}"); a(f"s_cbranch_scc0 {L}")
        a("s_getpc_b64 s[70:71]")
        a(f"{L}_pc:")
        if lab0.endswith("_t"): a(f"s_add_u32 s70, s70, {lab0}-{L}_pc"); a("s_addc_u32 s71, s71, 0")
        else: a(f"s_sub_u32 s70, s70, {L}_pc-{lab0}"); a("s_subb_u32 s71, s71, 0")
        for k in range(nload):
            a(f"v_lshlrev_b32 v{vt}, 7, v1")
            if k: a(f"v_add_u32 v{vt}, {8192*k}, v{vt}")
            a(f"v_min_u32 v{vt}, {lab1}-{lab0}-4, v{vt}")
            a(f"global_load_dword v{vd}, v{vt}, s[70:71]")
        a(f"{L}:")
    def tlb_warm(self, items, vz, vd, wave=6):
        if not self.tlb: return
        a = self.a
        L = self.lab("tw")
        a(f"s_cmp_eq_u32 s{sW}, {wave}"); a(f"s_cbranch_scc0 {L}")
        a(f"v_mov_b32 v{vz}, 0")
        a("s_mov_b64 exec, 1")
        for srd, soff in items:
            a(f"buffer_load_dword v{vd}, v{vz}, {srd}, {soff} offen")
        self.exec_full()
        a(f"{L}:")
    def exec_lo32(self): self.a("s_mov_b32 exec_hi, 0")
    def exec_full(self): self.a("s_mov_b64 exec, -1")

    def prologue(self):
        a = self.a
        a("s_cmp_ge_u32 s2, 256"); a("s_cbranch_scc1 L_end")
        a("s_load_dwordx4 s[40:43], s[0:1], 96")
        a("s_load_dwordx16 s[16:31], s[0:1], 0")
        a("s_load_dwordx8 s[32:39], s[0:1], 64")
        self.stamp(0)
        if self.prof: a("s_mov_b32 s100, 0")
        a("v_lshrrev_b32 v2, 6, v0")
        a("v_and_b32 v1, 63, v0")
        a(f"v_readfirstlane_b32 s{sW}, v2")
        if self.pf == 2:
            a(f"s_cmp_eq_u32 s{sW}, 7"); a("s_cbranch_scc0 L_pf0")
            a("s_getpc_b64 s[70:71]")
            a("L_pf0_pc:")
            for k in range(3):
                a("v_lshlrev_b32 v254, 7, v1")
                if k: a(f"v_add_u32 v254, {8192*k}, v254")
                a("v_min_u32 v254, L_end-L_pf0_pc-4, v254")
                a(f"global_load_dword v{32 if False else 255}, v254, s[70:71]")
            a("L_pf0:")
        a("s_and_b32 s6, s2, 7")
        a("s_lshr_b32 s7, s2, 3")
        a(f"s_mov_b32 s{sP0}, 0x07060501"); a(f"s_mov_b32 s{sP1}, 0x07060502"); a(f"s_mov_b32 s{sP2}, 0x07060503")
        a(f"s_mov_b32 s{sU}, 0x0c04000c"); a(f"s_mov_b32 s{sLo}, 0x01000100"); a(f"s_mov_b32 s{sHi}, 0x03020302")
        a(f"s_mov_b32 s{sC1}, {f2u(C1):#x}")
        a("s_lshl_b32 s6, s6, 2")
        a("s_cmp_lt_u32 s7, 8"); a("s_cbranch_scc1 L_PR")
        a("s_cmp_lt_u32 s7, 12"); a("s_cbranch_scc1 L_Q")
    def common2(self):
        a = self.a
        a(f"s_load_dword s{sEpoch}, s[{pWS}:{pWS+1}], 0")
        self.srd(8, pWS, WS_SIZE)
        self.srd(12, pOUT, 2560)
    def tag(self, vtag):
        a = self.a
        a("s_waitcnt lgkmcnt(0)")
        a(f"s_mul_i32 s{sTag}, s{sEpoch}, 0x9E3779B1")
        a(f"s_add_u32 s{sTag}, s{sTag}, 0x85EBCA6B")
        a(f"v_mov_b32 v{vtag}, s{sTag}")
    def finish(self, role=None):
        a = self.a
        if self.prof:
            a("s_waitcnt lgkmcnt(0)")
            a("s_mov_b64 exec, -1")
            a("v_mov_b32 v250, 0")
            for k in range(17):
                a(f"v_writelane_b32 v250, s{sProf+k}, {k}")
            a("v_and_b32 v251, 63, v0"); a("v_lshlrev_b32 v251, 2, v251")
            a(f"s_lshl_b32 s6, s2, 3"); a(f"s_add_u32 s6, s6, s{sW}"); a("s_lshl_b32 s6, s6, 7"); a(f"s_add_u32 s6, s6, {WS_PROF}")
            a("s_mov_b32 exec_hi, 0"); a("s_mov_b32 exec_lo, 0x1ffff")
            a(f"buffer_store_dword v250, v251, {WS}, s6 offen")
        if self.dbgst and role:
            wg, base, ks = {"PR": (0, 0, [1, 4, 5, 6, 7]), "B": (255, 5, [2, 4, 5, 7]), "Q": (64, 9, [1, 2, 3, 4, 5, 6, 7])}[role]
            Ls = self.lab("dbg")
            a("s_waitcnt lgkmcnt(0)")
            a(f"s_cmp_eq_u32 s{sW}, 0"); a(f"s_cbranch_scc0 {Ls}")
            a(f"s_cmp_eq_u32 s2, {wg}"); a(f"s_cbranch_scc0 {Ls}")
            a("s_mov_b64 exec, -1")
            a("v_mov_b32 v250, 0")
            for n, k in enumerate(ks):
                a(f"s_sub_u32 s7, s{sProf+2*k}, s{sProf}"); a(f"v_writelane_b32 v250, s7, {n}")
            a("v_and_b32 v251, 63, v0"); a("v_lshlrev_b32 v251, 2, v251"); a(f"v_add_u32 v251, {4*base}, v251")
            a("s_mov_b32 exec_hi, 0"); a(f"s_mov_b32 exec_lo, {(1 << len(ks)) - 1}")
            a(f"global_store_dword v251, v250, s[{pDBG}:{pDBG+1}]")
            a(f"{Ls}:")
        a("s_endpgm")

    def role_B(self):
        a = self.a; D = self.D; V = self.V; S = self.S
        vL16, vLast, M0, QF, DD, AB, T, T0, T1, U, vTag, vA, vB = 2, 3, 4, 8, 12, 16, 24, 28, 29, 30, 37, 38, 39
        KT, VT = 40, 144
        WA, WB, X, G = 144, 160, 176, 180
        DA = 24
        tmp = 248; vOne = vB
        NK = 26
        L_PB, L_Q, L_O, L_M, L_L, L_F, L_PA, L_Y = 0, 4096, 8192, 12288, 12416, 12544, 16384, 20480
        a("; ---------------- role B ----------------")
        a("L_B:")
        self.code_prefetch("L_B", "L_PR", 254, 255, 1)
        a("s_sub_u32 s7, s7, 12")
        a("s_mul_i32 s68, s7, 52"); a("s_lshr_b32 s68, s68, 8")
        a(f"s_add_u32 s{sH}, s6, s68")
        a("s_mul_i32 s68, s68, 5"); a(f"s_sub_u32 s{sSub}, s7, s68")
        a(f"v_lshlrev_b32 v{vL16}, 4, v1")
        a(f"v_lshrrev_b32 v{tmp}, 4, v1")
        a(f"v_and_b32 v{tmp+1}, 15, v1")
        a(f"v_lshlrev_b32 v{vB}, 15, v{tmp}"); a(f"v_lshl_add_u32 v{vB}, v{tmp+1}, 4, v{vB}")
        a(f"s_lshl_b32 s68, s{sSub}, 3"); a(f"s_add_u32 s68, s68, s{sW}")
        a("s_lshl_b32 s74, s68, 5"); a(f"v_lshl_add_u32 v{vA}, v{tmp}, 3, s74")
        a("s_lshl_b32 s73, s68, 17"); a(f"s_lshl_b32 s74, s{sH}, 8"); a("s_add_u32 s73, s73, s74")
        a("s_lshl_b32 s69, s68, 7"); a("s_mul_hi_u32 s70, s69, 0xCCCCCCCD"); a("s_lshr_b32 s70, s70, 2")
        a("s_add_u32 s69, s69, 128"); a("s_mul_hi_u32 s71, s69, 0xCCCCCCCD"); a("s_lshr_b32 s71, s71, 2")
        a("s_sub_u32 s71, s71, s70")
        a(f"s_lshl_b32 s72, s{sH}, 20"); a("s_lshl_b32 s70, s70, 10"); a("s_add_u32 s72, s72, s70")
        a("s_cmp_eq_u32 s71, 26")
        a(f"s_cselect_b32 s{sBias}, 0, {f2u(NEG):#x}")
        a(f"s_cselect_b32 s74, 0, 0x7f000000")
        a(f"v_or_b32 v{vLast}, s74, v{vL16}")
        a(f"v_mov_b32 v{tmp+2}, 0"); a(f"v_mov_b32 v{tmp+3}, 0")
        a(f"s_lshl_b32 s68, s{sW}, 3"); a(f"v_mov_b32 v{tmp+4}, s68"); a(f"s_lshl_b32 s68, s{sW}, 2"); a(f"v_mov_b32 v{tmp+5}, s68")
        a("s_mov_b64 exec, 1")
        a(f"ds_write_b64 v{tmp+4}, {V(tmp+2,2)} offset:{L_M}")
        a(f"ds_write_b32 v{tmp+5}, v{tmp+2} offset:{L_F}")
        a(f"ds_write_b32 v{tmp+2}, v{tmp+2} offset:{L_F+32}")
        self.exec_full()
        a("s_waitcnt lgkmcnt(0)")
        if "wq" in self.lin:
            a(f"v_lshlrev_b32 v{vB}, 4, v1"); a(f"s_mul_i32 s68, s{sH}, 5"); a(f"s_add_u32 s68, s68, s{sSub}"); a("s_lshl_b32 s68, s68, 3"); a(f"s_add_u32 s68, s68, s{sW}"); a("s_lshl_b32 s73, s68, 12")
        self.srd(SRD4, pWQB, 640 * 8192)
        a(f"global_load_dwordx2 {V(X+2,2)}, v{vA}, s[{pBX}:{pBX+1}]")
        for i in range(4):
            if i == 0: a("s_mov_b32 s69, s73")
            else: a(f"s_add_u32 s69, s69, {1024 if 'wq' in self.lin else 8192}")
            a(f"buffer_load_dwordx4 {V(WB+4*i)}, v{vB}, {S(SRD4)}, s69 offen {self.nt}")
        self.srd(SRD1, pK, 32 << 20); self.srd(SRD2, pV, 32 << 20)
        a("s_mov_b32 s75, s72")
        def kv_load(srd, base, i, soff):
            if i and i % 4 == 0: a(f"s_add_u32 s{soff}, s{soff}, 4096")
            voff = vLast if i == NK - 1 else vL16
            a(f"buffer_load_dwordx4 {V(base+4*i)}, v{voff}, {S(srd)}, s{soff} offen offset:{1024*(i%4)} {self.nt}")
        D0 = self.D0
        for i in range(D0): kv_load(SRD1, KT, i, 75)
        a(f"v_mov_b32 v{vOne}, 1")
        a("s_barrier")
        self.common2()
        if self.tlb:
            self.srd(SRD3, pWOB, 4096 * 1280)
            a(f"s_mul_i32 s68, s{sH}, {128*1280}"); a("s_add_u32 s69, s72, 24576"); a(f"s_mov_b32 s70, {WS_OB}")
            self.tlb_warm([(S(SRD2), "s72"), (S(SRD2), "s69"), (S(SRD3), "s68"), (WS, "s70")], 254, 255)
        self.masks(M0, 1, tmp, tmp + 1)
        a(f"v_and_b32 v{tmp}, 15, v1"); a(f"v_bfe_u32 v{tmp+1}, v1, 4, 1")
        a(f"v_lshl_add_u32 v{tmp}, v{tmp}, 1, v{tmp+1}"); a(f"v_lshlrev_b32 v{tmp}, 4, v{tmp}")
        a(f"s_lshl_b32 s68, s{sW}, 9"); a(f"v_add_u32 v{vA}, s68, v{tmp}")
        sels = [(0, sLo), (0, sHi), (1, sLo), (1, sHi)]
        a(f"s_waitcnt vmcnt({D0})")
        self.stamp(1)
        for i in range(4):
            xr, sel = sels[i]; xr += X + 2
            a(f"v_perm_b32 v{G+i}, v{xr}, v{xr}, s{sel}")
        self.rowacc(DD, AB, M0, 4, lambda i: (G + i, None), lambda i: WB + 4 * i)
        self.tag(vTag)
        self.exec_lo32()
        a(f"ds_write_b128 v{vA}, {V(DD)} offset:{L_PB}")
        a("s_mov_b32 exec_lo, 1")
        a(f"ds_write_b32 v{tmp+5}, v{vOne} offset:{L_F}")
        self.exec_full()
        L = self.lab("b1"); a(f"s_cmp_eq_u32 s{sW}, 0"); a(f"s_cbranch_scc0 {L}")
        a(f"v_mov_b32 v{tmp+4}, 0")
        def rd():
            a(f"ds_read_b128 {V(G+32)}, v{tmp+4} offset:{L_F}"); a(f"ds_read_b128 {V(G+36)}, v{tmp+4} offset:{L_F+16}")
        self.lds_spin(rd, [G + 32 + k for k in range(8)], "bf1")
        a(f"v_and_b32 v{tmp}, 31, v1"); a(f"v_lshlrev_b32 v{tmp}, 4, v{tmp}")
        for k in range(8): a(f"ds_read_b128 {V(G+4*k)}, v{tmp} offset:{L_PB+512*k}")
        a(f"s_mul_i32 s68, s{sH}, 5"); a(f"s_add_u32 s68, s68, s{sSub}"); a("s_lshl_b32 s68, s68, 9"); a(f"s_add_u32 s68, s68, {WS_QB}")
        a("s_waitcnt lgkmcnt(0)")
        self.tree_add(G, 8)
        self.pack(G, vTag)
        self.exec_lo32()
        a(f"buffer_store_dwordx4 {V(G)}, v{tmp}, {WS}, s68 offen sc1")
        self.exec_full()
        a(f"{L}:")
        n1 = self.n1; n2 = n1 + D + 1
        win = lambda i: self.Ds if i < self.ns else D
        def gather_q():
            for s in range(5):
                a(f"buffer_load_dwordx4 {V(G+4*s)}, v{tmp+3}, {WS}, s76 offen offset:{512*s} sc1")
        for i in range(D0, NK):
            if i >= win(i): a(f"s_waitcnt vmcnt({win(i)-1})")
            kv_load(SRD1, KT, i, 75)
            if i == n1:
                L = self.lab("b2")
                a(f"v_and_b32 v{tmp+3}, 31, v1"); a(f"v_lshlrev_b32 v{tmp+3}, 4, v{tmp+3}")
                a(f"s_mul_i32 s76, s{sH}, 2560"); a(f"s_add_u32 s76, s76, {WS_QB}")
                a(f"s_cmp_eq_u32 s{sW}, 1"); a(f"s_cbranch_scc0 {L}")
                gather_q()
                a(f"{L}:")
            if i == n2:
                L = self.lab("b3"); a(f"s_cmp_eq_u32 s{sW}, 1"); a(f"s_cbranch_scc0 {L}")
                self.poll_loop(gather_q, [G + 4 * s + 3 for s in range(5)], first_issued=True,
                               first_wait=f"s_waitcnt vmcnt({n2-n1})", name="bq")
                for s in range(5): self.unpack(G + 4 * s)
                self.tree_add(G, 5)
                a(f"v_cvt_pk_bf16_f32 v{G}, v{G}, v{G+1}")
                a(f"v_cvt_pk_bf16_f32 v{G+1}, v{G+2}, v{G+3}")
                a(f"v_lshrrev_b32 v{tmp+3}, 1, v{tmp+3}")
                self.exec_lo32()
                a(f"ds_write_b64 v{tmp+3}, {V(G,2)} offset:{L_Q}")
                a("s_mov_b32 exec_lo, 1")
                a(f"v_mov_b32 v{tmp+3}, 0")
                a(f"ds_write_b32 v{tmp+3}, v{vOne} offset:{L_F+32}")
                self.exec_full()
                a(f"{L}:")
        self.stamp(2)
        if self.bar & 1: a("s_barrier")
        a("s_mov_b32 s75, s72")
        def wait_q():
            a(f"v_and_b32 v{tmp}, 15, v1"); a(f"v_lshlrev_b32 v{tmp}, 4, v{tmp}"); a(f"v_mov_b32 v{tmp+4}, 0")
            def rd():
                a(f"ds_read_b32 v{tmp+2}, v{tmp+4} offset:{L_F+32}")
                a(f"ds_read_b128 {V(QF)}, v{tmp} offset:{L_Q}")
            self.lds_spin(rd, [tmp + 2], "bq2")
        def kgroup(k):
            n = min(4, NK - 4 * k)
            for r in range(4):
                for u in range(n):
                    kreg = KT + 4 * (4 * k + u) + r
                    if r == 0: a(f"v_dot2_f32_bf16 v{T+u}, v{kreg}, v{QF}, 0")
                    else: a(f"v_dot2c_f32_bf16 v{T+u}, v{kreg}, v{QF+r}")
            if n < 4:
                a(f"v_mov_b32 v{T0}, {f2u(NEG):#x}"); a(f"v_mov_b32 v{T1}, {f2u(NEG):#x}")
                a(f"v_add_f32 v{T+1}, s{sBias}, v{T+1}")
            a(f"v_add_f32_dpp v{T0}, v{T}, v{T} row_ror:8 row_mask:0xf bank_mask:0x3")
            a(f"v_add_f32_dpp v{T1}, v{T+1}, v{T+1} row_ror:8 row_mask:0xf bank_mask:0x3")
            if n == 4:
                a(f"v_add_f32_dpp v{T0}, v{T+2}, v{T+2} row_ror:8 row_mask:0xf bank_mask:0xc")
                a(f"v_add_f32_dpp v{T1}, v{T+3}, v{T+3} row_ror:8 row_mask:0xf bank_mask:0xc")
            a(f"v_add_f32_dpp v{U+k}, v{T0}, v{T0} row_half_mirror row_mask:0xf bank_mask:0x5")
            a(f"v_add_f32_dpp v{U+k}, v{T1}, v{T1} row_half_mirror row_mask:0xf bank_mask:0xa")
            a(f"v_add_f32_dpp v{U+k}, v{U+k}, v{U+k} quad_perm:[2,3,0,1] row_mask:0xf bank_mask:0xf")
            a(f"v_add_f32_dpp v{U+k}, v{U+k}, v{U+k} quad_perm:[1,0,3,2] row_mask:0xf bank_mask:0xf")
        def allreduce_rows(r, op, t):
            a(f"v_mov_b32 v{t}, v{r}"); a(f"v_permlane16_swap_b32 v{r}, v{t}"); a(f"{op} v{r}, v{r}, v{t}")
            a(f"v_mov_b32 v{t}, v{r}"); a(f"v_permlane32_swap_b32 v{r}, v{t}"); a(f"{op} v{r}, v{r}, v{t}")
        vM, vLs = tmp, tmp + 1
        def softmax():
            a(f"v_max3_f32 v{vM}, v{U}, v{U+1}, v{U+2}")
            a(f"v_max3_f32 v{vM}, v{vM}, v{U+3}, v{U+4}")
            a(f"v_max3_f32 v{vM}, v{vM}, v{U+5}, v{U+6}")
            a(f"v_max_f32_dpp v{vM}, v{vM}, v{vM} row_ror:4 row_mask:0xf bank_mask:0xf")
            a(f"v_max_f32_dpp v{vM}, v{vM}, v{vM} row_ror:8 row_mask:0xf bank_mask:0xf")
            allreduce_rows(vM, "v_max_f32", tmp + 2)
            a(f"v_mul_f32 v{vM}, s{sC1}, v{vM}")
            a(f"v_mov_b32 v{tmp+2}, v{vM}"); a(f"v_mov_b32 v{tmp+3}, 1")
            a(f"s_lshl_b32 s68, s{sW}, 3"); a(f"v_mov_b32 v{tmp+4}, s68")
            a("s_mov_b64 exec, 1")
            a(f"ds_write_b64 v{tmp+4}, {V(tmp+2,2)} offset:{L_M}")
            self.exec_full()
            for k in range(7):
                a(f"v_fma_f32 v{U+k}, v{U+k}, s{sC1}, -v{vM}")
            for k in range(7):
                a(f"v_exp_f32 v{U+k}, v{U+k}")
            a(f"v_add_f32 v{vLs}, v{U}, v{U+1}")
            for k in range(2, 7): a(f"v_add_f32 v{vLs}, v{vLs}, v{U+k}")
            for k in range(7): a(f"v_cvt_pk_bf16_f32 v{U+k}, v{U+k}, v{U+k}")
            a(f"v_add_f32_dpp v{vLs}, v{vLs}, v{vLs} row_ror:4 row_mask:0xf bank_mask:0xf")
            a(f"v_add_f32_dpp v{vLs}, v{vLs}, v{vLs} row_ror:8 row_mask:0xf bank_mask:0xf")
            allreduce_rows(vLs, "v_add_f32", tmp + 2)
        def pv_and(i):
            ab = AB + 4 * (i & 1)
            for t in range(4):
                a(f"v_and_b32_dpp v{ab+t}, v{U+(i>>2)}, v{M0+t} row_newbcast:{4*(i&3)} row_mask:0xf bank_mask:0xf")
        def pv_mfma(i):
            ab = AB + 4 * (i & 1)
            a(f"v_mfma_f32_16x16x32_bf16 {V(DD)}, {V(ab)}, {V(VT+4*i)}, {'0' if i == 0 else V(DD)}")
        pv = 0
        SM = 14
        D = self.Dv
        for i in range(NK):
            a(f"s_waitcnt vmcnt({D-1})")
            kv_load(SRD2, VT, i, 75)
            if i == 1: wait_q()
            if i == 13 and self.bar & 2: a("s_barrier")
            if i < SM and i % 2 == 1 and i // 2 < 7: kgroup(i // 2)
            if i == SM - 1:
                softmax(); pv_and(0)
            if i >= SM:
                lim = i - D
                for _ in range(2):
                    if pv <= lim:
                        pv_and(pv + 1); pv_mfma(pv); pv += 1
        self.stamp(3)
        WO = KT + 24
        a(f"v_lshrrev_b32 v{tmp+4}, 4, v1"); a("s_movk_i32 s68, 5120"); a(f"v_mul_u32_u24 v{tmp+4}, s68, v{tmp+4}")
        a(f"v_and_b32 v{tmp+5}, 15, v1"); a(f"v_lshl_add_u32 v{tmp+4}, v{tmp+5}, 4, v{tmp+4}")
        a(f"s_lshl_b32 s68, s{sH}, 3"); a(f"s_add_u32 s68, s68, s{sW}"); a(f"s_mul_i32 s69, s68, {16*1280}"); a(f"s_lshl_b32 s68, s{sSub}, 8"); a("s_add_u32 s69, s69, s68")
        self.srd(SRD3, pWOB, 4096 * 1280)
        for rg in range(4):
            a(f"buffer_load_dwordx4 {V(WO+4*rg)}, v{tmp+4}, {S(SRD3)}, s69 offen offset:{1280*rg} {self.nt}")
        a(f"v_mov_b32 v{tmp+4}, 0")
        R8 = KT
        def rdm():
            for k in range(4): a(f"ds_read_b128 {V(R8+4*k)}, v{tmp+4} offset:{L_M+16*k}")
        self.lds_spin(rdm, [R8 + 2 * k + 1 for k in range(8)], "bm")
        vMc = R8 + 16; vF = R8 + 17
        a(f"v_max3_f32 v{vMc}, v{R8}, v{R8+2}, v{R8+4}")
        a(f"v_max3_f32 v{vMc}, v{vMc}, v{R8+6}, v{R8+8}")
        a(f"v_max3_f32 v{vMc}, v{vMc}, v{R8+10}, v{R8+12}")
        a(f"v_max_f32 v{vMc}, v{vMc}, v{R8+14}")
        a(f"v_sub_f32 v{vF}, v{vM}, v{vMc}")
        a(f"v_exp_f32 v{vF}, v{vF}")
        a(f"v_mul_f32 v{vLs}, v{vLs}, v{vF}")
        vG = R8 + 18; vZ = R8 + 19
        a(f"v_lshrrev_b32 v{vG}, 4, v1"); a(f"v_lshlrev_b32 v{vG}, 4, v{vG}"); a(f"v_mov_b32 v{vZ}, 0")
        a(f"s_mul_i32 s76, s{sH}, 2560"); a(f"s_add_u32 s78, s76, {WS_OB}"); a(f"s_lshl_b32 s68, s{sW}, 6"); a("s_add_u32 s76, s78, s68")
        a(f"s_lshl_b32 s77, s{sH}, 7"); a(f"s_add_u32 s77, s77, {WS_MLB}")
        while pv < NK:
            a(f"s_waitcnt vmcnt({NK-1-pv+4})")
            if pv + 1 < NK: pv_and(pv + 1)
            pv_mfma(pv); pv += 1
        self.stamp(4)
        for v in range(4): a(f"v_mul_f32 v{DD+v}, v{vF}, v{DD+v}")
        self.exec_lo32()
        a(f"ds_write_b128 v{vA}, {V(DD)} offset:{L_O}")
        a("s_mov_b32 exec_lo, 1")
        a(f"ds_write_b32 v{tmp+5}, v{vLs} offset:{L_L}") if False else None
        a(f"s_lshl_b32 s68, s{sW}, 2"); a(f"v_mov_b32 v{tmp+4}, s68")
        a(f"ds_write_b32 v{tmp+4}, v{vLs} offset:{L_L}")
        self.exec_full()
        a("s_waitcnt lgkmcnt(0)")
        a("s_barrier")
        L = self.lab("b4"); a(f"s_cmp_eq_u32 s{sW}, 0"); a(f"s_cbranch_scc0 {L}")
        a(f"v_and_b32 v{tmp}, 31, v1"); a(f"v_lshlrev_b32 v{tmp}, 4, v{tmp}")
        G2 = VT
        for k in range(8): a(f"ds_read_b128 {V(G2+4*k)}, v{tmp} offset:{L_O+512*k}")
        a(f"v_mov_b32 v{tmp+4}, 0")
        a(f"ds_read_b128 {V(G2+32)}, v{tmp+4} offset:{L_L}")
        a(f"ds_read_b128 {V(G2+36)}, v{tmp+4} offset:{L_L+16}")
        a(f"s_lshl_b32 s68, s{sSub}, 9"); a("s_add_u32 s68, s68, s78")
        a(f"s_lshl_b32 s69, s{sSub}, 4"); a("s_add_u32 s69, s69, s77")
        a("s_waitcnt lgkmcnt(2)")
        self.tree_add(G2, 8)
        self.pack(G2, vTag)
        self.exec_lo32()
        a(f"buffer_store_dwordx4 {V(G2)}, v{tmp}, {WS}, s68 offen sc1")
        a("s_waitcnt lgkmcnt(0)")
        ML = G2 + 40
        a(f"v_pk_add_f32 {V(G2+32,2)}, {V(G2+32,2)}, {V(G2+34,2)}")
        a(f"v_pk_add_f32 {V(G2+36,2)}, {V(G2+36,2)}, {V(G2+38,2)}")
        a(f"v_pk_add_f32 {V(G2+32,2)}, {V(G2+32,2)}, {V(G2+36,2)}")
        a(f"v_mov_b32 v{ML}, v{vMc}")
        a(f"v_add_f32 v{ML+1}, v{G2+32}, v{G2+33}")
        a(f"v_mov_b32 v{ML+2}, 0"); a(f"v_mov_b32 v{ML+3}, v{vTag}")
        a("s_mov_b32 exec_lo, 1")
        a(f"buffer_store_dwordx4 {V(ML)}, v{vZ}, {WS}, s69 offen sc1")
        self.exec_full()
        a(f"{L}:")
        self.stamp(5)
        EG = VT + 48
        def gather_ob():
            for s in range(5): a(f"buffer_load_dwordx4 {V(EG+4*s)}, v{vG}, {WS}, s76 offen offset:{512*s} sc1")
            for s in range(5): a(f"buffer_load_dwordx4 {V(EG+20+4*s)}, v{vZ}, {WS}, s77 offen offset:{16*s} sc1")
        self.poll_loop(gather_ob, [EG + 4 * s + 3 for s in range(10)], sleep=0, name="bob")
        self.stamp(6)
        ME = EG + 20
        vMx = T; vL = T + 1; O = U
        a(f"v_max3_f32 v{vMx}, v{ME}, v{ME+4}, v{ME+8}"); a(f"v_max3_f32 v{vMx}, v{vMx}, v{ME+12}, v{ME+16}")
        for s in range(5): a(f"v_sub_f32 v{ME+4*s}, v{ME+4*s}, v{vMx}")
        for s in range(5): a(f"v_exp_f32 v{ME+4*s}, v{ME+4*s}")
        for s in range(5): self.unpack(EG + 4 * s)
        a(f"v_mul_f32 v{vL}, v{ME}, v{ME+1}")
        for s in range(1, 5): a(f"v_fmac_f32 v{vL}, v{ME+4*s}, v{ME+4*s+1}")
        for v in range(4): a(f"v_mul_f32 v{O+v}, v{ME}, v{EG+v}")
        a(f"v_rcp_f32 v{vL}, v{vL}")
        for s in range(1, 5):
            for v in range(4): a(f"v_fmac_f32 v{O+v}, v{ME+4*s}, v{EG+4*s+v}")
        for v in range(4): a(f"v_mul_f32 v{O+v}, v{vL}, v{O+v}")
        for v in range(4): a(f"v_cvt_pk_bf16_f32 v{O+v}, v{O+v}, v{O+v}")
        self.rowacc(DD, AB, M0, 4, lambda i: (O + i, None), lambda i: WO + 4 * i)
        self.exec_lo32()
        a(f"ds_write_b128 v{vA}, {V(DD)} offset:{L_Y}")
        self.exec_full()
        a("s_waitcnt lgkmcnt(0)")
        a("s_barrier")
        L = self.lab("b5"); a(f"s_cmp_eq_u32 s{sW}, 0"); a(f"s_cbranch_scc0 {L}")
        a(f"v_and_b32 v{tmp}, 31, v1"); a(f"v_lshlrev_b32 v{tmp}, 4, v{tmp}")
        for k in range(8): a(f"ds_read_b128 {V(G2+4*k)}, v{tmp} offset:{L_Y+512*k}")
        a(f"s_mul_i32 s68, s{sH}, 2560"); a(f"s_lshl_b32 s69, s{sSub}, 9"); a("s_add_u32 s68, s68, s69"); a(f"s_add_u32 s68, s68, {WS_YB}")
        a("s_waitcnt lgkmcnt(0)")
        self.tree_add(G2, 8)
        self.pack(G2, vTag)
        self.exec_lo32()
        a(f"buffer_store_dwordx4 {V(G2)}, v{tmp}, {WS}, s68 offen sc1")
        self.exec_full()
        a(f"{L}:")
        self.stamp(7)
        self.finish("B")

    def tree_add(self, base, n):
        a = self.a; V = self.V
        step = 1
        while step < n:
            for k in range(0, n, 2 * step):
                if k + step < n:
                    for hh in (0, 2):
                        a(f"v_pk_add_f32 {V(base+4*k+hh,2)}, {V(base+4*k+hh,2)}, {V(base+4*(k+step)+hh,2)}")
            step *= 2

    def row_allreduce(self, regs, op, steps=(8, 4, 2, 1)):
        a = self.a
        for st in steps:
            for r in regs: a(f"{op}_dpp v{r}, v{r}, v{r} row_ror:{st} row_mask:0xf bank_mask:0xf")
    def rowacc(self, DD, AB, M0, n, coef, tile, first_zero=True):
        a = self.a; V = self.V
        def ands(i):
            src, mod = coef(i); ab = AB + 4 * (i & 1)
            for t in range(4):
                if mod: a(f"v_and_b32_dpp v{ab+t}, v{src}, v{M0+t} {mod} row_mask:0xf bank_mask:0xf")
                else: a(f"v_and_b32 v{ab+t}, v{src}, v{M0+t}")
        ands(0)
        for i in range(n):
            if i + 1 < n: ands(i + 1)
            ab = AB + 4 * (i & 1)
            a(f"v_mfma_f32_16x16x32_bf16 {V(DD)}, {V(ab)}, {V(tile(i))}, {'0' if (i == 0 and first_zero) else V(DD)}")

    def role_PR(self):
        a = self.a; V = self.V; S = self.S
        vWQ, vUK, M0, QF, DD, AB, T, U, vTag = 2, 3, 4, 8, 12, 16, 24, 32, 36
        vUV, vWO, vLD, vX, tmp = 37, 38, 39, 36, 40
        WQ, X, UK, UV, WO, G = 48, 88, 96, 128, 160, 224
        WB = 64
        self.code_prefetch("L_PR", "L_Q", 254, 255, 1)
        a(f"s_lshr_b32 s68, s7, 1"); a(f"s_add_u32 s{sH}, s6, s68"); a(f"s_and_b32 s{sSub}, s7, 1")
        a(f"v_lshrrev_b32 v{tmp}, 3, v1"); a(f"v_and_b32 v{tmp+1}, 7, v1")
        a(f"v_lshrrev_b32 v{tmp+2}, 4, v1"); a(f"v_and_b32 v{tmp+3}, 15, v1")
        a(f"v_lshlrev_b32 v{tmp+1}, 4, v{tmp+1}"); a(f"v_lshlrev_b32 v{tmp+3}, 4, v{tmp+3}")
        a("s_mov_b32 s68, 81920"); a(f"v_mad_u32_u24 v{vWQ}, v{tmp}, s68, v{tmp+1}")
        a(f"v_lshl_add_u32 v{vUK}, v{tmp+2}, 16, v{tmp+3}")
        a(f"v_lshl_add_u32 v{vUV}, v{tmp}, 16, v{tmp+1}")
        a("s_mov_b32 s68, 20480"); a(f"v_mad_u32_u24 v{vWO}, v{tmp+2}, s68, v{tmp+3}")
        a("s_mul_i32 s68, s7, 160"); a(f"v_mul_u32_u24 v{vX}, 20, v{tmp}"); a(f"v_add_u32 v{vX}, s68, v{vX}")
        a(f"s_mul_i32 s72, s7, {80*8192}"); a("s_lshl_b32 s69, s6, 8"); a("s_add_u32 s72, s72, s69"); a(f"s_lshl_b32 s70, s{sW}, 7"); a("s_add_u32 s72, s72, s70")
        a(f"s_lshr_b32 s70, s{sW}, 2"); a("s_lshl_b32 s71, s7, 1"); a("s_add_u32 s70, s70, s71")
        a("s_lshl_b32 s73, s70, 18"); a("s_add_u32 s73, s73, s69"); a(f"s_and_b32 s71, s{sW}, 3"); a("s_lshl_b32 s71, s71, 8"); a("s_add_u32 s73, s73, s71")
        a(f"s_lshl_b32 s69, s{sH}, 8"); a(f"s_lshl_b32 s71, s{sSub}, 7"); a("s_add_u32 s71, s71, s69")
        a(f"s_lshl_b32 s74, s{sW}, 19"); a("s_add_u32 s74, s74, s71")
        a("s_waitcnt lgkmcnt(0)")
        self.srd(SRD1, pWQA, 640 * 8192)
        a(f"global_load_dwordx4 {V(X)}, v{vX}, s[{pAX}:{pAX+1}]")
        a(f"global_load_dword v{X+4}, v{vX}, s[{pAX}:{pAX+1}] offset:16")
        for i in range(10):
            if i: a("s_add_u32 s72, s72, 8192")
            a(f"buffer_load_dwordx4 {V(WQ+4*i)}, v{vWQ}, {S(SRD1)}, s72 offen {self.nt}")
        self.srd(SRD2, pWUK, 512 * 8192)
        a("s_barrier")
        def uk_load(i):
            if i: a("s_add_u32 s73, s73, 8192")
            a(f"buffer_load_dwordx4 {V(UK+4*i)}, v{vUK}, {S(SRD2)}, s73 offen {self.nt}")
        NU = self.nu
        for i in range(NU): uk_load(i)
        self.common2()
        self.srd(SRD3, pWUV, 512 * 8192); self.srd(SRD4, pWOA, 4096 * 1280)
        if self.tlb:
            a(f"s_mul_i32 s68, s{sH}, {128*1280}"); a(f"s_lshl_b32 s69, s{sH}, 16"); a(f"s_add_u32 s69, s69, {WS_CTX}")
            a(f"s_mov_b32 s70, {WS_QA}"); a("s_mov_b32 s71, 0x200000")
            self.tlb_warm([(S(SRD3), "0"), (S(SRD3), "s71"), (S(SRD4), "s68"), (WS, "s69"), (WS, "s70")], 254, 255)
            a(f"s_lshr_b32 s70, s{sW}, 2"); a("s_lshl_b32 s71, s7, 1"); a("s_add_u32 s70, s70, s71")
        self.masks(M0, 1, tmp, tmp + 1)
        a(f"v_and_b32 v{tmp}, 7, v1"); a(f"v_bfe_u32 v{tmp+1}, v1, 4, 1"); a(f"v_lshl_add_u32 v{tmp}, v{tmp}, 1, v{tmp+1}")
        a(f"v_lshlrev_b32 v{tmp+2}, 4, v{tmp}")
        a(f"v_lshrrev_b32 v{tmp+1}, 5, v1"); a(f"v_lshl_add_u32 v{tmp}, v{tmp+1}, 4, v{tmp}")
        a(f"v_lshlrev_b32 v{tmp}, 4, v{tmp}"); a(f"s_lshl_b32 s68, s{sW}, 9"); a(f"v_add_u32 v{vLD}, s68, v{tmp}")
        a(f"s_lshr_b32 s68, s{sW}, 1"); a("s_add_u32 s68, s68, s6"); a("s_lshl_b32 s68, s68, 3"); a("s_add_u32 s68, s68, s7"); a("s_lshl_b32 s68, s68, 9")
        a(f"s_and_b32 s69, s{sW}, 1"); a("s_lshl_b32 s69, s69, 8"); a("s_add_u32 s68, s68, s69"); a(f"s_add_u32 s78, s68, {WS_QA}")
        a(f"s_and_b32 s68, s{sW}, 3"); a("s_add_u32 s79, s68, s6"); a("s_lshl_b32 s76, s79, 12"); a(f"s_add_u32 s76, s76, {WS_QA}")
        a(f"s_waitcnt vmcnt({NU})")
        self.stamp(1)
        for i in range(10):
            a(f"v_perm_b32 v{WO+i}, v{X+(i>>1)}, v{X+(i>>1)}, s{sHi if i & 1 else sLo}")
        self.rowacc(DD, AB, M0, 10, lambda i: (WO + i, None), lambda i: WQ + 4 * i)
        self.tag(vTag)
        for v in range(4): a(f"v_mov_b32 v{T+v}, v{DD+v}")
        for v in range(4): a(f"v_permlane32_swap_b32 v{DD+v}, v{T+v}")
        for v in range(4): a(f"v_add_f32_dpp v{DD+v}, v{T+v}, v{DD+v} row_shl:8 row_mask:0xf bank_mask:0x3")
        self.pack(DD, vTag)
        a("s_mov_b32 exec_lo, 0x00ff00ff"); a("s_mov_b32 exec_hi, 0")
        a(f"buffer_store_dwordx4 {V(DD)}, v{tmp+2}, {WS}, s78 offen sc1")
        self.exec_full()
        self.stamp(2)
        for i in range(NU, 8): uk_load(i)
        a(f"v_and_b32 v{tmp}, 31, v1"); a(f"v_lshlrev_b32 v{tmp}, 4, v{tmp}")
        a(f"v_lshrrev_b32 v{tmp+1}, 5, v1"); a(f"v_lshl_add_u32 v{tmp+1}, v{tmp+1}, 9, v{tmp}")
        GQ = 224
        def gather_q():
            for i in range(4): a(f"buffer_load_dwordx4 {V(GQ+4*i)}, v{tmp+1}, {WS}, s76 offen offset:{1024*i} sc1")
        a("s_waitcnt vmcnt(2)")
        self.poll_loop(gather_q, [GQ + 4 * i + 3 for i in range(4)], sleep=0, name="pq")
        for i in range(4): self.unpack(GQ + 4 * i)
        self.tree_add(GQ, 4)
        for v in range(4): a(f"v_mov_b32 v{T+v}, v{GQ+v}")
        for v in range(4): a(f"v_permlane32_swap_b32 v{GQ+v}, v{T+v}")
        for v in range(4): a(f"v_add_f32 v{GQ+v}, v{GQ+v}, v{T+v}")
        a(f"v_cvt_pk_bf16_f32 v{GQ}, v{GQ}, v{GQ+1}"); a(f"v_cvt_pk_bf16_f32 v{GQ+1}, v{GQ+2}, v{GQ+3}")
        a(f"s_lshl_b32 s68, s{sW}, 8"); a(f"v_lshrrev_b32 v{tmp}, 1, v{tmp}"); a(f"v_add_u32 v{tmp}, s68, v{tmp}")
        self.exec_lo32()
        a(f"ds_write_b64 v{tmp}, {V(GQ,2)} offset:8192")
        self.exec_full()
        a(f"v_and_b32 v{tmp}, 15, v1"); a(f"v_lshlrev_b32 v{tmp}, 4, v{tmp}"); a(f"v_add_u32 v{tmp}, s68, v{tmp}")
        a("s_waitcnt lgkmcnt(0)")
        a(f"ds_read_b128 {V(QF)}, v{tmp} offset:8192")
        a("s_waitcnt lgkmcnt(0)")
        self.stamp(3)
        for r in range(4):
            for i in range(8):
                if r == 0: a(f"v_dot2_f32_bf16 v{T+i}, v{UK+4*i}, v{QF}, 0")
                else: a(f"v_dot2c_f32_bf16 v{T+i}, v{UK+4*i+r}, v{QF+r}")
        for k in range(4): a(f"v_add_f32_dpp v{U+k}, v{T+k}, v{T+k} row_ror:8 row_mask:0xf bank_mask:0x3")
        for k in range(4): a(f"v_add_f32_dpp v{U+k}, v{T+k+4}, v{T+k+4} row_ror:8 row_mask:0xf bank_mask:0xc")
        for k in range(4): a(f"v_add_f32_dpp v{U+k}, v{U+k}, v{U+k} row_half_mirror row_mask:0xf bank_mask:0xf")
        for k in range(4): a(f"v_add_f32_dpp v{U+k}, v{U+k}, v{U+k} quad_perm:[2,3,0,1] row_mask:0xf bank_mask:0xf")
        for k in range(4): a(f"v_add_f32_dpp v{U+k}, v{U+k}, v{U+k} quad_perm:[1,0,3,2] row_mask:0xf bank_mask:0xf")
        a(f"v_lshrrev_b32 v{tmp}, 3, v1"); a(f"v_lshlrev_b32 v{tmp}, 4, v{tmp}")
        a("s_lshl_b32 s68, s79, 11"); a("s_lshl_b32 s69, s70, 7"); a("s_add_u32 s68, s68, s69"); a(f"s_add_u32 s68, s68, {WS_QABS}")
        self.pack(U, vTag)
        a("s_mov_b32 exec_lo, 0x01010101"); a("s_mov_b32 exec_hi, 0x01010101")
        a(f"buffer_store_dwordx4 {V(U)}, v{tmp}, {WS}, s68 offen sc1")
        self.exec_full()
        self.stamp(4)
        a("s_barrier")
        for i in range(8):
            if i: a(f"s_add_u32 s74, s74, {1024 if 'uv' in self.lin else 8192}")
            a(f"buffer_load_dwordx4 {V(UV+4*i)}, v{vUV}, {S(SRD3)}, s74 offen {self.nt}")
        a(f"s_lshl_b32 s68, s{sH}, 1"); a(f"s_add_u32 s77, s68, s{sSub}")
        a(f"s_mul_i32 s75, s77, {64*1280}"); a(f"s_lshl_b32 s68, s{sW}, 8"); a("s_add_u32 s75, s75, s68")
        L = self.lab("p2"); a(f"s_cmp_lt_u32 s{sW}, 5"); a(f"s_cbranch_scc0 {L}")
        for i in range(16):
            if i and i % 4 == 0: a("s_add_u32 s75, s75, 5120")
            o = 1280 * (i % 4)
            a(f"buffer_load_dwordx4 {V(WO+4*i)}, v{vWO}, {S(SRD4)}, s75 offen offset:{o} {self.nt}")
        a(f"{L}:")
        ML, CT = 48, 224
        a(f"v_bfe_u32 v{tmp}, v1, 2, 2"); a(f"v_and_b32 v{tmp+1}, 3, v1")
        a(f"v_lshlrev_b32 v{tmp+2}, 7, v{tmp}"); a(f"v_lshl_add_u32 v{tmp+2}, v{tmp+1}, 5, v{tmp+2}")
        a(f"v_lshrrev_b32 v{tmp+3}, 4, v1"); a(f"v_lshl_add_u32 v{tmp+3}, v{tmp+3}, 2, v{tmp+1}")
        a(f"v_lshlrev_b32 v{tmp+3}, 4, v{tmp+3}"); a(f"v_lshl_add_u32 v{tmp+3}, v{tmp}, 14, v{tmp+3}")
        a(f"s_lshl_b32 s76, s{sH}, 9"); a(f"s_add_u32 s76, s76, {WS_ML}")
        a(f"s_lshl_b32 s78, s{sH}, 16"); a(f"s_lshl_b32 s68, s{sW}, 8"); a("s_add_u32 s78, s78, s68"); a(f"s_add_u32 s78, s78, {WS_CTX}")
        def gather_ml():
            a(f"buffer_load_dwordx4 {V(ML)}, v{tmp+2}, {WS}, s76 offen sc1")
            a(f"buffer_load_dwordx4 {V(ML+4)}, v{tmp+2}, {WS}, s76 offen offset:16 sc1")
        self.poll_loop(gather_ml, [ML + 3, ML + 7], sleep=4, name="pml")
        self.stamp(5)
        def gather_ctx():
            for i in range(8):
                a(f"s_add_u32 s79, s78, {4096*(i>>1)}") if i % 2 == 0 else None
                a(f"buffer_load_dwordx4 {V(CT+4*i)}, v{tmp+3}, {WS}, s79 offen offset:{2048*(i&1)} sc1")
        gather_ctx()
        vM, wA, wB, vL = T, T + 1, T + 2, T + 3
        a(f"v_max_f32 v{vM}, v{ML}, v{ML+4}")
        self.row_allreduce([vM], "v_max_f32")
        a(f"v_sub_f32 v{wA}, v{ML}, v{vM}"); a(f"v_sub_f32 v{wB}, v{ML+4}, v{vM}")
        a(f"v_exp_f32 v{wA}, v{wA}"); a(f"v_exp_f32 v{wB}, v{wB}")
        a(f"v_mul_f32 v{vL}, v{wA}, v{ML+1}"); a(f"v_fmac_f32 v{vL}, v{wB}, v{ML+5}")
        self.row_allreduce([vL], "v_add_f32")
        a(f"v_rcp_f32 v{vL}, v{vL}")
        a(f"v_mul_f32 v{wA}, v{wA}, v{vL}"); a(f"v_mul_f32 v{wB}, v{wB}, v{vL}")
        self.poll_loop(gather_ctx, [CT + 4 * i + 3 for i in range(8)], first_issued=True, first_wait="s_waitcnt vmcnt(0)", name="pctx")
        self.stamp(6)
        AC = U
        for i in range(8): self.unpack(CT + 4 * i)
        for i in range(8):
            q = i >> 1
            for v in range(4):
                op = "v_mul_f32_dpp" if i == 0 else "v_fmac_f32_dpp"
                a(f"{op} v{AC+v}, v{wB if i & 1 else wA}, v{CT+4*i+v} quad_perm:[{q},{q},{q},{q}] row_mask:0xf bank_mask:0xf")
        self.row_allreduce([AC + v for v in range(4)], "v_add_f32", steps=(4, 8))
        for v in range(4): a(f"v_cvt_pk_bf16_f32 v{AC+v}, v{AC+v}, v{AC+v}")
        for v in range(4): a(f"v_mov_b32_dpp v{AC+v}, v{AC+v} quad_perm:[2,3,0,1] row_mask:0xf bank_mask:0xc")
        self.rowacc(DD, AB, M0, 8, lambda i: (AC + (i & 3), "quad_perm:[%d,%d,%d,%d]" % ((i >> 2,) * 4)), lambda i: UV + 4 * i)
        a("s_mov_b32 exec_lo, 0x00ff00ff"); a("s_mov_b32 exec_hi, 0xff00ff00")
        a(f"ds_write_b128 v{vLD}, {V(DD)} offset:4096")
        self.exec_full()
        a("s_waitcnt lgkmcnt(0)")
        a("s_barrier")
        Le = self.lab("pend")
        a(f"s_cmp_lt_u32 s{sW}, 5"); a(f"s_cbranch_scc0 {Le}")
        CF = 48
        a(f"v_lshrrev_b32 v{tmp}, 4, v1"); a(f"v_and_b32 v{tmp+1}, 3, v1"); a(f"v_lshl_add_u32 v{tmp}, v{tmp}, 2, v{tmp+1}")
        a(f"v_lshlrev_b32 v{tmp+4}, 4, v{tmp}"); a(f"v_bfe_u32 v{tmp+1}, v1, 2, 2"); a(f"v_lshl_add_u32 v{tmp}, v{tmp+1}, 10, v{tmp+4}")
        for k in range(4): a(f"ds_read_b128 {V(CF+4*k)}, v{tmp} offset:{4096+256*k}")
        a(f"v_and_b32 v{tmp+2}, 15, v1"); a(f"v_bfe_u32 v{tmp+3}, v1, 4, 1"); a(f"v_lshl_add_u32 v{tmp+2}, v{tmp+2}, 1, v{tmp+3}"); a(f"v_lshlrev_b32 v{tmp+2}, 4, v{tmp+2}")
        a(f"s_mul_i32 s68, s77, 2560"); a(f"s_lshl_b32 s69, s{sW}, 9"); a("s_add_u32 s68, s68, s69"); a(f"s_add_u32 s68, s68, {WS_YA}")
        a("s_waitcnt lgkmcnt(0)")
        self.tree_add(CF, 4)
        self.row_allreduce([CF + v for v in range(4)], "v_add_f32", steps=(4, 8))
        for v in range(4): a(f"v_cvt_pk_bf16_f32 v{CF+v}, v{CF+v}, v{CF+v}")
        self.rowacc(DD, AB, M0, 16, lambda i: (CF + (i & 3), "quad_perm:[%d,%d,%d,%d]" % ((i >> 2,) * 4)), lambda i: WO + 4 * i)
        self.pack(DD, vTag)
        self.exec_lo32()
        a(f"buffer_store_dwordx4 {V(DD)}, v{tmp+2}, {WS}, s68 offen sc1")
        self.exec_full()
        self.stamp(7)
        a(f"{Le}:")
        self.finish("PR")

    def role_Q(self):
        a = self.a; V = self.V; S = self.S
        vL16, M0, Z, DS, AB, G, vTag = 2, 4, 8, 16, 24, 32, 3
        SA, PA = 64, 192
        tmp = 12
        t2 = 24
        a("; ---------------- role Q ----------------")
        self.code_prefetch("L_Q", "L_end", 14, 32, 1)
        a(f"s_sub_u32 s7, s7, 8"); a(f"s_add_u32 s{sH}, s6, s7")
        a(f"v_lshlrev_b32 v{vL16}, 4, v1")
        a(f"s_lshl_b32 s72, s{sH}, 17"); a(f"s_lshl_b32 s68, s{sW}, 14"); a("s_add_u32 s72, s72, s68")
        a(f"s_lshl_b32 s73, s{sW}, 14")
        a("s_waitcnt lgkmcnt(0)")
        self.srd(SRD1, pCKV, 4096 * 1024)
        for r in range(16):
            f = (r & 8) | ((r & 3) << 1)
            a(f"v_xor_b32 v{tmp + (r & 1)}, {16*f}, v{vL16}")
            a(f"s_add_u32 m0, s73, {1024*r}")
            if r % 4 == 0 and r: a("s_add_u32 s72, s72, 4096")
            a(f"buffer_load_dwordx4 v{tmp + (r & 1)}, {S(SRD1)}, s72 offen offset:{1024*(r%4)} nt lds") if False else None
            a(f"s_add_u32 s74, s72, {1024*(r%4)}")
            a(f"buffer_load_dwordx4 v{tmp + (r & 1)}, {S(SRD1)}, s74 offen {self.nt} lds")
        self.common2()
        if self.tlb:
            a(f"s_mov_b32 s68, {WS_QABS}"); a(f"s_mov_b32 s69, {WS_CTX}"); a(f"s_mov_b32 s70, {WS_CTX + 0x100000}")
            self.tlb_warm([(WS, "s68"), (WS, "s69"), (WS, "s70"), (OUT, "0")], 33, 32)
        a(f"v_and_b32 v{tmp}, 3, v1"); a(f"v_lshlrev_b32 v{tmp}, 1, v{tmp}"); a(f"v_and_b32 v{tmp+1}, 8, v1"); a(f"v_or_b32 v{tmp}, v{tmp}, v{tmp+1}")
        a(f"v_lshrrev_b32 v{tmp+1}, 4, v1"); a(f"v_xor_b32 v{tmp}, v{tmp}, v{tmp+1}"); a(f"v_lshlrev_b32 v{tmp}, 4, v{tmp}")
        for m in range(4): a(f"v_xor_b32 v{Z+m}, {64*m}, v{tmp}")
        a(f"v_and_b32 v{tmp+2}, 15, v1")
        a(f"s_and_b32 s68, s{sW}, 3"); a("s_lshl_b32 s68, s68, 15"); a(f"v_lshl_add_u32 v{tmp+3}, v{tmp+2}, 10, s68")
        for m in range(4): a(f"v_add_u32 v{t2+m}, v{tmp+3}, v{Z+m}")
        a(f"v_bfe_u32 v{tmp}, v1, 2, 2")
        a(f"v_bfe_u32 v{tmp+1}, v1, 4, 1"); a(f"v_lshlrev_b32 v{tmp+1}, 3, v{tmp+1}"); a(f"v_lshl_or_b32 v{tmp+1}, v{tmp}, 1, v{tmp+1}")
        a(f"v_bfe_u32 v{tmp+3}, v1, 1, 1"); a(f"v_xor_b32 v{tmp+1}, v{tmp+1}, v{tmp+3}")
        a(f"s_and_b32 s68, s{sW}, 1"); a("s_lshl_b32 s68, s68, 3"); a(f"v_xor_b32 v{tmp+1}, s68, v{tmp+1}")
        a(f"v_lshrrev_b32 v{tmp+3}, 4, v1"); a(f"v_lshl_add_u32 v{tmp}, v{tmp+3}, 3, v{tmp}")
        a(f"v_lshlrev_b32 v{tmp}, 10, v{tmp}"); a(f"v_and_b32 v{tmp+3}, 1, v1"); a(f"v_lshl_add_u32 v{tmp}, v{tmp+3}, 3, v{tmp}")
        a(f"s_lshr_b32 s68, s{sW}, 1"); a("s_lshl_b32 s68, s68, 8"); a(f"v_add_u32 v{tmp}, s68, v{tmp}")
        for ct in range(4):
            a(f"v_xor_b32 v{t2+4+ct}, {2*ct}, v{tmp+1}"); a(f"v_lshl_add_u32 v{t2+4+ct}, v{t2+4+ct}, 4, v{tmp}")
        a("s_waitcnt vmcnt(0)")
        self.tag(vTag)
        a("s_barrier")
        self.stamp(1)
        for kt in range(2):
            for ks in range(16):
                a(f"ds_read_b128 {V(SA+64*kt+4*ks)}, v{t2+(ks&3)} offset:{256*(ks>>2)+16384*kt}")
            a("s_waitcnt lgkmcnt(8)")
        for half in range(2):
            for ct in range(4):
                for kk in range(2):
                    for hh in range(2):
                        r = PA + 16 * ct + 4 * (2 * half + kk) + 2 * hh
                        a(f"ds_read_b64_tr_b16 {V(r,2)}, v{t2+4+ct} offset:{(32*kk+4*hh)*1024}")
                a("s_waitcnt lgkmcnt(8)")
            if half == 0:
                for ct in range(4): a(f"v_add_u32 v{t2+4+ct}, 0x10000, v{t2+4+ct}")
        a("s_waitcnt lgkmcnt(0)")
        a("s_barrier")
        self.stamp(2)
        a(f"s_lshl_b32 s76, s{sW}, 13"); a(f"s_add_u32 s76, s76, {WS_QABS}"); a("s_add_u32 s77, s76, 4096")
        a(f"v_mov_b32 v{tmp}, 0")
        def gather_ind(): a(f"buffer_load_dwordx4 {V(G)}, v{tmp}, {WS}, s76 offen sc1")
        self.poll_loop(gather_ind, [G + 3], sleep=2, name="qind")
        def gather_qabs():
            for i in range(8):
                a(f"buffer_load_dwordx4 {V(G+4*i)}, v{vL16}, {WS}, s{76 if i < 4 else 77} offen offset:{1024*(i&3)} sc1")
        self.poll_loop(gather_qabs, [G + 4 * i + 3 for i in range(8)], sleep=0, name="qabs")
        self.stamp(3)
        a(f"s_bfe_u32 s68, s{sW}, 0x10001"); a("s_lshl_b32 s68, s68, 7"); a(f"v_lshlrev_b32 v{tmp}, 3, v1"); a(f"v_xor_b32 v{tmp}, s68, v{tmp}")
        a(f"s_lshl_b32 s68, s{sW}, 12")
        for ii in range(4):
            a(f"v_xor_b32 v{t2+ii}, {32*ii}, v{tmp}"); a(f"v_add_u32 v{t2+ii}, s68, v{t2+ii}")
        for i in range(8):
            r = G + 4 * i
            self.unpack(r)
            a(f"v_cvt_pk_bf16_f32 v{r}, v{r}, v{r+1}"); a(f"v_cvt_pk_bf16_f32 v{r+1}, v{r+2}, v{r+3}")
            a(f"ds_write_b64 v{t2+(i>>1)}, {V(r,2)} offset:{1024*(i>>1)+512*(i&1)}")
        a(f"s_lshr_b32 s68, s{sW}, 2"); a("s_lshl_b32 s68, s68, 14"); a(f"v_lshl_add_u32 v{tmp+3}, v{tmp+2}, 10, s68")
        for m in range(4): a(f"v_add_u32 v{t2+4+m}, v{tmp+3}, v{Z+m}")
        a("s_waitcnt lgkmcnt(0)")
        a("s_barrier")
        for ks in range(8): a(f"ds_read_b128 {V(G+4*ks)}, v{t2+4+(ks&3)} offset:{256*(ks>>2)}")
        for ks in range(16):
            a(f"s_waitcnt lgkmcnt({min(7, 15-ks)})")
            for kt in range(2):
                a(f"v_mfma_f32_16x16x32_bf16 {V(DS+4*kt)}, {V(SA+64*kt+4*ks)}, {V(G+4*(ks&7))}, {'0' if ks == 0 else V(DS+4*kt)}")
            if ks < 8:
                k2 = ks + 8
                a(f"ds_read_b128 {V(G+4*ks)}, v{t2+4+(k2&3)} offset:{256*(k2>>2)}")
        vM = tmp; SM, SS, PO = 32768, 33280, 36864
        a(f"v_max3_f32 v{vM}, v{DS}, v{DS+1}, v{DS+2}"); a(f"v_max3_f32 v{vM}, v{vM}, v{DS+3}, v{DS+4}")
        a(f"v_max3_f32 v{vM}, v{vM}, v{DS+5}, v{DS+6}"); a(f"v_max_f32 v{vM}, v{vM}, v{DS+7}")
        def allrows(r, op, t):
            a(f"v_mov_b32 v{t}, v{r}"); a(f"v_permlane16_swap_b32 v{r}, v{t}"); a(f"{op} v{r}, v{r}, v{t}")
            a(f"v_mov_b32 v{t}, v{r}"); a(f"v_permlane32_swap_b32 v{r}, v{t}"); a(f"{op} v{r}, v{r}, v{t}")
        allrows(vM, "v_max_f32", tmp + 1)
        a(f"s_lshr_b32 s68, s{sW}, 2"); a("s_lshl_b32 s68, s68, 8"); a(f"v_lshl_add_u32 v{t2}, v{tmp+2}, 4, s68")
        a(f"s_and_b32 s69, s{sW}, 3"); a("s_lshl_b32 s69, s69, 2"); a(f"v_add_u32 v{t2+1}, s69, v{t2}")
        a("s_mov_b32 exec_hi, 0"); a("s_mov_b32 exec_lo, 0xffff")
        a(f"ds_write_b32 v{t2+1}, v{vM} offset:{SM}")
        self.exec_full()
        a("s_waitcnt lgkmcnt(0)")
        a("s_barrier")
        a(f"ds_read_b128 {V(G)}, v{t2} offset:{SM}")
        a(f"v_and_b32 v{t2+2}, 3, v1"); a(f"v_lshlrev_b32 v{t2+2}, 1, v{t2+2}"); a(f"v_and_b32 v{t2+3}, 8, v1"); a(f"v_or_b32 v{t2+2}, v{t2+2}, v{t2+3}")
        a(f"v_lshrrev_b32 v{t2+3}, 5, v1"); a(f"v_xor_b32 v{t2+2}, v{t2+2}, v{t2+3}")
        a(f"s_and_b32 s69, s{sW}, 3"); a("s_lshl_b32 s69, s69, 2"); a(f"v_xor_b32 v{t2+2}, s69, v{t2+2}")
        a(f"v_bfe_u32 v{t2+3}, v1, 4, 1"); a(f"v_lshlrev_b32 v{t2+3}, 3, v{t2+3}")
        a(f"v_lshl_add_u32 v{t2+3}, v{tmp+2}, 8, v{t2+3}"); a("s_lshl_b32 s68, s68, 4"); a(f"v_add_u32 v{t2+3}, s68, v{t2+3}")
        a(f"v_lshl_add_u32 v{t2+4}, v{t2+2}, 4, v{t2+3}")
        a(f"v_xor_b32 v{t2+2}, 2, v{t2+2}"); a(f"v_lshl_add_u32 v{t2+5}, v{t2+2}, 4, v{t2+3}")
        a("s_waitcnt lgkmcnt(0)")
        a(f"v_max3_f32 v{vM}, v{G}, v{G+1}, v{G+2}"); a(f"v_max_f32 v{vM}, v{vM}, v{G+3}")
        a(f"v_mul_f32 v{vM}, s{sC1}, v{vM}")
        for k in range(8): a(f"v_fma_f32 v{DS+k}, v{DS+k}, s{sC1}, -v{vM}")
        for k in range(8): a(f"v_exp_f32 v{DS+k}, v{DS+k}")
        vS = tmp + 3
        a(f"v_add_f32 v{vS}, v{DS}, v{DS+1}")
        for k in range(2, 8): a(f"v_add_f32 v{vS}, v{vS}, v{DS+k}")
        for kt in range(2):
            a(f"v_cvt_pk_bf16_f32 v{DS+4*kt}, v{DS+4*kt}, v{DS+4*kt+1}"); a(f"v_cvt_pk_bf16_f32 v{DS+4*kt+1}, v{DS+4*kt+2}, v{DS+4*kt+3}")
            a(f"ds_write_b64 v{t2+4+kt}, {V(DS+4*kt,2)} offset:{PO}")
        allrows(vS, "v_add_f32", tmp + 1)
        a("s_mov_b32 exec_hi, 0"); a("s_mov_b32 exec_lo, 0xffff")
        a(f"ds_write_b32 v{t2+1}, v{vS} offset:{SS}")
        self.exec_full()
        a("s_waitcnt lgkmcnt(0)")
        a("s_barrier")
        self.stamp(4)
        a(f"v_lshlrev_b32 v{tmp+3}, 8, v{tmp+2}")
        for kk in range(4): a(f"v_add_u32 v{t2+kk}, v{tmp+3}, v{Z+kk}")
        for ht in range(2):
            for kk in range(4): a(f"ds_read_b128 {V(G+16*ht+4*kk)}, v{t2+kk} offset:{PO+4096*ht}")
        PD = SA
        for ht in range(2):
            a(f"s_waitcnt lgkmcnt({4 if ht == 0 else 0})")
            for kk in range(4):
                for ct in range(4):
                    d = PD + 16 * ht + 4 * ct
                    a(f"v_mfma_f32_16x16x32_bf16 {V(d)}, {V(PA+16*ct+4*kk)}, {V(G+16*ht+4*kk)}, {'0' if kk == 0 else V(d)}")
        TO = 65536
        a(f"v_lshrrev_b32 v{t2}, 4, v1"); a(f"v_lshlrev_b32 v{t2}, 4, v{t2}")
        a(f"v_and_b32 v{t2+1}, 3, v1"); a(f"v_lshlrev_b32 v{t2+1}, 6, v{t2+1}")
        a(f"v_lshl_add_u32 v{t2+2}, v{tmp+2}, 8, v{t2}")
        a(f"s_lshl_b32 s68, s{sW}, 13"); a(f"s_add_u32 s68, s68, {TO}"); a(f"v_add_u32 v{t2+2}, s68, v{t2+2}")
        for ct in range(4):
            a(f"v_xor_b32 v{t2+4+ct}, {64*ct}, v{t2+1}"); a(f"v_add_u32 v{t2+4+ct}, v{t2+2}, v{t2+4+ct}")
        for ht in range(2):
            for ct in range(4):
                d = PD + 16 * ht + 4 * ct
                self.pack(d, vTag)
                a(f"ds_write_b128 v{t2+4+ct}, {V(d)} offset:{4096*ht}")
        a(f"v_lshrrev_b32 v{t2}, 4, v1")
        a(f"v_lshlrev_b32 v{t2+1}, 6, v{t2}"); a(f"v_lshlrev_b32 v{t2+2}, 4, v{tmp+2}"); a(f"v_xor_b32 v{t2+1}, v{t2+1}, v{t2+2}")
        a(f"v_lshl_add_u32 v{t2+1}, v{t2}, 8, v{t2+1}"); a(f"v_add_u32 v{t2+1}, s68, v{t2+1}")
        a(f"v_lshl_add_u32 v{t2+2}, v{t2}, 16, v{t2+2}")
        a(f"s_lshl_b32 s76, s{sH}, 11"); a(f"s_lshl_b32 s69, s{sW}, 8"); a("s_add_u32 s76, s76, s69"); a(f"s_add_u32 s76, s76, {WS_CTX}")
        a("s_waitcnt lgkmcnt(0)")
        for i in range(8): a(f"ds_read_b128 {V(G+4*i)}, v{t2+1} offset:{1024*i}")
        for i in range(8):
            a(f"s_waitcnt lgkmcnt({7-i})")
            a(f"buffer_store_dwordx4 {V(G+4*i)}, v{t2+2}, {WS}, s76 offen sc1")
            if i < 7: a("s_add_u32 s76, s76, 0x40000")
        a("s_barrier")
        L = self.lab("q1"); a(f"s_cmp_eq_u32 s{sW}, 0"); a(f"s_cbranch_scc0 {L}")
        a(f"v_and_b32 v{tmp}, 31, v1"); a(f"v_lshlrev_b32 v{tmp+1}, 4, v{tmp}")
        a(f"ds_read_b128 {V(G)}, v{tmp+1} offset:{SM}"); a(f"ds_read_b128 {V(G+4)}, v{tmp+1} offset:{SS}")
        a(f"v_lshlrev_b32 v{tmp}, 9, v{tmp}"); a(f"s_lshl_b32 s68, s{sH}, 4"); a(f"s_add_u32 s68, s68, {WS_ML}")
        a("s_waitcnt lgkmcnt(0)")
        a(f"v_max3_f32 v{G}, v{G}, v{G+1}, v{G+2}"); a(f"v_max_f32 v{G}, v{G}, v{G+3}"); a(f"v_mul_f32 v{G}, s{sC1}, v{G}")
        a(f"v_pk_add_f32 {V(G+4,2)}, {V(G+4,2)}, {V(G+6,2)}"); a(f"v_add_f32 v{G+1}, v{G+4}, v{G+5}")
        a(f"v_mov_b32 v{G+2}, 0"); a(f"v_mov_b32 v{G+3}, v{vTag}")
        self.exec_lo32()
        a(f"buffer_store_dwordx4 {V(G)}, v{tmp}, {WS}, s68 offen sc1")
        self.exec_full()
        a(f"{L}:")
        self.stamp(5)
        Le = self.lab("qend")
        a(f"s_lshl_b32 s79, s{sH}, 3"); a(f"s_add_u32 s79, s79, s{sW}")
        a("s_movk_i32 s68, 2560"); a(f"v_mul_u32_u24 v{tmp}, s68, v1"); a(f"v_mov_b32 v{tmp+1}, 0")
        a("s_cmp_lt_u32 s79, 160"); a(f"s_cbranch_scc0 {Le}")
        regs = [G + v for v in range(4)]
        for br in range(2):
            a(f"s_lshl_b32 s76, s79, 4"); a(f"s_add_u32 s76, s76, {WS_YB if br else WS_YA}")
            a(f"s_lshl_b32 s78, s79, 3")
            if br:
                a("s_add_u32 s78, s78, 1280")
                a("s_and_b32 s68, s79, 31"); a("s_lshl_b32 s68, s68, 7"); a(f"s_add_u32 s77, s68, {WS_MLB}")
                def gather_ind(): a(f"buffer_load_dwordx4 {V(G)}, v{tmp+1}, {WS}, s77 offen sc1")
                self.poll_loop(gather_ind, [G + 3], sleep=8, name="qind2")
                a(f"v_and_b32 v{tmp}, 31, v1"); a("s_movk_i32 s68, 2560"); a(f"v_mul_u32_u24 v{tmp}, s68, v{tmp}")
            def gather_y(): a(f"buffer_load_dwordx4 {V(G)}, v{tmp}, {WS}, s76 offen sc1")
            self.poll_loop(gather_y, [G + 3], sleep=(0 if br else 4), name="qy")
            self.unpack(G)
            self.row_allreduce(regs, "v_add_f32")
            for r in regs: a(f"v_add_f32_dpp v{r}, v{r}, v{r} row_bcast:15 row_mask:0xa bank_mask:0xf")
            if not br:
                for r in regs: a(f"v_add_f32_dpp v{r}, v{r}, v{r} row_bcast:31 row_mask:0xc bank_mask:0xf")
            a(f"v_cvt_pk_bf16_f32 v{G}, v{G}, v{G+1}"); a(f"v_cvt_pk_bf16_f32 v{G+1}, v{G+2}, v{G+3}")
            if br: a("s_mov_b32 exec_lo, 0x80000000"); a("s_mov_b32 exec_hi, 0")
            else: a("s_mov_b32 exec_lo, 0"); a("s_mov_b32 exec_hi, 0x80000000")
            a(f"buffer_store_dwordx2 {V(G,2)}, v{tmp+1}, {OUT}, s78 offen")
            self.exec_full()
            self.stamp(6 + br)
        a("s_cmp_eq_u32 s79, 0"); a(f"s_cbranch_scc0 {Le}")
        a(f"s_add_u32 s68, s{sEpoch}, 1"); a(f"v_mov_b32 v{tmp}, s68")
        a("s_mov_b64 exec, 1")
        a(f"buffer_store_dword v{tmp}, v{tmp+1}, {WS}, 0 offen")
        self.exec_full()
        a(f"{Le}:")
        self.finish("Q")

    def build(self):
        a = self.a
        self.prologue()
        if "B" in self.roles: self.role_B()
        else: a("s_endpgm")
        a("L_PR:")
        if "P" in self.roles: self.role_PR()
        else: a("s_endpgm")
        a("L_Q:")
        if "Q" in self.roles: self.role_Q()
        else: a("s_endpgm")
        a("L_end:"); a("s_endpgm")
        head = [
            "; concat_heads__compressed_kv_cla__mha_block_cached__decode: one persistent launch, 256 workgroups of 8 waves",
            f"; @launch grid=(256,1,1) block=(512,1,1) lds={self.lds}",
            '.amdgcn_target "amdgcn-amd-amdhsa--gfx950"', ".text", f".globl {KN}", ".p2align 8", f".type {KN},@function", f"{KN}:"]
        tail = ['.section .rodata,"a"', ".p2align 6", f".amdhsa_kernel {KN}",
            "  .amdhsa_next_free_vgpr 256", "  .amdhsa_next_free_sgpr 102", "  .amdhsa_accum_offset 256",
            "  .amdhsa_group_segment_fixed_size 0", "  .amdhsa_kernarg_size 112", "  .amdhsa_user_sgpr_count 2",
            "  .amdhsa_user_sgpr_kernarg_segment_ptr 1", "  .amdhsa_system_sgpr_workgroup_id_x 1",
            "  .amdhsa_float_denorm_mode_32 3", ".end_amdhsa_kernel"]
        return "\n".join(head) + "\n" + a.text() + "\n".join(tail) + "\n"

if __name__ == "__main__":
    import argparse
    ap = argparse.ArgumentParser()
    ap.add_argument("-o", default="k.s"); ap.add_argument("--prof", action="store_true")
    ap.add_argument("--nt", default="nt"); ap.add_argument("--dbgst", action="store_true"); ap.add_argument("--D0", type=int, default=2); ap.add_argument("--Ds", type=int, default=2); ap.add_argument("--ns", type=int, default=8); ap.add_argument("--Dv", type=int, default=5); ap.add_argument("--pf", type=int, default=1); ap.add_argument("--lin", default=""); ap.add_argument("--bar", type=int, default=0); ap.add_argument("--tlb", type=int, default=0); ap.add_argument("--roles", default="BPQ"); ap.add_argument("-D", type=int, default=5); ap.add_argument("--spin", type=int, default=20000)
    args = ap.parse_args()
    g = Gen(prof=args.prof, D=args.D, spin=args.spin, roles=args.roles, nt=args.nt, dbgst=args.dbgst, D0=args.D0, Ds=args.Ds, ns=args.ns, Dv=args.Dv, pf=args.pf, lin=args.lin, bar=args.bar, tlb=args.tlb)
    open(args.o, "w").write(g.build())
    sys.path.insert(0, "exp"); import build
    print(build.build(args.o))
```

```python
import sys
import gen as G0
from gen import (Gen, f2u, C1, NEG, KN, sW, sH, sSub, WS, OUT, pAX, pCKV, pWQA, pWUK, pWUV, pWOA, pBX, pK, pV, pWQB, pWOB, pOUT, pDBG, pWS,
                 SRD1, SRD2, SRD3, SRD4, sEpoch, sTag, sP0, sP1, sP2, sU, sLo, sHi, sC1, sCnt, sBias, sProf)

WS_QB   = 0x01000
WS_QA   = 0x1A000
WS_OB   = 0x33000
WS_MLB  = 0x4C000
WS_ML   = 0x50000
WS_CTXF = 0x54000
WS_QABS = 0x60000
WS_YA   = 0x70000
WS_YB   = 0x88000
WS_PROF = 0xC0000
WS_CTX  = 0x100000
G0.WS_PROF = WS_PROF
NS = 6

class Gen3(Gen):
    prioA = 1; light = 1; exp = 0; NE = 5; NL = 5; rot = 0
    def prologue(self):
        a = self.a
        a("s_cmp_ge_u32 s2, 256"); a("s_cbranch_scc1 L_end")
        a("s_load_dwordx4 s[40:43], s[0:1], 96")
        a("s_load_dwordx16 s[16:31], s[0:1], 0")
        a("s_load_dwordx8 s[32:39], s[0:1], 64")
        self.stamp(0)
        if self.prof: a("s_mov_b32 s100, 0")
        a("v_lshrrev_b32 v2, 6, v0")
        a("v_and_b32 v1, 63, v0")
        a(f"v_readfirstlane_b32 s{sW}, v2")
        a("s_and_b32 s6, s2, 7")
        a("s_lshr_b32 s7, s2, 3")
        a(f"s_mov_b32 s{sP0}, 0x07060501"); a(f"s_mov_b32 s{sP1}, 0x07060502"); a(f"s_mov_b32 s{sP2}, 0x07060503")
        a(f"s_mov_b32 s{sU}, 0x0c04000c"); a(f"s_mov_b32 s{sLo}, 0x01000100"); a(f"s_mov_b32 s{sHi}, 0x03020302")
        a(f"s_mov_b32 s{sC1}, {f2u(C1):#x}")
        a("s_lshl_b32 s6, s6, 2")
        a("s_cmp_lt_u32 s7, 4"); a("s_cbranch_scc1 L_PR")
        a("s_cmp_lt_u32 s7, 8"); a("s_cbranch_scc1 L_Q")

    def role_B(self):
        a = self.a; D = self.D; V = self.V; S = self.S
        vL16, vLast, M0, QF, DD, AB, T, T0, T1, U, vTag, vA, vB = 2, 3, 4, 8, 12, 16, 24, 28, 29, 30, 37, 38, 39
        NK = 22; NG = 6
        KT, VT = 40, 128
        WA, WB, X, G = 128, 144, 160, 164
        DA = 24
        tmp = 248; vOne = 216
        L_PB, L_Q, L_O, L_M, L_L, L_F, L_PA, L_Y = 0, 4096, 8192, 12288, 12416, 12544, 16384, 20480
        a("; ---------------- role B ----------------")
        a("L_B:")
        self.code_prefetch("L_B", "L_PR", 254, 255, 1)
        a("s_sub_u32 s7, s7, 8")
        a("s_mul_i32 s68, s7, 43"); a("s_lshr_b32 s68, s68, 8")
        a(f"s_add_u32 s{sH}, s6, s68")
        a("s_mul_i32 s68, s68, 6"); a(f"s_sub_u32 s{sSub}, s7, s68")
        a(f"v_lshlrev_b32 v{vL16}, 4, v1")
        a(f"v_lshrrev_b32 v{tmp}, 4, v1")
        a(f"v_and_b32 v{tmp+1}, 15, v1")
        a(f"v_lshlrev_b32 v{vB}, 15, v{tmp}"); a(f"v_lshl_add_u32 v{vB}, v{tmp+1}, 4, v{vB}")
        a(f"s_mul_i32 s68, s{sSub}, 7"); a(f"s_add_u32 s68, s68, s{sW}")
        a("s_cmp_lt_u32 s68, 40"); a("s_cselect_b32 s69, 0, 0x7f000000")
        a(f"s_cmp_lt_u32 s{sW}, 7"); a("s_cselect_b32 s69, s69, 0x7f000000")
        a("s_cmp_eq_u32 s69, 0"); a("s_cselect_b32 s68, s68, 0")
        a(f"v_or_b32 v{vB}, s69, v{vB}")
        a("s_lshl_b32 s74, s68, 5"); a(f"v_lshl_add_u32 v{vA}, v{tmp}, 3, s74")
        a("s_lshl_b32 s73, s68, 17"); a(f"s_lshl_b32 s74, s{sH}, 8"); a("s_add_u32 s73, s73, s74")
        a(f"s_lshl_b32 s68, s{sSub}, 3"); a(f"s_add_u32 s68, s68, s{sW}")
        a("s_lshl_b32 s69, s68, 6"); a("s_mul_hi_u32 s70, s69, 0x55555556")
        a("s_add_u32 s69, s69, 64"); a("s_mul_hi_u32 s71, s69, 0x55555556")
        a("s_sub_u32 s71, s71, s70")
        a(f"s_lshl_b32 s72, s{sH}, 20"); a("s_lshl_b32 s70, s70, 10"); a("s_add_u32 s72, s72, s70")
        a(f"s_cmp_eq_u32 s71, {NK}")
        a(f"s_cselect_b32 s{sBias}, 0, {f2u(NEG):#x}")
        a(f"s_cselect_b32 s74, 0, 0x7f000000")
        a(f"v_or_b32 v{vLast}, s74, v{vL16}")
        a(f"v_mov_b32 v{tmp+2}, 0"); a(f"v_mov_b32 v{tmp+3}, 0")
        a(f"s_lshl_b32 s68, s{sW}, 3"); a(f"v_mov_b32 v{tmp+4}, s68"); a(f"s_lshl_b32 s68, s{sW}, 2"); a(f"v_mov_b32 v{tmp+5}, s68")
        a("s_mov_b64 exec, 1")
        a(f"ds_write_b64 v{tmp+4}, {V(tmp+2,2)} offset:{L_M}")
        a(f"ds_write_b32 v{tmp+5}, v{tmp+2} offset:{L_F}")
        a(f"ds_write_b32 v{tmp+2}, v{tmp+2} offset:{L_F+32}")
        a(f"ds_write_b32 v{tmp+5}, v{tmp+2} offset:{L_F+64}")
        self.exec_full()
        a(f"v_mov_b32 v{vOne}, 1")
        a("s_waitcnt lgkmcnt(0)")
        self.srd(SRD3, pWQA, 640 * 8192); self.srd(SRD4, pWQB, 640 * 8192)
        a(f"global_load_dwordx2 {V(X,2)}, v{vA}, s[{pAX}:{pAX+1}]")
        a(f"global_load_dwordx2 {V(X+2,2)}, v{vA}, s[{pBX}:{pBX+1}]")
        def wq_loads(br):
            for i in range(4):
                if i == 0: a("s_mov_b32 s69, s73")
                else: a("s_add_u32 s69, s69, 8192")
                a(f"buffer_load_dwordx4 {V((WB if br else WA)+4*i)}, v{vB}, {S(SRD4 if br else SRD3)}, s69 offen {self.nt}")
        self.srd(SRD1, pK, 32 << 20); self.srd(SRD2, pV, 32 << 20)
        a("s_mov_b32 s75, s72")
        if self.rot:
            a(f"s_mul_i32 s68, s{sH}, {self.rot}"); a("s_and_b32 s68, s68, 15"); a("s_lshl_b32 s68, s68, 10")
            a("s_lshl_b32 s83, s71, 10"); a("s_add_u32 s83, s83, s72")
            a("s_mov_b32 s101, s72"); a("s_add_u32 s72, s72, s68"); a("s_mov_b32 s75, s72")
        def kv_load(srd, base, i, soff):
            voff = vLast if i == NK - 1 else vL16
            if self.rot:
                if i:
                    a(f"s_add_u32 s{soff}, s{soff}, 1024"); a(f"s_cmp_eq_u32 s{soff}, s83"); a(f"s_cselect_b32 s{soff}, s101, s{soff}")
                a(f"buffer_load_dwordx4 {V(base+4*i)}, v{voff}, {S(srd)}, s{soff} offen {self.nt}")
                return
            if i and i % 4 == 0: a(f"s_add_u32 s{soff}, s{soff}, 4096")
            a(f"buffer_load_dwordx4 {V(base+4*i)}, v{voff}, {S(srd)}, s{soff} offen offset:{1024*(i%4)} {self.nt}")
        D0 = self.D0
        late = self.prioA
        wq_loads(0)
        if not late:
            wq_loads(1)
            for i in range(D0): kv_load(SRD1, KT, i, 75)
        a("s_barrier")
        self.common2()
        self.masks(M0, 1, tmp, tmp + 1)
        a(f"v_and_b32 v{tmp}, 15, v1"); a(f"v_bfe_u32 v{tmp+1}, v1, 4, 1")
        a(f"v_lshl_add_u32 v{tmp}, v{tmp}, 1, v{tmp+1}"); a(f"v_lshlrev_b32 v{tmp}, 4, v{tmp}")
        a(f"s_lshl_b32 s68, s{sW}, 9"); a(f"v_add_u32 v{vA}, s68, v{tmp}")
        sels = [(0, sLo), (0, sHi), (1, sLo), (1, sHi)]
        def project(br):
            for i in range(4):
                xr, sel = sels[i]; xr += X + 2 * br
                a(f"v_perm_b32 v{G+i}, v{xr}, v{xr}, s{sel}")
            self.rowacc(DD if br else DA, AB, M0, 4, lambda i: (G + i, None), lambda i: (WB if br else WA) + 4 * i)
        def publish(wv, fl, lo, wsb):
            L = self.lab("b1"); a(f"s_cmp_eq_u32 s{sW}, {wv}"); a(f"s_cbranch_scc0 {L}")
            a(f"v_mov_b32 v{tmp+4}, 0")
            def rd():
                a(f"ds_read_b128 {V(G+32)}, v{tmp+4} offset:{fl}"); a(f"ds_read_b128 {V(G+36)}, v{tmp+4} offset:{fl+16}")
            self.lds_spin(rd, [G + 32 + k for k in range(8)], "bf1")
            a(f"v_and_b32 v{tmp}, 31, v1"); a(f"v_lshlrev_b32 v{tmp}, 4, v{tmp}")
            for k in range(8): a(f"ds_read_b128 {V(G+4*k)}, v{tmp} offset:{lo+512*k}")
            a(f"s_mul_i32 s68, s{sH}, {NS}"); a(f"s_add_u32 s68, s68, s{sSub}"); a("s_lshl_b32 s68, s68, 9"); a(f"s_add_u32 s68, s68, {wsb}")
            a("s_waitcnt lgkmcnt(0)")
            self.tree_add(G, 8)
            self.pack(G, vTag)
            self.exec_lo32()
            a(f"buffer_store_dwordx4 {V(G)}, v{tmp}, {WS}, s68 offen sc1")
            self.exec_full()
            a(f"{L}:")
        def write_part(br):
            self.exec_lo32()
            a(f"ds_write_b128 v{vA}, {V(DD if br else DA)} offset:{L_PB if br else L_PA}")
            a("s_mov_b32 exec_lo, 1")
            a(f"ds_write_b32 v{tmp+5}, v{vOne} offset:{L_F + (64 if br == 0 else 0)}")
            self.exec_full()
        a(f"s_waitcnt vmcnt({0 if late else 4 + D0})")
        self.stamp(1)
        a(f"v_mov_b32 v{vOne + 0}, 1") if False else None
        project(0)
        self.tag(vTag)
        write_part(0)
        publish(0, L_F + 64, L_PA, WS_QA)
        if late:
            wq_loads(1)
            for i in range(D0): kv_load(SRD1, KT, i, 75)
        a(f"s_waitcnt vmcnt({D0})")
        project(1)
        write_part(1)
        publish(2, L_F, L_PB, WS_QB)
        n1 = self.n1; n2 = n1 + D + 1
        assert n2 < NK
        win = lambda i: self.Ds if i < self.ns else D
        def gather_q():
            for s in range(NS):
                a(f"buffer_load_dwordx4 {V(G+4*s)}, v{tmp+3}, {WS}, s76 offen offset:{512*s} sc1")
        for i in range(D0, NK):
            if i >= win(i): a(f"s_waitcnt vmcnt({win(i)-1})")
            kv_load(SRD1, KT, i, 75)
            if i == n1:
                L = self.lab("b2")
                a(f"v_and_b32 v{tmp+3}, 31, v1"); a(f"v_lshlrev_b32 v{tmp+3}, 4, v{tmp+3}")
                a(f"s_mul_i32 s76, s{sH}, {512*NS}"); a(f"s_add_u32 s76, s76, {WS_QB}")
                a(f"s_cmp_eq_u32 s{sW}, 1"); a(f"s_cbranch_scc0 {L}")
                gather_q()
                a(f"{L}:")
            if i == n2:
                L = self.lab("b3"); a(f"s_cmp_eq_u32 s{sW}, 1"); a(f"s_cbranch_scc0 {L}")
                self.poll_loop(gather_q, [G + 4 * s + 3 for s in range(NS)], first_issued=True,
                               first_wait=f"s_waitcnt vmcnt({n2-n1})", name="bq")
                for s in range(NS): self.unpack(G + 4 * s)
                self.tree_add(G, NS)
                a(f"v_cvt_pk_bf16_f32 v{G}, v{G}, v{G+1}")
                a(f"v_cvt_pk_bf16_f32 v{G+1}, v{G+2}, v{G+3}")
                a(f"v_lshrrev_b32 v{tmp+3}, 1, v{tmp+3}")
                self.exec_lo32()
                a(f"ds_write_b64 v{tmp+3}, {V(G,2)} offset:{L_Q}")
                a("s_mov_b32 exec_lo, 1")
                a(f"v_mov_b32 v{tmp+3}, 0")
                a(f"ds_write_b32 v{tmp+3}, v{vOne} offset:{L_F+32}")
                self.exec_full()
                a(f"{L}:")
        self.stamp(2)
        if self.bar & 1: a("s_barrier")
        a("s_mov_b32 s75, s72")
        def wait_q():
            a(f"v_and_b32 v{tmp}, 15, v1"); a(f"v_lshlrev_b32 v{tmp}, 4, v{tmp}"); a(f"v_mov_b32 v{tmp+4}, 0")
            def rd():
                a(f"ds_read_b32 v{tmp+2}, v{tmp+4} offset:{L_F+32}")
                a(f"ds_read_b128 {V(QF)}, v{tmp} offset:{L_Q}")
            self.lds_spin(rd, [tmp + 2], "bq2")
        def kgroup(k):
            n = min(4, NK - 4 * k)
            for r in range(4):
                for u in range(n):
                    kreg = KT + 4 * (4 * k + u) + r
                    if r == 0: a(f"v_dot2_f32_bf16 v{T+u}, v{kreg}, v{QF}, 0")
                    else: a(f"v_dot2c_f32_bf16 v{T+u}, v{kreg}, v{QF+r}")
            if n < 4:
                a(f"v_mov_b32 v{T0}, {f2u(NEG):#x}"); a(f"v_mov_b32 v{T1}, {f2u(NEG):#x}")
                a(f"v_add_f32 v{T+1}, s{sBias}, v{T+1}")
            a(f"v_add_f32_dpp v{T0}, v{T}, v{T} row_ror:8 row_mask:0xf bank_mask:0x3")
            a(f"v_add_f32_dpp v{T1}, v{T+1}, v{T+1} row_ror:8 row_mask:0xf bank_mask:0x3")
            if n == 4:
                a(f"v_add_f32_dpp v{T0}, v{T+2}, v{T+2} row_ror:8 row_mask:0xf bank_mask:0xc")
                a(f"v_add_f32_dpp v{T1}, v{T+3}, v{T+3} row_ror:8 row_mask:0xf bank_mask:0xc")
            a(f"v_add_f32_dpp v{U+k}, v{T0}, v{T0} row_half_mirror row_mask:0xf bank_mask:0x5")
            a(f"v_add_f32_dpp v{U+k}, v{T1}, v{T1} row_half_mirror row_mask:0xf bank_mask:0xa")
            a(f"v_add_f32_dpp v{U+k}, v{U+k}, v{U+k} quad_perm:[2,3,0,1] row_mask:0xf bank_mask:0xf")
            a(f"v_add_f32_dpp v{U+k}, v{U+k}, v{U+k} quad_perm:[1,0,3,2] row_mask:0xf bank_mask:0xf")
        def allreduce_rows(r, op, t):
            a(f"v_mov_b32 v{t}, v{r}"); a(f"v_permlane16_swap_b32 v{r}, v{t}"); a(f"{op} v{r}, v{r}, v{t}")
            a(f"v_mov_b32 v{t}, v{r}"); a(f"v_permlane32_swap_b32 v{r}, v{t}"); a(f"{op} v{r}, v{r}, v{t}")
        vM, vLs = tmp, tmp + 1
        def softmax():
            a(f"v_max3_f32 v{vM}, v{U}, v{U+1}, v{U+2}")
            a(f"v_max3_f32 v{vM}, v{vM}, v{U+3}, v{U+4}")
            a(f"v_max_f32 v{vM}, v{vM}, v{U+5}")
            a(f"v_max_f32_dpp v{vM}, v{vM}, v{vM} row_ror:4 row_mask:0xf bank_mask:0xf")
            a(f"v_max_f32_dpp v{vM}, v{vM}, v{vM} row_ror:8 row_mask:0xf bank_mask:0xf")
            allreduce_rows(vM, "v_max_f32", tmp + 2)
            a(f"v_mul_f32 v{vM}, s{sC1}, v{vM}")
            a(f"v_mov_b32 v{tmp+2}, v{vM}"); a(f"v_mov_b32 v{tmp+3}, 1")
            a(f"s_lshl_b32 s68, s{sW}, 3"); a(f"v_mov_b32 v{tmp+4}, s68")
            a("s_mov_b64 exec, 1")
            a(f"ds_write_b64 v{tmp+4}, {V(tmp+2,2)} offset:{L_M}")
            self.exec_full()
            for k in range(NG): a(f"v_fma_f32 v{U+k}, v{U+k}, s{sC1}, -v{vM}")
            for k in range(NG): a(f"v_exp_f32 v{U+k}, v{U+k}")
            a(f"v_add_f32 v{vLs}, v{U}, v{U+1}")
            for k in range(2, NG): a(f"v_add_f32 v{vLs}, v{vLs}, v{U+k}")
            for k in range(NG): a(f"v_cvt_pk_bf16_f32 v{U+k}, v{U+k}, v{U+k}")
            a(f"v_add_f32_dpp v{vLs}, v{vLs}, v{vLs} row_ror:4 row_mask:0xf bank_mask:0xf")
            a(f"v_add_f32_dpp v{vLs}, v{vLs}, v{vLs} row_ror:8 row_mask:0xf bank_mask:0xf")
            allreduce_rows(vLs, "v_add_f32", tmp + 2)
        def pv_and(i):
            ab = AB + 4 * (i & 1)
            for t in range(4):
                a(f"v_and_b32_dpp v{ab+t}, v{U+(i>>2)}, v{M0+t} row_newbcast:{4*(i&3)} row_mask:0xf bank_mask:0xf")
        def pv_mfma(i):
            ab = AB + 4 * (i & 1)
            a(f"v_mfma_f32_16x16x32_bf16 {V(DD)}, {V(ab)}, {V(VT+4*i)}, {'0' if i == 0 else V(DD)}")
        pv = 0
        SM = 2 * NG
        D = self.Dv
        for i in range(NK):
            a(f"s_waitcnt vmcnt({D-1})")
            kv_load(SRD2, VT, i, 75)
            if i == 1: wait_q()
            if i == SM - 1 and self.bar & 2: a("s_barrier")
            if i < SM and i % 2 == 1: kgroup(i // 2)
            if i == SM - 1:
                softmax(); pv_and(0)
            if i == SM: self.code_prefetch("L_B_t", "L_PR", 254, 255, 1)
            if i >= SM:
                lim = i - D
                for _ in range(2):
                    if pv <= lim:
                        pv_and(pv + 1); pv_mfma(pv); pv += 1
        a("L_B_t:")
        self.stamp(3)
        WO = KT + 24
        a(f"v_lshrrev_b32 v{tmp+4}, 4, v1"); a("s_movk_i32 s68, 5120"); a(f"v_mul_u32_u24 v{tmp+4}, s68, v{tmp+4}")
        a(f"v_and_b32 v{tmp+5}, 15, v1"); a(f"v_lshl_add_u32 v{tmp+4}, v{tmp+5}, 4, v{tmp+4}")
        a(f"s_cmp_lt_u32 s{sSub}, 5"); a("s_cselect_b32 s68, 0, 0x7f000000"); a(f"v_or_b32 v{tmp+4}, s68, v{tmp+4}")
        a(f"s_lshl_b32 s68, s{sH}, 3"); a(f"s_add_u32 s68, s68, s{sW}"); a(f"s_mul_i32 s69, s68, {16*1280}"); a(f"s_lshl_b32 s68, s{sSub}, 8"); a("s_add_u32 s69, s69, s68")
        self.srd(SRD3, pWOB, 4096 * 1280)
        for rg in range(4):
            a(f"buffer_load_dwordx4 {V(WO+4*rg)}, v{tmp+4}, {S(SRD3)}, s69 offen offset:{1280*rg} {self.nt}")
        a(f"v_mov_b32 v{tmp+4}, 0")
        R8 = KT
        def rdm():
            for k in range(4): a(f"ds_read_b128 {V(R8+4*k)}, v{tmp+4} offset:{L_M+16*k}")
        self.lds_spin(rdm, [R8 + 2 * k + 1 for k in range(8)], "bm")
        vMc = R8 + 16; vF = R8 + 17
        a(f"v_max3_f32 v{vMc}, v{R8}, v{R8+2}, v{R8+4}")
        a(f"v_max3_f32 v{vMc}, v{vMc}, v{R8+6}, v{R8+8}")
        a(f"v_max3_f32 v{vMc}, v{vMc}, v{R8+10}, v{R8+12}")
        a(f"v_max_f32 v{vMc}, v{vMc}, v{R8+14}")
        a(f"v_sub_f32 v{vF}, v{vM}, v{vMc}")
        a(f"v_exp_f32 v{vF}, v{vF}")
        a(f"v_mul_f32 v{vLs}, v{vLs}, v{vF}")
        vG = R8 + 18; vZ = R8 + 19
        a(f"v_lshrrev_b32 v{vG}, 4, v1"); a(f"v_lshlrev_b32 v{vG}, 4, v{vG}"); a(f"v_mov_b32 v{vZ}, 0")
        a(f"s_mul_i32 s76, s{sH}, {512*NS}"); a(f"s_add_u32 s78, s76, {WS_OB}"); a(f"s_lshl_b32 s68, s{sW}, 6"); a("s_add_u32 s76, s78, s68")
        a(f"s_lshl_b32 s77, s{sH}, 7"); a(f"s_add_u32 s77, s77, {WS_MLB}")
        while pv < NK:
            a(f"s_waitcnt vmcnt({NK-1-pv+4})")
            if pv + 1 < NK: pv_and(pv + 1)
            pv_mfma(pv); pv += 1
        self.stamp(4)
        for v in range(4): a(f"v_mul_f32 v{DD+v}, v{vF}, v{DD+v}")
        a(f"s_lshl_b32 s68, s{sW}, 2"); a(f"v_mov_b32 v{tmp+4}, s68")
        self.exec_lo32()
        a(f"ds_write_b128 v{vA}, {V(DD)} offset:{L_O}")
        a("s_mov_b32 exec_lo, 1")
        a(f"ds_write_b32 v{tmp+4}, v{vLs} offset:{L_L}")
        self.exec_full()
        a("s_waitcnt lgkmcnt(0)")
        a("s_barrier")
        L = self.lab("b4"); a(f"s_cmp_eq_u32 s{sW}, 0"); a(f"s_cbranch_scc0 {L}")
        a(f"v_and_b32 v{tmp}, 31, v1"); a(f"v_lshlrev_b32 v{tmp}, 4, v{tmp}")
        G2 = VT
        for k in range(8): a(f"ds_read_b128 {V(G2+4*k)}, v{tmp} offset:{L_O+512*k}")
        a(f"ds_read_b128 {V(G2+32)}, v{vZ} offset:{L_L}")
        a(f"ds_read_b128 {V(G2+36)}, v{vZ} offset:{L_L+16}")
        a(f"s_lshl_b32 s68, s{sSub}, 9"); a("s_add_u32 s68, s68, s78")
        a(f"s_lshl_b32 s69, s{sSub}, 4"); a("s_add_u32 s69, s69, s77")
        a("s_waitcnt lgkmcnt(2)")
        self.tree_add(G2, 8)
        self.pack(G2, vTag)
        self.exec_lo32()
        a(f"buffer_store_dwordx4 {V(G2)}, v{tmp}, {WS}, s68 offen sc1")
        a("s_waitcnt lgkmcnt(0)")
        ML = R8 + 20
        a(f"v_pk_add_f32 {V(G2+32,2)}, {V(G2+32,2)}, {V(G2+34,2)}")
        a(f"v_pk_add_f32 {V(G2+36,2)}, {V(G2+36,2)}, {V(G2+38,2)}")
        a(f"v_pk_add_f32 {V(G2+32,2)}, {V(G2+32,2)}, {V(G2+36,2)}")
        a(f"v_mov_b32 v{ML}, v{vMc}")
        a(f"v_add_f32 v{ML+1}, v{G2+32}, v{G2+33}")
        a(f"v_mov_b32 v{ML+2}, 0"); a(f"v_mov_b32 v{ML+3}, v{vTag}")
        a("s_mov_b32 exec_lo, 1")
        a(f"buffer_store_dwordx4 {V(ML)}, v{vZ}, {WS}, s69 offen sc1")
        self.exec_full()
        a(f"{L}:")
        self.stamp(5)
        Le = self.lab("bend")
        a(f"s_cmp_lt_u32 s{sSub}, 5"); a(f"s_cbranch_scc0 {Le}")
        EG = VT + 40; ME = EG + 12; L_C = 24576
        O = U
        L = self.lab("bc"); a(f"s_cmp_eq_u32 s{sW}, 0"); a(f"s_cbranch_scc0 {L}")
        a(f"v_lshrrev_b32 v{tmp+1}, 5, v1"); a(f"v_lshlrev_b32 v{tmp+2}, 4, v{tmp+1}")
        a(f"v_lshl_add_u32 v{tmp+1}, v{tmp+1}, 9, v{tmp}")
        def gather_ob():
            for j in range(3): a(f"buffer_load_dwordx4 {V(EG+4*j)}, v{tmp+1}, {WS}, s78 offen offset:{1024*j} sc1")
            for j in range(3): a(f"buffer_load_dwordx4 {V(ME+4*j)}, v{tmp+2}, {WS}, s77 offen offset:{32*j} sc1")
        self.poll_loop(gather_ob, [EG + 4 * j + 3 for j in range(6)], sleep=0, name="bob")
        self.stamp(6)
        vMx = T; vL = T + 1
        def half_allred(r, op, t):
            a(f"v_mov_b32 v{t}, v{r}"); a(f"v_permlane32_swap_b32 v{r}, v{t}"); a(f"{op} v{r}, v{r}, v{t}")
        a(f"v_max3_f32 v{vMx}, v{ME}, v{ME+4}, v{ME+8}")
        half_allred(vMx, "v_max_f32", T + 2)
        for j in range(3): self.unpack(EG + 4 * j)
        for j in range(3): a(f"v_sub_f32 v{ME+4*j}, v{ME+4*j}, v{vMx}")
        for j in range(3): a(f"v_exp_f32 v{ME+4*j}, v{ME+4*j}")
        a(f"v_mul_f32 v{vL}, v{ME}, v{ME+1}")
        for v in range(4): a(f"v_mul_f32 v{O+v}, v{ME}, v{EG+v}")
        for j in range(1, 3):
            a(f"v_fmac_f32 v{vL}, v{ME+4*j}, v{ME+4*j+1}")
            for v in range(4): a(f"v_fmac_f32 v{O+v}, v{ME+4*j}, v{EG+4*j+v}")
        for v in range(4): a(f"v_mov_b32 v{T+4+v}, v{O+v}") if False else None
        a(f"v_mov_b32 v{EG}, v{vL}")
        for v in range(4): a(f"v_mov_b32 v{EG+1+v}, v{O+v}")
        a(f"v_permlane32_swap_b32 v{vL}, v{EG}")
        for v in range(4): a(f"v_permlane32_swap_b32 v{O+v}, v{EG+1+v}")
        a(f"v_add_f32 v{vL}, v{vL}, v{EG}")
        for v in range(4): a(f"v_add_f32 v{O+v}, v{O+v}, v{EG+1+v}")
        a(f"v_rcp_f32 v{vL}, v{vL}")
        for v in range(4): a(f"v_mul_f32 v{O+v}, v{vL}, v{O+v}")
        for v in range(4): a(f"v_cvt_pk_bf16_f32 v{O+v}, v{O+v}, v{O+v}")
        self.exec_lo32()
        a(f"ds_write_b128 v{tmp}, {V(O)} offset:{L_C}")
        self.exec_full()
        a("s_waitcnt lgkmcnt(0)")
        a(f"{L}:")
        a(f"s_lshl_b32 s68, s{sW}, 6"); a(f"v_add_u32 v{vG}, s68, v{vG}")
        a("s_barrier")
        a(f"ds_read_b128 {V(O)}, v{vG} offset:{L_C}")
        a("s_waitcnt vmcnt(0) lgkmcnt(0)")
        self.rowacc(DD, AB, M0, 4, lambda i: (O + i, None), lambda i: WO + 4 * i)
        self.exec_lo32()
        a(f"ds_write_b128 v{vA}, {V(DD)} offset:{L_Y}")
        self.exec_full()
        a("s_waitcnt lgkmcnt(0)")
        a("s_barrier")
        a(f"s_cmp_eq_u32 s{sW}, 0"); a(f"s_cbranch_scc0 {Le}")
        a(f"v_and_b32 v{tmp}, 31, v1"); a(f"v_lshlrev_b32 v{tmp}, 4, v{tmp}")
        for k in range(8): a(f"ds_read_b128 {V(G2+4*k)}, v{tmp} offset:{L_Y+512*k}")
        a(f"s_mul_i32 s68, s{sH}, 2560"); a(f"s_lshl_b32 s69, s{sSub}, 9"); a("s_add_u32 s68, s68, s69"); a(f"s_add_u32 s68, s68, {WS_YB}")
        a("s_waitcnt lgkmcnt(0)")
        self.tree_add(G2, 8)
        self.pack(G2, vTag)
        self.exec_lo32()
        a(f"buffer_store_dwordx4 {V(G2)}, v{tmp}, {WS}, s68 offen sc1")
        self.exec_full()
        a(f"{Le}:")
        self.stamp(7)
        self.finish("B")

    def role_PR(self):
        a = self.a; V = self.V; S = self.S
        vUK, vUV, M0, QF, DD, AB, T, U, vTag, vLD, tmp = 2, 3, 4, 8, 12, 16, 24, 32, 36, 37, 40
        UK, UV, CT, ML, GQ, G = 64, 128, 192, 224, 192, 48
        self.code_prefetch("L_PR", "L_Q", 254, 255, 1)
        a(f"s_add_u32 s{sH}, s6, s7")
        a(f"v_lshrrev_b32 v{tmp+2}, 4, v1"); a(f"v_and_b32 v{tmp+3}, 15, v1"); a(f"v_lshlrev_b32 v{tmp+3}, 4, v{tmp+3}")
        a(f"v_lshl_add_u32 v{vUK}, v{tmp+2}, 16, v{tmp+3}")
        a(f"v_lshl_add_u32 v{vUV}, v{tmp+2}, 17, v{tmp+3}")
        a(f"s_and_b32 s68, s{sW}, 3"); a("s_add_u32 s79, s68, s6")
        a(f"s_lshr_b32 s70, s{sW}, 2"); a("s_lshl_b32 s71, s7, 1"); a("s_add_u32 s70, s70, s71")
        a("s_lshl_b32 s73, s70, 19"); a("s_lshl_b32 s69, s79, 8"); a("s_add_u32 s73, s73, s69")
        a(f"s_lshl_b32 s74, s{sW}, 19"); a(f"s_lshl_b32 s69, s{sH}, 8"); a("s_add_u32 s74, s74, s69")
        a(f"s_mul_i32 s76, s79, {512*NS}"); a(f"s_add_u32 s76, s76, {WS_QA}")
        a("s_waitcnt lgkmcnt(0)")
        self.srd(SRD2, pWUK, 512 * 8192)
        for i in range(16):
            b, ii = i >> 3, i & 7
            if i == 8: a(f"s_add_u32 s73, s73, {8192*25}")
            elif i: a("s_add_u32 s73, s73, 8192")
            a(f"buffer_load_dwordx4 {V(UK+4*i)}, v{vUK}, {S(SRD2)}, s73 offen {self.nt}")
        self.common2()
        self.srd(SRD3, pWUV, 512 * 8192)
        self.masks(M0, 1, tmp, tmp + 1)
        a(f"v_and_b32 v{tmp}, 15, v1"); a(f"v_bfe_u32 v{tmp+1}, v1, 4, 1")
        a(f"v_lshl_add_u32 v{tmp}, v{tmp}, 1, v{tmp+1}"); a(f"v_lshlrev_b32 v{tmp}, 4, v{tmp}")
        a(f"s_lshl_b32 s68, s{sW}, 9"); a(f"v_add_u32 v{vLD}, s68, v{tmp}")
        self.tag(vTag)
        a(f"v_and_b32 v{tmp}, 31, v1"); a(f"v_lshlrev_b32 v{tmp}, 4, v{tmp}")
        def gather_q():
            for i in range(NS): a(f"buffer_load_dwordx4 {V(GQ+4*i)}, v{tmp}, {WS}, s76 offen offset:{512*i} sc1")
        a("s_waitcnt vmcnt(3)")
        self.stamp(1)
        self.poll_loop(gather_q, [GQ + 4 * i + 3 for i in range(NS)], sleep=1, name="pq")
        self.stamp(2)
        for i in range(NS): self.unpack(GQ + 4 * i)
        self.tree_add(GQ, NS)
        a(f"v_cvt_pk_bf16_f32 v{GQ}, v{GQ}, v{GQ+1}"); a(f"v_cvt_pk_bf16_f32 v{GQ+1}, v{GQ+2}, v{GQ+3}")
        a(f"s_lshl_b32 s68, s{sW}, 8"); a(f"v_lshrrev_b32 v{tmp}, 1, v{tmp}"); a(f"v_add_u32 v{tmp}, s68, v{tmp}")
        self.exec_lo32()
        a(f"ds_write_b64 v{tmp}, {V(GQ,2)} offset:8192")
        self.exec_full()
        a(f"v_and_b32 v{tmp}, 15, v1"); a(f"v_lshlrev_b32 v{tmp}, 4, v{tmp}"); a(f"v_add_u32 v{tmp}, s68, v{tmp}")
        a("s_waitcnt lgkmcnt(0)")
        a(f"ds_read_b128 {V(QF)}, v{tmp} offset:8192")
        a(f"v_lshrrev_b32 v{tmp}, 3, v1"); a(f"v_lshlrev_b32 v{tmp}, 4, v{tmp}")
        a("s_lshl_b32 s68, s79, 11"); a("s_lshl_b32 s69, s70, 8"); a("s_add_u32 s68, s68, s69"); a(f"s_add_u32 s68, s68, {WS_QABS}")
        a("s_waitcnt lgkmcnt(0)")
        self.stamp(3)
        for b in range(2):
            Ub = U if b == 0 else 48
            for r in range(4):
                for i in range(8):
                    kr = UK + 4 * (8 * b + i)
                    if r == 0: a(f"v_dot2_f32_bf16 v{T+i}, v{kr}, v{QF}, 0")
                    else: a(f"v_dot2c_f32_bf16 v{T+i}, v{kr+r}, v{QF+r}")
            for k in range(4): a(f"v_add_f32_dpp v{Ub+k}, v{T+k}, v{T+k} row_ror:8 row_mask:0xf bank_mask:0x3")
            for k in range(4): a(f"v_add_f32_dpp v{Ub+k}, v{T+k+4}, v{T+k+4} row_ror:8 row_mask:0xf bank_mask:0xc")
            for k in range(4): a(f"v_add_f32_dpp v{Ub+k}, v{Ub+k}, v{Ub+k} row_half_mirror row_mask:0xf bank_mask:0xf")
            for k in range(4): a(f"v_add_f32_dpp v{Ub+k}, v{Ub+k}, v{Ub+k} quad_perm:[2,3,0,1] row_mask:0xf bank_mask:0xf")
            for k in range(4): a(f"v_add_f32_dpp v{Ub+k}, v{Ub+k}, v{Ub+k} quad_perm:[1,0,3,2] row_mask:0xf bank_mask:0xf")
            self.pack(Ub, vTag)
            a("s_mov_b32 exec_lo, 0x01010101"); a("s_mov_b32 exec_hi, 0x01010101")
            a(f"buffer_store_dwordx4 {V(Ub)}, v{tmp}, {WS}, s68 offen offset:{128*b} sc1")
            self.exec_full()
        self.stamp(4)
        a("s_barrier")
        for i in range(16):
            if i: a("s_add_u32 s74, s74, 8192")
            a(f"buffer_load_dwordx4 {V(UV+4*i)}, v{vUV}, {S(SRD3)}, s74 offen {self.nt}")
        self.code_prefetch("L_PR_t", "L_Q", 254, 255, 1)
        a("L_PR_t:")
        MLr, CO = 208, 48
        a(f"v_lshrrev_b32 v{tmp}, 3, v1"); a(f"v_lshlrev_b32 v{tmp+2}, 4, v{tmp}")
        a(f"v_and_b32 v{tmp+1}, 7, v1"); a(f"v_lshlrev_b32 v{tmp+1}, 4, v{tmp+1}"); a(f"v_lshl_add_u32 v{tmp+3}, v{tmp}, 10, v{tmp+1}")
        a(f"s_lshl_b32 s76, s{sH}, 9"); a(f"s_add_u32 s76, s76, {WS_ML}")
        a(f"s_lshl_b32 s78, s{sH}, 15"); a(f"s_lshl_b32 s68, s{sW}, 7"); a("s_add_u32 s78, s78, s68"); a(f"s_add_u32 s78, s78, {WS_CTX}")
        def gather_ml():
            for i in range(4): a(f"buffer_load_dwordx4 {V(MLr+4*i)}, v{tmp+2}, {WS}, s76 offen offset:{128*i} sc1")
        self.poll_loop(gather_ml, [MLr + 4 * i + 3 for i in range(4)], sleep=2, name="pml")
        self.stamp(5)
        for i in range(4):
            if i: a("s_add_u32 s78, s78, 8192")
            a(f"buffer_load_dwordx4 {V(CT+4*i)}, v{tmp+3}, {WS}, s78 offen sc1")
        vM, vL = T, T + 1
        a(f"v_max3_f32 v{vM}, v{MLr}, v{MLr+4}, v{MLr+8}"); a(f"v_max_f32 v{vM}, v{vM}, v{MLr+12}")
        def allred(r, op, t):
            a(f"{op}_dpp v{r}, v{r}, v{r} row_ror:8 row_mask:0xf bank_mask:0xf")
            a(f"v_mov_b32 v{t}, v{r}"); a(f"v_permlane16_swap_b32 v{r}, v{t}"); a(f"{op} v{r}, v{r}, v{t}")
            a(f"v_mov_b32 v{t}, v{r}"); a(f"v_permlane32_swap_b32 v{r}, v{t}"); a(f"{op} v{r}, v{r}, v{t}")
        allred(vM, "v_max_f32", T + 2)
        for i in range(4): a(f"v_sub_f32 v{MLr+4*i}, v{MLr+4*i}, v{vM}")
        for i in range(4): a(f"v_exp_f32 v{MLr+4*i}, v{MLr+4*i}")
        a(f"v_mul_f32 v{vL}, v{MLr}, v{MLr+1}")
        for i in range(1, 4): a(f"v_fmac_f32 v{vL}, v{MLr+4*i}, v{MLr+4*i+1}")
        allred(vL, "v_add_f32", T + 2)
        a(f"v_rcp_f32 v{vL}, v{vL}")
        for i in range(4): a(f"v_mul_f32 v{MLr+4*i}, v{vL}, v{MLr+4*i}")
        for i in range(4): a(f"v_cvt_pk_bf16_f32 v{MLr+4*i}, v{MLr+4*i}, v{MLr+4*i}")
        a(f"v_and_b32 v{tmp}, 7, v1"); a(f"v_bfe_u32 v{tmp+1}, v1, 4, 1"); a(f"v_lshl_add_u32 v{tmp}, v{tmp}, 1, v{tmp+1}"); a(f"v_lshlrev_b32 v{tmp}, 4, v{tmp}")
        a(f"s_lshl_b32 s68, s{sW}, 8"); a(f"v_add_u32 v{tmp}, s68, v{tmp}")
        a(f"v_lshrrev_b32 v{tmp+1}, 4, v1"); a(f"v_lshlrev_b32 v{tmp+1}, 6, v{tmp+1}"); a(f"v_add_u32 v{tmp+1}, s68, v{tmp+1}")
        a("s_waitcnt vmcnt(0)")
        self.stamp(6)
        self.rowacc(DD, AB, M0, 4, lambda i: (MLr + 4 * i, None), lambda i: CT + 4 * i)
        for v in range(4): a(f"v_mov_b32 v{T+v}, v{DD+v}")
        for v in range(4): a(f"v_permlane32_swap_b32 v{DD+v}, v{T+v}")
        for v in range(4): a(f"v_add_f32_dpp v{DD+v}, v{T+v}, v{DD+v} row_shl:8 row_mask:0xf bank_mask:0x3")
        for v in range(4): a(f"v_cvt_pk_bf16_f32 v{DD+v}, v{DD+v}, v{DD+v}")
        a("s_mov_b32 exec_lo, 0x00ff00ff"); a("s_mov_b32 exec_hi, 0")
        a(f"ds_write_b128 v{tmp}, {V(DD)} offset:8192")
        self.exec_full()
        a("s_waitcnt lgkmcnt(0)")
        for k in range(4): a(f"ds_read_b128 {V(CO+4*k)}, v{tmp+1} offset:{8192+16*k}")
        a("s_waitcnt lgkmcnt(0)")
        self.rowacc(DD, AB, M0, 16, lambda i: (CO + i, None), lambda i: UV + 4 * i)
        self.exec_lo32()
        a(f"ds_write_b128 v{vLD}, {V(DD)}")
        self.exec_full()
        a("s_waitcnt lgkmcnt(0)")
        a("s_barrier")
        L = self.lab("p4"); a(f"s_cmp_eq_u32 s{sW}, 0"); a(f"s_cbranch_scc0 {L}")
        a(f"v_and_b32 v{tmp}, 31, v1"); a(f"v_lshlrev_b32 v{tmp}, 4, v{tmp}")
        for k in range(8): a(f"ds_read_b128 {V(CT+4*k)}, v{tmp} offset:{512*k}")
        a(f"s_lshl_b32 s68, s{sH}, 9"); a(f"s_add_u32 s68, s68, {WS_CTXF}")
        a("s_waitcnt lgkmcnt(0)")
        self.tree_add(CT, 8)
        self.pack(CT, vTag)
        self.exec_lo32()
        a(f"buffer_store_dwordx4 {V(CT)}, v{tmp}, {WS}, s68 offen sc1")
        self.exec_full()
        a(f"{L}:")
        self.stamp(7)
        Le = self.lab("pend")
        a(f"s_lshl_b32 s79, s{sH}, 3"); a(f"s_add_u32 s79, s79, s{sW}")
        a(f"v_and_b32 v{tmp}, 31, v1"); a("s_movk_i32 s68, 2560"); a(f"v_mul_u32_u24 v{tmp}, s68, v{tmp}")
        a(f"v_lshrrev_b32 v{tmp+1}, 5, v1"); a(f"v_lshl_add_u32 v{tmp}, v{tmp+1}, 4, v{tmp}")
        a(f"v_lshlrev_b32 v{tmp+1}, 3, v{tmp+1}"); a(f"v_mov_b32 v{tmp+2}, 0")
        a("s_cmp_lt_u32 s79, 80"); a(f"s_cbranch_scc0 {Le}")
        regs = [G + v for v in range(4)]
        for br in range(2):
            a(f"s_lshl_b32 s76, s79, 5"); a(f"s_add_u32 s76, s76, {WS_YB if br else WS_YA}")
            a("s_lshl_b32 s78, s79, 4")
            if br:
                a("s_add_u32 s78, s78, 1280")
                a("s_and_b32 s68, s79, 31"); a("s_lshl_b32 s68, s68, 7"); a(f"s_add_u32 s77, s68, {WS_MLB}")
                def gather_ind(): a(f"buffer_load_dwordx4 {V(G)}, v{tmp+2}, {WS}, s77 offen sc1")
                self.poll_loop(gather_ind, [G + 3], sleep=4, name="pind")
            def gather_y(): a(f"buffer_load_dwordx4 {V(G)}, v{tmp}, {WS}, s76 offen sc1")
            self.poll_loop(gather_y, [G + 3], sleep=(0 if br else 2), name="py")
            self.unpack(G)
            self.row_allreduce(regs, "v_add_f32")
            for r in regs: a(f"v_add_f32_dpp v{r}, v{r}, v{r} row_bcast:15 row_mask:0xa bank_mask:0xf")
            a(f"v_cvt_pk_bf16_f32 v{G}, v{G}, v{G+1}"); a(f"v_cvt_pk_bf16_f32 v{G+1}, v{G+2}, v{G+3}")
            a("s_mov_b32 exec_lo, 0x80000000"); a("s_mov_b32 exec_hi, 0x80000000")
            a(f"buffer_store_dwordx2 {V(G,2)}, v{tmp+1}, {OUT}, s78 offen")
            self.exec_full()
            self.stamp(1 + br)
        a("s_cmp_eq_u32 s79, 0"); a(f"s_cbranch_scc0 {Le}")
        a(f"s_add_u32 s68, s{sEpoch}, 1"); a(f"v_mov_b32 v{tmp}, s68")
        a("s_mov_b64 exec, 1")
        a(f"buffer_store_dword v{tmp}, v{tmp+2}, {WS}, 0 offen")
        self.exec_full()
        a(f"{Le}:")
        self.finish("PR")

    def role_Q(self):
        a = self.a; V = self.V; S = self.S
        vL16, M0, Z, DS, AB, G, vTag = 2, 4, 8, 16, 24, 32, 3
        SA, PA = 64, 192
        tmp = 12
        t2 = 24
        a("; ---------------- role Q ----------------")
        self.code_prefetch("L_Q", "L_end", 14, 32, 1)
        a(f"s_sub_u32 s7, s7, 4"); a(f"s_add_u32 s{sH}, s6, s7")
        a(f"v_lshlrev_b32 v{vL16}, 4, v1")
        a(f"s_lshl_b32 s72, s{sH}, 17"); a(f"s_lshl_b32 s68, s{sW}, 14"); a("s_add_u32 s72, s72, s68")
        a(f"s_lshl_b32 s73, s{sW}, 14")
        a("s_waitcnt lgkmcnt(0)")
        self.srd(SRD1, pCKV, 4096 * 1024)
        for r in range(16):
            f = (r & 8) | ((r & 3) << 1)
            a(f"v_xor_b32 v{tmp + (r & 1)}, {16*f}, v{vL16}")
            a(f"s_add_u32 m0, s73, {1024*r}")
            a(f"s_add_u32 s74, s72, {1024*r}")
            a(f"buffer_load_dwordx4 v{tmp + (r & 1)}, {S(SRD1)}, s74 offen {self.nt} lds")
        self.common2()
        self.srd(SRD2, pWOA, 4096 * 1280)
        self.masks(M0, 1, tmp, tmp + 1)
        a(f"v_and_b32 v{tmp}, 3, v1"); a(f"v_lshlrev_b32 v{tmp}, 1, v{tmp}"); a(f"v_and_b32 v{tmp+1}, 8, v1"); a(f"v_or_b32 v{tmp}, v{tmp}, v{tmp+1}")
        a(f"v_lshrrev_b32 v{tmp+1}, 4, v1"); a(f"v_xor_b32 v{tmp}, v{tmp}, v{tmp+1}"); a(f"v_lshlrev_b32 v{tmp}, 4, v{tmp}")
        for m in range(4): a(f"v_xor_b32 v{Z+m}, {64*m}, v{tmp}")
        a(f"v_and_b32 v{tmp+2}, 15, v1")
        a(f"s_and_b32 s68, s{sW}, 3"); a("s_lshl_b32 s68, s68, 15"); a(f"v_lshl_add_u32 v{tmp+3}, v{tmp+2}, 10, s68")
        for m in range(4): a(f"v_add_u32 v{t2+m}, v{tmp+3}, v{Z+m}")
        a(f"v_bfe_u32 v{tmp}, v1, 2, 2")
        a(f"v_bfe_u32 v{tmp+1}, v1, 4, 1"); a(f"v_lshlrev_b32 v{tmp+1}, 3, v{tmp+1}"); a(f"v_lshl_or_b32 v{tmp+1}, v{tmp}, 1, v{tmp+1}")
        a(f"v_bfe_u32 v{tmp+3}, v1, 1, 1"); a(f"v_xor_b32 v{tmp+1}, v{tmp+1}, v{tmp+3}")
        a(f"s_and_b32 s68, s{sW}, 1"); a("s_lshl_b32 s68, s68, 3"); a(f"v_xor_b32 v{tmp+1}, s68, v{tmp+1}")
        a(f"v_lshrrev_b32 v{tmp+3}, 4, v1"); a(f"v_lshl_add_u32 v{tmp}, v{tmp+3}, 3, v{tmp}")
        a(f"v_lshlrev_b32 v{tmp}, 10, v{tmp}"); a(f"v_and_b32 v{tmp+3}, 1, v1"); a(f"v_lshl_add_u32 v{tmp}, v{tmp+3}, 3, v{tmp}")
        a(f"s_lshr_b32 s68, s{sW}, 1"); a("s_lshl_b32 s68, s68, 8"); a(f"v_add_u32 v{tmp}, s68, v{tmp}")
        for ct in range(4):
            a(f"v_xor_b32 v{t2+4+ct}, {2*ct}, v{tmp+1}"); a(f"v_lshl_add_u32 v{t2+4+ct}, v{t2+4+ct}, 4, v{tmp}")
        a("s_waitcnt vmcnt(0)")
        self.tag(vTag)
        a("s_barrier")
        self.stamp(1)
        for kt in range(2):
            for ks in range(16):
                a(f"ds_read_b128 {V(SA+64*kt+4*ks)}, v{t2+(ks&3)} offset:{256*(ks>>2)+16384*kt}")
            a("s_waitcnt lgkmcnt(8)")
        for half in range(2):
            for ct in range(4):
                for kk in range(2):
                    for hh in range(2):
                        r = PA + 16 * ct + 4 * (2 * half + kk) + 2 * hh
                        a(f"ds_read_b64_tr_b16 {V(r,2)}, v{t2+4+ct} offset:{(32*kk+4*hh)*1024}")
                a("s_waitcnt lgkmcnt(8)")
            if half == 0:
                for ct in range(4): a(f"v_add_u32 v{t2+4+ct}, 0x10000, v{t2+4+ct}")
        a("s_waitcnt lgkmcnt(0)")
        a("s_barrier")
        self.stamp(2)
        WL = 98304
        NL = self.NL
        vWO = 62
        a(f"v_lshrrev_b32 v{vWO}, 4, v1"); a("s_movk_i32 s68, 5120"); a(f"v_mul_u32_u24 v{vWO}, s68, v{vWO}"); a(f"v_lshl_add_u32 v{vWO}, v{tmp+2}, 4, v{vWO}")
        a(f"s_lshl_b32 s68, s{sH}, 3"); a(f"s_add_u32 s68, s68, s{sW}"); a(f"s_mul_i32 s72, s68, {16*1280}")
        a(f"s_lshl_b32 s73, s{sW}, 13"); a(f"s_add_u32 s73, s73, {WL}")
        for n in range(NL):
            rg, cb = divmod(n, 5)
            a(f"s_add_u32 m0, s73, {1024*n}")
            a(f"s_add_u32 s74, s72, {1280*rg + 256*cb}")
            a(f"buffer_load_dwordx4 v{vWO}, {S(SRD2)}, s74 offen {self.nt} lds")
        self.code_prefetch("L_Q_t", "L_end", 14 + 1, 63, 1)
        a("L_Q_t:")
        a(f"s_lshl_b32 s76, s{sW}, 13"); a(f"s_add_u32 s76, s76, {WS_QABS}"); a("s_add_u32 s77, s76, 4096")
        a(f"v_mov_b32 v{tmp}, 0")
        def gather_ind(): a(f"buffer_load_dwordx4 {V(G)}, v{tmp}, {WS}, s76 offen sc1")
        self.poll_loop(gather_ind, [G + 3], sleep=2, name="qind")
        def gather_qabs():
            for i in range(8):
                a(f"buffer_load_dwordx4 {V(G+4*i)}, v{vL16}, {WS}, s{76 if i < 4 else 77} offen offset:{1024*(i&3)} sc1")
        self.poll_loop(gather_qabs, [G + 4 * i + 3 for i in range(8)], sleep=0, name="qabs")
        self.stamp(3)
        a(f"s_bfe_u32 s68, s{sW}, 0x10001"); a("s_lshl_b32 s68, s68, 7"); a(f"v_lshlrev_b32 v{tmp}, 3, v1"); a(f"v_xor_b32 v{tmp}, s68, v{tmp}")
        a(f"s_lshl_b32 s68, s{sW}, 12")
        for ii in range(4):
            a(f"v_xor_b32 v{t2+ii}, {32*ii}, v{tmp}"); a(f"v_add_u32 v{t2+ii}, s68, v{t2+ii}")
        for i in range(8):
            r = G + 4 * i
            self.unpack(r)
            a(f"v_cvt_pk_bf16_f32 v{r}, v{r}, v{r+1}"); a(f"v_cvt_pk_bf16_f32 v{r+1}, v{r+2}, v{r+3}")
            a(f"ds_write_b64 v{t2+(i>>1)}, {V(r,2)} offset:{1024*(i>>1)+512*(i&1)}")
        a(f"s_lshr_b32 s68, s{sW}, 2"); a("s_lshl_b32 s68, s68, 14"); a(f"v_lshl_add_u32 v{tmp+3}, v{tmp+2}, 10, s68")
        for m in range(4): a(f"v_add_u32 v{t2+4+m}, v{tmp+3}, v{Z+m}")
        a("s_waitcnt lgkmcnt(0)")
        a("s_barrier")
        for ks in range(8): a(f"ds_read_b128 {V(G+4*ks)}, v{t2+4+(ks&3)} offset:{256*(ks>>2)}")
        for ks in range(16):
            a(f"s_waitcnt lgkmcnt({min(7, 15-ks)})")
            for kt in range(2):
                a(f"v_mfma_f32_16x16x32_bf16 {V(DS+4*kt)}, {V(SA+64*kt+4*ks)}, {V(G+4*(ks&7))}, {'0' if ks == 0 else V(DS+4*kt)}")
            if ks < 8:
                k2 = ks + 8
                a(f"ds_read_b128 {V(G+4*ks)}, v{t2+4+(k2&3)} offset:{256*(k2>>2)}")
        WO, YD = 96, 176
        def wo_load(n):
            rg, cb = divmod(n, 5)
            a(f"s_add_u32 s73, s72, {1280*rg}")
            a(f"buffer_load_dwordx4 {V(WO+4*n)}, v{vWO}, {S(SRD2)}, s73 offen offset:{256*cb} {self.nt}")
        vM = tmp; SM, SS, PO = 32768, 33280, 36864
        a(f"v_max3_f32 v{vM}, v{DS}, v{DS+1}, v{DS+2}"); a(f"v_max3_f32 v{vM}, v{vM}, v{DS+3}, v{DS+4}")
        a(f"v_max3_f32 v{vM}, v{vM}, v{DS+5}, v{DS+6}"); a(f"v_max_f32 v{vM}, v{vM}, v{DS+7}")
        def allrows(r, op, t):
            a(f"v_mov_b32 v{t}, v{r}"); a(f"v_permlane16_swap_b32 v{r}, v{t}"); a(f"{op} v{r}, v{r}, v{t}")
            a(f"v_mov_b32 v{t}, v{r}"); a(f"v_permlane32_swap_b32 v{r}, v{t}"); a(f"{op} v{r}, v{r}, v{t}")
        allrows(vM, "v_max_f32", tmp + 1)
        a(f"s_lshr_b32 s68, s{sW}, 2"); a("s_lshl_b32 s68, s68, 8"); a(f"v_lshl_add_u32 v{t2}, v{tmp+2}, 4, s68")
        a(f"s_and_b32 s69, s{sW}, 3"); a("s_lshl_b32 s69, s69, 2"); a(f"v_add_u32 v{t2+1}, s69, v{t2}")
        a("s_mov_b32 exec_hi, 0"); a("s_mov_b32 exec_lo, 0xffff")
        a(f"ds_write_b32 v{t2+1}, v{vM} offset:{SM}")
        self.exec_full()
        a("s_waitcnt lgkmcnt(0)")
        a("s_barrier")
        a(f"ds_read_b128 {V(G)}, v{t2} offset:{SM}")
        a(f"v_and_b32 v{t2+2}, 3, v1"); a(f"v_lshlrev_b32 v{t2+2}, 1, v{t2+2}"); a(f"v_and_b32 v{t2+3}, 8, v1"); a(f"v_or_b32 v{t2+2}, v{t2+2}, v{t2+3}")
        a(f"v_lshrrev_b32 v{t2+3}, 5, v1"); a(f"v_xor_b32 v{t2+2}, v{t2+2}, v{t2+3}")
        a(f"s_and_b32 s69, s{sW}, 3"); a("s_lshl_b32 s69, s69, 2"); a(f"v_xor_b32 v{t2+2}, s69, v{t2+2}")
        a(f"v_bfe_u32 v{t2+3}, v1, 4, 1"); a(f"v_lshlrev_b32 v{t2+3}, 3, v{t2+3}")
        a(f"v_lshl_add_u32 v{t2+3}, v{tmp+2}, 8, v{t2+3}"); a("s_lshl_b32 s68, s68, 4"); a(f"v_add_u32 v{t2+3}, s68, v{t2+3}")
        a(f"v_lshl_add_u32 v{t2+4}, v{t2+2}, 4, v{t2+3}")
        a(f"v_xor_b32 v{t2+2}, 2, v{t2+2}"); a(f"v_lshl_add_u32 v{t2+5}, v{t2+2}, 4, v{t2+3}")
        a("s_waitcnt lgkmcnt(0)")
        a(f"v_max3_f32 v{vM}, v{G}, v{G+1}, v{G+2}"); a(f"v_max_f32 v{vM}, v{vM}, v{G+3}")
        a(f"v_mul_f32 v{vM}, s{sC1}, v{vM}")
        for k in range(8): a(f"v_fma_f32 v{DS+k}, v{DS+k}, s{sC1}, -v{vM}")
        for k in range(8): a(f"v_exp_f32 v{DS+k}, v{DS+k}")
        vS = tmp + 3
        a(f"v_add_f32 v{vS}, v{DS}, v{DS+1}")
        for k in range(2, 8): a(f"v_add_f32 v{vS}, v{vS}, v{DS+k}")
        for kt in range(2):
            a(f"v_cvt_pk_bf16_f32 v{DS+4*kt}, v{DS+4*kt}, v{DS+4*kt+1}"); a(f"v_cvt_pk_bf16_f32 v{DS+4*kt+1}, v{DS+4*kt+2}, v{DS+4*kt+3}")
            a(f"ds_write_b64 v{t2+4+kt}, {V(DS+4*kt,2)} offset:{PO}")
        allrows(vS, "v_add_f32", tmp + 1)
        a("s_mov_b32 exec_hi, 0"); a("s_mov_b32 exec_lo, 0xffff")
        a(f"ds_write_b32 v{t2+1}, v{vS} offset:{SS}")
        self.exec_full()
        a("s_waitcnt lgkmcnt(0)")
        a("s_barrier")
        self.stamp(4)
        a(f"v_lshlrev_b32 v{tmp+3}, 8, v{tmp+2}")
        for kk in range(4): a(f"v_add_u32 v{t2+kk}, v{tmp+3}, v{Z+kk}")
        for ht in range(2):
            for kk in range(4): a(f"ds_read_b128 {V(G+16*ht+4*kk)}, v{t2+kk} offset:{PO+4096*ht}")
        PD = SA
        for ht in range(2):
            a(f"s_waitcnt lgkmcnt({4 if ht == 0 else 0})")
            for kk in range(4):
                for ct in range(4):
                    d = PD + 16 * ht + 4 * ct
                    a(f"v_mfma_f32_16x16x32_bf16 {V(d)}, {V(PA+16*ct+4*kk)}, {V(G+16*ht+4*kk)}, {'0' if kk == 0 else V(d)}")
        TO = 65536
        a(f"v_lshrrev_b32 v{t2}, 4, v1")
        a(f"v_and_b32 v{t2+1}, 7, v1"); a(f"v_lshlrev_b32 v{t2+1}, 1, v{t2+1}"); a(f"v_xor_b32 v{t2+1}, v{t2+1}, v{t2}")
        a(f"s_lshl_b32 s68, s{sW}, 12"); a(f"s_add_u32 s68, s68, {TO}")
        a(f"v_lshl_add_u32 v{t2+2}, v{tmp+2}, 7, s68")
        for ct in range(4):
            a(f"v_xor_b32 v{t2+4+ct}, {4*ct}, v{t2+1}"); a(f"v_lshl_add_u32 v{t2+4+ct}, v{t2+4+ct}, 3, v{t2+2}")
        for ht in range(2):
            for ct in range(4):
                d = PD + 16 * ht + 4 * ct
                a(f"v_cvt_pk_bf16_f32 v{d}, v{d}, v{d+1}"); a(f"v_cvt_pk_bf16_f32 v{d+1}, v{d+2}, v{d+3}")
                a(f"ds_write_b64 v{t2+4+ct}, {V(d,2)} offset:{2048*ht}")
        a(f"v_lshrrev_b32 v{t2}, 3, v1"); a(f"v_and_b32 v{t2+1}, 7, v1")
        a(f"v_xor_b32 v{t2+2}, v{t2}, v{t2+1}"); a(f"v_lshlrev_b32 v{t2+2}, 4, v{t2+2}"); a(f"v_lshl_add_u32 v{t2+2}, v{t2}, 7, v{t2+2}"); a(f"v_add_u32 v{t2+2}, s68, v{t2+2}")
        a(f"v_lshlrev_b32 v{t2+1}, 4, v{t2+1}"); a(f"v_lshl_add_u32 v{t2+1}, v{t2}, 15, v{t2+1}")
        a(f"s_lshl_b32 s76, s{sH}, 10"); a(f"s_lshl_b32 s69, s{sW}, 7"); a("s_add_u32 s76, s76, s69"); a(f"s_add_u32 s76, s76, {WS_CTX}")
        a("s_waitcnt lgkmcnt(0)")
        for i in range(4): a(f"ds_read_b128 {V(G+4*i)}, v{t2+2} offset:{1024*i}")
        for i in range(4):
            a(f"s_waitcnt lgkmcnt({3-i})")
            a(f"buffer_store_dwordx4 {V(G+4*i)}, v{t2+1}, {WS}, s76 offen sc1")
            if i < 3: a("s_add_u32 s76, s76, 0x40000")
        if self.exp == 1: self.stamp(6)
        a("s_waitcnt vmcnt(0)")
        if self.exp == 1: self.stamp(7)
        a("s_barrier")
        L = self.lab("q1"); a(f"s_cmp_eq_u32 s{sW}, 0"); a(f"s_cbranch_scc0 {L}")
        a(f"v_and_b32 v{tmp}, 31, v1"); a(f"v_lshlrev_b32 v{tmp+1}, 4, v{tmp}")
        a(f"ds_read_b128 {V(PA)}, v{tmp+1} offset:{SM}"); a(f"ds_read_b128 {V(PA+4)}, v{tmp+1} offset:{SS}")
        a(f"v_lshlrev_b32 v{tmp}, 9, v{tmp}"); a(f"s_lshl_b32 s68, s{sH}, 4"); a(f"s_add_u32 s68, s68, {WS_ML}")
        a("s_waitcnt lgkmcnt(0)")
        a(f"v_max3_f32 v{PA}, v{PA}, v{PA+1}, v{PA+2}"); a(f"v_max_f32 v{PA}, v{PA}, v{PA+3}"); a(f"v_mul_f32 v{PA}, s{sC1}, v{PA}")
        a(f"v_pk_add_f32 {V(PA+4,2)}, {V(PA+4,2)}, {V(PA+6,2)}"); a(f"v_add_f32 v{PA+1}, v{PA+4}, v{PA+5}")
        a(f"v_mov_b32 v{PA+2}, 0"); a(f"v_mov_b32 v{PA+3}, v{vTag}")
        self.exec_lo32()
        a(f"buffer_store_dwordx4 {V(PA)}, v{tmp}, {WS}, s68 offen sc1")
        self.exec_full()
        a(f"{L}:")
        a("s_barrier")
        self.stamp(5)
        a(f"v_lshrrev_b32 v{vWO}, 4, v1"); a("s_movk_i32 s68, 5120"); a(f"v_mul_u32_u24 v{vWO}, s68, v{vWO}"); a(f"v_lshl_add_u32 v{vWO}, v{tmp+2}, 4, v{vWO}")
        for n in range(NL, 20): wo_load(n)
        if NL:
            a(f"s_lshl_b32 s68, s{sW}, 13"); a(f"s_add_u32 s68, s68, {WL}"); a(f"v_add_u32 v{vWO+1}, s68, v{vL16}")
            for n in range(NL): a(f"ds_read_b128 {V(WO+4*n)}, v{vWO+1} offset:{1024*n}")
        a(f"v_lshrrev_b32 v{tmp}, 4, v1"); a(f"v_lshlrev_b32 v{tmp}, 4, v{tmp}")
        a(f"s_lshl_b32 s76, s{sH}, 9"); a(f"s_lshl_b32 s68, s{sW}, 6"); a("s_add_u32 s76, s76, s68"); a(f"s_add_u32 s76, s76, {WS_CTXF}")
        O = G
        def gather_cf(): a(f"buffer_load_dwordx4 {V(O)}, v{tmp}, {WS}, s76 offen sc1")
        self.poll_loop(gather_cf, [O + 3], sleep=2, name="qcf")
        a("s_waitcnt lgkmcnt(0)")
        if self.exp != 1: self.stamp(6)
        self.unpack(O)
        for v in range(4): a(f"v_cvt_pk_bf16_f32 v{O+v}, v{O+v}, v{O+v}")
        def ands(rg):
            ab = AB + 4 * (rg & 1)
            for t in range(4): a(f"v_and_b32 v{ab+t}, v{O+rg}, v{M0+t}")
        ands(0)
        for rg in range(4):
            if rg + 1 < 4: ands(rg + 1)
            ab = AB + 4 * (rg & 1)
            for cb in range(5):
                a(f"v_mfma_f32_16x16x32_bf16 {V(YD+4*cb)}, {V(ab)}, {V(WO+4*(5*rg+cb))}, {'0' if rg == 0 else V(YD+4*cb)}")
        YO = 45056
        a(f"v_and_b32 v{tmp}, 15, v1"); a(f"v_bfe_u32 v{tmp+1}, v1, 4, 1"); a(f"v_lshl_add_u32 v{tmp}, v{tmp}, 1, v{tmp+1}"); a(f"v_lshlrev_b32 v{tmp}, 4, v{tmp}")
        a(f"s_mul_i32 s68, s{sW}, 2560"); a(f"v_add_u32 v{tmp}, s68, v{tmp}")
        self.exec_lo32()
        for cb in range(5): a(f"ds_write_b128 v{tmp}, {V(YD+4*cb)} offset:{YO+512*cb}")
        self.exec_full()
        a("s_waitcnt lgkmcnt(0)")
        a("s_barrier")
        Le = self.lab("qend")
        a(f"v_lshlrev_b32 v{tmp}, 4, v0")
        a(f"s_cmp_lt_u32 s{sW}, 3"); a(f"s_cbranch_scc0 {Le}")
        for k in range(8): a(f"ds_read_b128 {V(G+4*k)}, v{tmp} offset:{YO+2560*k}")
        a(f"s_mul_i32 s68, s{sH}, 2560"); a(f"s_add_u32 s68, s68, {WS_YA}")
        a("v_cmp_gt_u32 vcc, 160, v0")
        a("s_waitcnt lgkmcnt(0)")
        self.tree_add(G, 8)
        self.pack(G, vTag)
        a("s_and_b64 exec, exec, vcc")
        a(f"buffer_store_dwordx4 {V(G)}, v{tmp}, {WS}, s68 offen sc1")
        self.exec_full()
        a(f"{Le}:")
        if self.exp != 1: self.stamp(7)
        self.finish("Q")

if __name__ == "__main__":
    import argparse
    ap = argparse.ArgumentParser()
    ap.add_argument("-o", default="k.s"); ap.add_argument("--prof", action="store_true"); ap.add_argument("--dbgst", action="store_true")
    ap.add_argument("--roles", default="BPQ"); ap.add_argument("--spin", type=int, default=20000); ap.add_argument("--nt", default="nt")
    for k, d in dict(D=5, D0=2, Ds=5, ns=0, Dv=5, pf=1, bar=3, n1=10, prioA=1, light=1, exp=0, NE=5, NL=5, rot=0, pf2=0).items(): ap.add_argument("--" + k, type=int, default=d)
    args = ap.parse_args()
    g = Gen3(prof=args.prof, D=args.D, spin=args.spin, roles=args.roles, nt=args.nt, dbgst=args.dbgst, D0=args.D0, Ds=args.Ds, ns=args.ns, Dv=args.Dv, pf=args.pf, bar=args.bar, n1=args.n1)
    g.prioA = args.prioA; g.light = args.light; g.exp = args.exp; g.NE = args.NE; g.NL = args.NL; g.rot = args.rot; g.pf2 = args.pf2; g.lds = 163840 if args.NL else 131072
    open(args.o, "w").write(g.build())
    sys.path.insert(0, "exp"); import build
    print(build.build(args.o))
```

```python
import sys
import gen as G0
from gen import (Gen, f2u, C1, NEG, KN, sW, sH, sSub, WS, OUT, pAX, pCKV, pWQA, pWUK, pWUV, pWOA, pBX, pK, pV, pWQB, pWOB, pOUT, pDBG, pWS,
                 SRD1, SRD2, SRD3, SRD4, sEpoch, sTag, sP0, sP1, sP2, sU, sLo, sHi, sC1, sCnt, sBias, sProf)

WS_QB   = 0x01000
WS_QA   = 0x1A000
WS_OB   = 0x33000
WS_MLB  = 0x4C000
WS_ML   = 0x50000
WS_CTXF = 0x54000
WS_QABS = 0x60000
WS_YA   = 0x70000
WS_YB   = 0x88000
WS_OBF  = 0xA0000
WS_MLBF = 0xB9000
WS_PROF = 0xC0000
WS_CTX  = 0x100000
G0.WS_PROF = WS_PROF
NS = 6

class Gen3(Gen):
    prioA = 1; light = 1; exp = 0; NE = 5; NL = 5; rot = 0; fast = 0; bmap = 0
    def prologue(self):
        a = self.a
        a("s_cmp_ge_u32 s2, 256"); a("s_cbranch_scc1 L_end")
        a("s_load_dwordx4 s[40:43], s[0:1], 96")
        a("s_load_dwordx16 s[16:31], s[0:1], 0")
        a("s_load_dwordx8 s[32:39], s[0:1], 64")
        self.stamp(0)
        if self.prof: a("s_mov_b32 s100, 0")
        a("v_lshrrev_b32 v2, 6, v0")
        a("v_and_b32 v1, 63, v0")
        a(f"v_readfirstlane_b32 s{sW}, v2")
        a("s_and_b32 s6, s2, 7")
        a("s_lshr_b32 s7, s2, 3")
        a(f"s_mov_b32 s{sP0}, 0x07060501"); a(f"s_mov_b32 s{sP1}, 0x07060502"); a(f"s_mov_b32 s{sP2}, 0x07060503")
        a(f"s_mov_b32 s{sU}, 0x0c04000c"); a(f"s_mov_b32 s{sLo}, 0x01000100"); a(f"s_mov_b32 s{sHi}, 0x03020302")
        a(f"s_mov_b32 s{sC1}, {f2u(C1):#x}")
        a("s_lshl_b32 s6, s6, 2")
        a("s_cmp_lt_u32 s7, 4"); a("s_cbranch_scc1 L_PR")
        a("s_cmp_lt_u32 s7, 8"); a("s_cbranch_scc1 L_Q")

    def role_B(self):
        a = self.a; D = self.D; V = self.V; S = self.S
        vL16, vLast, M0, QF, DD, AB, T, T0, T1, U, vTag, vA, vB = 2, 3, 4, 8, 12, 16, 24, 28, 29, 30, 37, 38, 39
        NK = 22; NG = 6
        KT, VT = 40, 128
        WA, WB, X, G = 128, 144, 160, 164
        DA = 24
        tmp = 248; vOne = 216
        L_PB, L_Q, L_O, L_M, L_L, L_F, L_PA, L_Y = 0, 4096, 8192, 12288, 12416, 12544, 16384, 20480
        a("; ---------------- role B ----------------")
        a("L_B:")
        self.code_prefetch("L_B", "L_PR", 254, 255, 1)
        if self.bmap == 0:
            a("s_sub_u32 s7, s7, 8")
            a("s_mul_i32 s68, s7, 43"); a("s_lshr_b32 s68, s68, 8")
            a(f"s_add_u32 s{sH}, s6, s68")
            a("s_mul_i32 s68, s68, 6"); a(f"s_sub_u32 s{sSub}, s7, s68")
        elif self.bmap == 1:
            a("s_sub_u32 s7, s2, 64")
            a(f"s_mul_i32 s{sH}, s7, 10923"); a(f"s_lshr_b32 s{sH}, s{sH}, 16")
            a(f"s_mul_i32 s68, s{sH}, 6"); a(f"s_sub_u32 s{sSub}, s7, s68")
        else:
            a("s_sub_u32 s7, s2, 64")
            a(f"s_and_b32 s{sH}, s7, 31"); a(f"s_lshr_b32 s{sSub}, s7, 5")
        a(f"v_lshlrev_b32 v{vL16}, 4, v1")
        a(f"v_lshrrev_b32 v{tmp}, 4, v1")
        a(f"v_and_b32 v{tmp+1}, 15, v1")
        a(f"v_lshlrev_b32 v{vB}, 15, v{tmp}"); a(f"v_lshl_add_u32 v{vB}, v{tmp+1}, 4, v{vB}")
        a(f"s_mul_i32 s68, s{sSub}, 7"); a(f"s_add_u32 s68, s68, s{sW}")
        a("s_cmp_lt_u32 s68, 40"); a("s_cselect_b32 s69, 0, 0x7f000000")
        a(f"s_cmp_lt_u32 s{sW}, 7"); a("s_cselect_b32 s69, s69, 0x7f000000")
        a("s_cmp_eq_u32 s69, 0"); a("s_cselect_b32 s68, s68, 0")
        a(f"v_or_b32 v{vB}, s69, v{vB}")
        a("s_lshl_b32 s74, s68, 5"); a(f"v_lshl_add_u32 v{vA}, v{tmp}, 3, s74")
        a("s_lshl_b32 s73, s68, 17"); a(f"s_lshl_b32 s74, s{sH}, 8"); a("s_add_u32 s73, s73, s74")
        a(f"s_lshl_b32 s68, s{sSub}, 3"); a(f"s_add_u32 s68, s68, s{sW}")
        a("s_lshl_b32 s69, s68, 6"); a("s_mul_hi_u32 s70, s69, 0x55555556")
        a("s_add_u32 s69, s69, 64"); a("s_mul_hi_u32 s71, s69, 0x55555556")
        a("s_sub_u32 s71, s71, s70")
        a(f"s_lshl_b32 s72, s{sH}, 20"); a("s_lshl_b32 s70, s70, 10"); a("s_add_u32 s72, s72, s70")
        a(f"s_cmp_eq_u32 s71, {NK}")
        a(f"s_cselect_b32 s{sBias}, 0, {f2u(NEG):#x}")
        a(f"s_cselect_b32 s74, 0, 0x7f000000")
        a(f"v_or_b32 v{vLast}, s74, v{vL16}")
        a(f"v_mov_b32 v{tmp+2}, 0"); a(f"v_mov_b32 v{tmp+3}, 0")
        a(f"s_lshl_b32 s68, s{sW}, 3"); a(f"v_mov_b32 v{tmp+4}, s68"); a(f"s_lshl_b32 s68, s{sW}, 2"); a(f"v_mov_b32 v{tmp+5}, s68")
        a("s_mov_b64 exec, 1")
        a(f"ds_write_b64 v{tmp+4}, {V(tmp+2,2)} offset:{L_M}")
        a(f"ds_write_b32 v{tmp+5}, v{tmp+2} offset:{L_F}")
        a(f"ds_write_b32 v{tmp+2}, v{tmp+2} offset:{L_F+32}")
        a(f"ds_write_b32 v{tmp+5}, v{tmp+2} offset:{L_F+64}")
        self.exec_full()
        a(f"v_mov_b32 v{vOne}, 1")
        a("s_waitcnt lgkmcnt(0)")
        self.srd(SRD3, pWQA, 640 * 8192); self.srd(SRD4, pWQB, 640 * 8192)
        a(f"global_load_dwordx2 {V(X,2)}, v{vA}, s[{pAX}:{pAX+1}]")
        a(f"global_load_dwordx2 {V(X+2,2)}, v{vA}, s[{pBX}:{pBX+1}]")
        def wq_loads(br):
            for i in range(4):
                if i == 0: a("s_mov_b32 s69, s73")
                else: a("s_add_u32 s69, s69, 8192")
                a(f"buffer_load_dwordx4 {V((WB if br else WA)+4*i)}, v{vB}, {S(SRD4 if br else SRD3)}, s69 offen {self.nt}")
        self.srd(SRD1, pK, 32 << 20); self.srd(SRD2, pV, 32 << 20)
        a("s_mov_b32 s75, s72")
        if self.rot:
            a(f"s_mul_i32 s68, s{sH}, {self.rot}"); a("s_and_b32 s68, s68, 15"); a("s_lshl_b32 s68, s68, 10")
            a("s_lshl_b32 s83, s71, 10"); a("s_add_u32 s83, s83, s72")
            a("s_mov_b32 s101, s72"); a("s_add_u32 s72, s72, s68"); a("s_mov_b32 s75, s72")
        def kv_load(srd, base, i, soff):
            voff = vLast if i == NK - 1 else vL16
            if self.rot:
                if i:
                    a(f"s_add_u32 s{soff}, s{soff}, 1024"); a(f"s_cmp_eq_u32 s{soff}, s83"); a(f"s_cselect_b32 s{soff}, s101, s{soff}")
                a(f"buffer_load_dwordx4 {V(base+4*i)}, v{voff}, {S(srd)}, s{soff} offen {self.nt}")
                return
            if i and i % 4 == 0: a(f"s_add_u32 s{soff}, s{soff}, 4096")
            a(f"buffer_load_dwordx4 {V(base+4*i)}, v{voff}, {S(srd)}, s{soff} offen offset:{1024*(i%4)} {self.nt}")
        D0 = self.D0
        late = self.prioA
        wq_loads(0)
        if not late:
            wq_loads(1)
            for i in range(D0): kv_load(SRD1, KT, i, 75)
        a("s_barrier")
        self.common2()
        self.masks(M0, 1, tmp, tmp + 1)
        a(f"v_and_b32 v{tmp}, 15, v1"); a(f"v_bfe_u32 v{tmp+1}, v1, 4, 1")
        a(f"v_lshl_add_u32 v{tmp}, v{tmp}, 1, v{tmp+1}"); a(f"v_lshlrev_b32 v{tmp}, 4, v{tmp}")
        a(f"s_lshl_b32 s68, s{sW}, 9"); a(f"v_add_u32 v{vA}, s68, v{tmp}")
        sels = [(0, sLo), (0, sHi), (1, sLo), (1, sHi)]
        def project(br):
            for i in range(4):
                xr, sel = sels[i]; xr += X + 2 * br
                a(f"v_perm_b32 v{G+i}, v{xr}, v{xr}, s{sel}")
            self.rowacc(DD if br else DA, AB, M0, 4, lambda i: (G + i, None), lambda i: (WB if br else WA) + 4 * i)
        def publish(wv, fl, lo, wsb):
            L = self.lab("b1"); a(f"s_cmp_eq_u32 s{sW}, {wv}"); a(f"s_cbranch_scc0 {L}")
            a(f"v_mov_b32 v{tmp+4}, 0")
            def rd():
                a(f"ds_read_b128 {V(G+32)}, v{tmp+4} offset:{fl}"); a(f"ds_read_b128 {V(G+36)}, v{tmp+4} offset:{fl+16}")
            self.lds_spin(rd, [G + 32 + k for k in range(8)], "bf1")
            a(f"v_and_b32 v{tmp}, 31, v1"); a(f"v_lshlrev_b32 v{tmp}, 4, v{tmp}")
            for k in range(8): a(f"ds_read_b128 {V(G+4*k)}, v{tmp} offset:{lo+512*k}")
            a(f"s_mul_i32 s68, s{sH}, {NS}"); a(f"s_add_u32 s68, s68, s{sSub}"); a("s_lshl_b32 s68, s68, 9"); a(f"s_add_u32 s68, s68, {wsb}")
            a("s_waitcnt lgkmcnt(0)")
            self.tree_add(G, 8)
            self.pack(G, vTag)
            self.exec_lo32()
            a(f"buffer_store_dwordx4 {V(G)}, v{tmp}, {WS}, s68 offen sc1")
            self.exec_full()
            a(f"{L}:")
        def write_part(br):
            self.exec_lo32()
            a(f"ds_write_b128 v{vA}, {V(DD if br else DA)} offset:{L_PB if br else L_PA}")
            a("s_mov_b32 exec_lo, 1")
            a(f"ds_write_b32 v{tmp+5}, v{vOne} offset:{L_F + (64 if br == 0 else 0)}")
            self.exec_full()
        a(f"s_waitcnt vmcnt({0 if late else 4 + D0})")
        self.stamp(1)
        a(f"v_mov_b32 v{vOne + 0}, 1") if False else None
        project(0)
        self.tag(vTag)
        write_part(0)
        publish(0, L_F + 64, L_PA, WS_QA)
        if late:
            wq_loads(1)
            for i in range(D0): kv_load(SRD1, KT, i, 75)
        a(f"s_waitcnt vmcnt({D0})")
        project(1)
        write_part(1)
        publish(2, L_F, L_PB, WS_QB)
        n1 = self.n1; n2 = n1 + D + 1
        assert n2 < NK
        win = lambda i: self.Ds if i < self.ns else D
        def gather_q():
            for s in range(NS):
                a(f"buffer_load_dwordx4 {V(G+4*s)}, v{tmp+3}, {WS}, s76 offen offset:{512*s} sc1")
        for i in range(D0, NK):
            if i >= win(i): a(f"s_waitcnt vmcnt({win(i)-1})")
            kv_load(SRD1, KT, i, 75)
            if i == n1:
                L = self.lab("b2")
                a(f"v_and_b32 v{tmp+3}, 31, v1"); a(f"v_lshlrev_b32 v{tmp+3}, 4, v{tmp+3}")
                a(f"s_mul_i32 s76, s{sH}, {512*NS}"); a(f"s_add_u32 s76, s76, {WS_QB}")
                a(f"s_cmp_eq_u32 s{sW}, 1"); a(f"s_cbranch_scc0 {L}")
                gather_q()
                a(f"{L}:")
            if i == n2:
                L = self.lab("b3"); a(f"s_cmp_eq_u32 s{sW}, 1"); a(f"s_cbranch_scc0 {L}")
                self.poll_loop(gather_q, [G + 4 * s + 3 for s in range(NS)], first_issued=True,
                               first_wait=f"s_waitcnt vmcnt({n2-n1})", name="bq")
                for s in range(NS): self.unpack(G + 4 * s)
                self.tree_add(G, NS)
                a(f"v_cvt_pk_bf16_f32 v{G}, v{G}, v{G+1}")
                a(f"v_cvt_pk_bf16_f32 v{G+1}, v{G+2}, v{G+3}")
                a(f"v_lshrrev_b32 v{tmp+3}, 1, v{tmp+3}")
                self.exec_lo32()
                a(f"ds_write_b64 v{tmp+3}, {V(G,2)} offset:{L_Q}")
                a("s_mov_b32 exec_lo, 1")
                a(f"v_mov_b32 v{tmp+3}, 0")
                a(f"ds_write_b32 v{tmp+3}, v{vOne} offset:{L_F+32}")
                self.exec_full()
                a(f"{L}:")
        self.stamp(2)
        if self.bar & 1: a("s_barrier")
        a("s_mov_b32 s75, s72")
        def wait_q():
            a(f"v_and_b32 v{tmp}, 15, v1"); a(f"v_lshlrev_b32 v{tmp}, 4, v{tmp}"); a(f"v_mov_b32 v{tmp+4}, 0")
            def rd():
                a(f"ds_read_b32 v{tmp+2}, v{tmp+4} offset:{L_F+32}")
                a(f"ds_read_b128 {V(QF)}, v{tmp} offset:{L_Q}")
            self.lds_spin(rd, [tmp + 2], "bq2")
        def kgroup(k):
            n = min(4, NK - 4 * k)
            for r in range(4):
                for u in range(n):
                    kreg = KT + 4 * (4 * k + u) + r
                    if r == 0: a(f"v_dot2_f32_bf16 v{T+u}, v{kreg}, v{QF}, 0")
                    else: a(f"v_dot2c_f32_bf16 v{T+u}, v{kreg}, v{QF+r}")
            if n < 4:
                a(f"v_mov_b32 v{T0}, {f2u(NEG):#x}"); a(f"v_mov_b32 v{T1}, {f2u(NEG):#x}")
                a(f"v_add_f32 v{T+1}, s{sBias}, v{T+1}")
            a(f"v_add_f32_dpp v{T0}, v{T}, v{T} row_ror:8 row_mask:0xf bank_mask:0x3")
            a(f"v_add_f32_dpp v{T1}, v{T+1}, v{T+1} row_ror:8 row_mask:0xf bank_mask:0x3")
            if n == 4:
                a(f"v_add_f32_dpp v{T0}, v{T+2}, v{T+2} row_ror:8 row_mask:0xf bank_mask:0xc")
                a(f"v_add_f32_dpp v{T1}, v{T+3}, v{T+3} row_ror:8 row_mask:0xf bank_mask:0xc")
            a(f"v_add_f32_dpp v{U+k}, v{T0}, v{T0} row_half_mirror row_mask:0xf bank_mask:0x5")
            a(f"v_add_f32_dpp v{U+k}, v{T1}, v{T1} row_half_mirror row_mask:0xf bank_mask:0xa")
            a(f"v_add_f32_dpp v{U+k}, v{U+k}, v{U+k} quad_perm:[2,3,0,1] row_mask:0xf bank_mask:0xf")
            a(f"v_add_f32_dpp v{U+k}, v{U+k}, v{U+k} quad_perm:[1,0,3,2] row_mask:0xf bank_mask:0xf")
        def allreduce_rows(r, op, t):
            a(f"v_mov_b32 v{t}, v{r}"); a(f"v_permlane16_swap_b32 v{r}, v{t}"); a(f"{op} v{r}, v{r}, v{t}")
            a(f"v_mov_b32 v{t}, v{r}"); a(f"v_permlane32_swap_b32 v{r}, v{t}"); a(f"{op} v{r}, v{r}, v{t}")
        vM, vLs = tmp, tmp + 1
        def softmax():
            a(f"v_max3_f32 v{vM}, v{U}, v{U+1}, v{U+2}")
            a(f"v_max3_f32 v{vM}, v{vM}, v{U+3}, v{U+4}")
            a(f"v_max_f32 v{vM}, v{vM}, v{U+5}")
            a(f"v_max_f32_dpp v{vM}, v{vM}, v{vM} row_ror:4 row_mask:0xf bank_mask:0xf")
            a(f"v_max_f32_dpp v{vM}, v{vM}, v{vM} row_ror:8 row_mask:0xf bank_mask:0xf")
            allreduce_rows(vM, "v_max_f32", tmp + 2)
            a(f"v_mul_f32 v{vM}, s{sC1}, v{vM}")
            a(f"v_mov_b32 v{tmp+2}, v{vM}"); a(f"v_mov_b32 v{tmp+3}, 1")
            a(f"s_lshl_b32 s68, s{sW}, 3"); a(f"v_mov_b32 v{tmp+4}, s68")
            a("s_mov_b64 exec, 1")
            a(f"ds_write_b64 v{tmp+4}, {V(tmp+2,2)} offset:{L_M}")
            self.exec_full()
            for k in range(NG): a(f"v_fma_f32 v{U+k}, v{U+k}, s{sC1}, -v{vM}")
            for k in range(NG): a(f"v_exp_f32 v{U+k}, v{U+k}")
            a(f"v_add_f32 v{vLs}, v{U}, v{U+1}")
            for k in range(2, NG): a(f"v_add_f32 v{vLs}, v{vLs}, v{U+k}")
            for k in range(NG): a(f"v_cvt_pk_bf16_f32 v{U+k}, v{U+k}, v{U+k}")
            a(f"v_add_f32_dpp v{vLs}, v{vLs}, v{vLs} row_ror:4 row_mask:0xf bank_mask:0xf")
            a(f"v_add_f32_dpp v{vLs}, v{vLs}, v{vLs} row_ror:8 row_mask:0xf bank_mask:0xf")
            allreduce_rows(vLs, "v_add_f32", tmp + 2)
        def pv_and(i):
            ab = AB + 4 * (i & 1)
            for t in range(4):
                a(f"v_and_b32_dpp v{ab+t}, v{U+(i>>2)}, v{M0+t} row_newbcast:{4*(i&3)} row_mask:0xf bank_mask:0xf")
        def pv_mfma(i):
            ab = AB + 4 * (i & 1)
            a(f"v_mfma_f32_16x16x32_bf16 {V(DD)}, {V(ab)}, {V(VT+4*i)}, {'0' if i == 0 else V(DD)}")
        pv = 0
        SM = 2 * NG
        D = self.Dv
        for i in range(NK):
            a(f"s_waitcnt vmcnt({D-1})")
            kv_load(SRD2, VT, i, 75)
            if i == 1: wait_q()
            if i == SM - 1 and self.bar & 2: a("s_barrier")
            if i < SM and i % 2 == 1: kgroup(i // 2)
            if i == SM - 1:
                softmax(); pv_and(0)
            if i == SM: self.code_prefetch("L_B_t", "L_PR", 254, 255, 1)
            if i >= SM:
                lim = i - D
                for _ in range(2):
                    if pv <= lim:
                        pv_and(pv + 1); pv_mfma(pv); pv += 1
        a("L_B_t:")
        self.stamp(3)
        WO = KT + 24
        a(f"v_lshrrev_b32 v{tmp+4}, 4, v1"); a("s_movk_i32 s68, 5120"); a(f"v_mul_u32_u24 v{tmp+4}, s68, v{tmp+4}")
        a(f"v_and_b32 v{tmp+5}, 15, v1"); a(f"v_lshl_add_u32 v{tmp+4}, v{tmp+5}, 4, v{tmp+4}")
        a(f"s_cmp_lt_u32 s{sSub}, 5"); a("s_cselect_b32 s68, 0, 0x7f000000"); a(f"v_or_b32 v{tmp+4}, s68, v{tmp+4}")
        a(f"s_lshl_b32 s68, s{sH}, 3"); a(f"s_add_u32 s68, s68, s{sW}"); a(f"s_mul_i32 s69, s68, {16*1280}"); a(f"s_lshl_b32 s68, s{sSub}, 8"); a("s_add_u32 s69, s69, s68")
        self.srd(SRD3, pWOB, 4096 * 1280)
        for rg in range(4):
            a(f"buffer_load_dwordx4 {V(WO+4*rg)}, v{tmp+4}, {S(SRD3)}, s69 offen offset:{1280*rg} {self.nt}")
        a(f"v_mov_b32 v{tmp+4}, 0")
        R8 = KT
        def rdm():
            for k in range(4): a(f"ds_read_b128 {V(R8+4*k)}, v{tmp+4} offset:{L_M+16*k}")
        self.lds_spin(rdm, [R8 + 2 * k + 1 for k in range(8)], "bm")
        vMc = R8 + 16; vF = R8 + 17
        a(f"v_max3_f32 v{vMc}, v{R8}, v{R8+2}, v{R8+4}")
        a(f"v_max3_f32 v{vMc}, v{vMc}, v{R8+6}, v{R8+8}")
        a(f"v_max3_f32 v{vMc}, v{vMc}, v{R8+10}, v{R8+12}")
        a(f"v_max_f32 v{vMc}, v{vMc}, v{R8+14}")
        a(f"v_sub_f32 v{vF}, v{vM}, v{vMc}")
        a(f"v_exp_f32 v{vF}, v{vF}")
        a(f"v_mul_f32 v{vLs}, v{vLs}, v{vF}")
        vG = R8 + 18; vZ = R8 + 19
        a(f"v_lshrrev_b32 v{vG}, 4, v1"); a(f"v_lshlrev_b32 v{vG}, 4, v{vG}"); a(f"v_mov_b32 v{vZ}, 0")
        a(f"s_mul_i32 s76, s{sH}, {512*NS}"); a(f"s_add_u32 s78, s76, {WS_OB}"); a(f"s_lshl_b32 s68, s{sW}, 6"); a("s_add_u32 s76, s78, s68")
        a(f"s_lshl_b32 s77, s{sH}, 7"); a(f"s_add_u32 s77, s77, {WS_MLB}")
        while pv < NK:
            a(f"s_waitcnt vmcnt({NK-1-pv+4})")
            if pv + 1 < NK: pv_and(pv + 1)
            pv_mfma(pv); pv += 1
        self.stamp(4)
        for v in range(4): a(f"v_mul_f32 v{DD+v}, v{vF}, v{DD+v}")
        a(f"s_lshl_b32 s68, s{sW}, 2"); a(f"v_mov_b32 v{tmp+4}, s68")
        self.exec_lo32()
        a(f"ds_write_b128 v{vA}, {V(DD)} offset:{L_O}")
        a("s_mov_b32 exec_lo, 1")
        a(f"ds_write_b32 v{tmp+4}, v{vLs} offset:{L_L}")
        self.exec_full()
        a("s_waitcnt lgkmcnt(0)")
        a("s_barrier")
        L = self.lab("b4"); a(f"s_cmp_eq_u32 s{sW}, 0"); a(f"s_cbranch_scc0 {L}")
        a(f"v_and_b32 v{tmp}, 31, v1"); a(f"v_lshlrev_b32 v{tmp}, 4, v{tmp}")
        G2 = VT
        for k in range(8): a(f"ds_read_b128 {V(G2+4*k)}, v{tmp} offset:{L_O+512*k}")
        a(f"ds_read_b128 {V(G2+32)}, v{vZ} offset:{L_L}")
        a(f"ds_read_b128 {V(G2+36)}, v{vZ} offset:{L_L+16}")
        a(f"s_lshl_b32 s68, s{sSub}, 9"); a("s_add_u32 s68, s68, s78")
        a(f"s_lshl_b32 s69, s{sSub}, 4"); a("s_add_u32 s69, s69, s77")
        a("s_waitcnt lgkmcnt(2)")
        self.tree_add(G2, 8)
        self.pack(G2, vTag)
        self.exec_lo32()
        if self.fast:
            a(f"s_add_u32 s70, s68, {WS_OBF - WS_OB}")
            a(f"buffer_store_dwordx4 {V(G2)}, v{tmp}, {WS}, s70 offen")
        a(f"buffer_store_dwordx4 {V(G2)}, v{tmp}, {WS}, s68 offen sc1")
        a("s_waitcnt lgkmcnt(0)")
        ML = R8 + 20
        a(f"v_pk_add_f32 {V(G2+32,2)}, {V(G2+32,2)}, {V(G2+34,2)}")
        a(f"v_pk_add_f32 {V(G2+36,2)}, {V(G2+36,2)}, {V(G2+38,2)}")
        a(f"v_pk_add_f32 {V(G2+32,2)}, {V(G2+32,2)}, {V(G2+36,2)}")
        a(f"v_mov_b32 v{ML}, v{vMc}")
        a(f"v_add_f32 v{ML+1}, v{G2+32}, v{G2+33}")
        a(f"v_mov_b32 v{ML+2}, 0"); a(f"v_mov_b32 v{ML+3}, v{vTag}")
        a("s_mov_b32 exec_lo, 1")
        if self.fast:
            a(f"s_add_u32 s70, s69, {WS_MLBF - WS_MLB}")
            a(f"buffer_store_dwordx4 {V(ML)}, v{vZ}, {WS}, s70 offen")
        a(f"buffer_store_dwordx4 {V(ML)}, v{vZ}, {WS}, s69 offen sc1")
        self.exec_full()
        a(f"{L}:")
        self.stamp(5)
        Le = self.lab("bend")
        a(f"s_cmp_lt_u32 s{sSub}, 5"); a(f"s_cbranch_scc0 {Le}")
        EG = VT + 40; ME = EG + 12; L_C = 24576
        O = U
        L = self.lab("bc"); a(f"s_cmp_eq_u32 s{sW}, 0"); a(f"s_cbranch_scc0 {L}")
        a(f"v_lshrrev_b32 v{tmp+1}, 5, v1"); a(f"v_lshlrev_b32 v{tmp+2}, 4, v{tmp+1}")
        a(f"v_lshl_add_u32 v{tmp+1}, v{tmp+1}, 9, v{tmp}")
        def gather_ob():
            for j in range(3): a(f"buffer_load_dwordx4 {V(EG+4*j)}, v{tmp+1}, {WS}, s78 offen offset:{1024*j} sc1")
            for j in range(3): a(f"buffer_load_dwordx4 {V(ME+4*j)}, v{tmp+2}, {WS}, s77 offen offset:{32*j} sc1")
        if not self.fast:
            self.poll_loop(gather_ob, [EG + 4 * j + 3 for j in range(6)], sleep=0, name="bob")
        else:
            ES = 80
            a(f"s_add_u32 s70, s78, {WS_OBF - WS_OB}"); a(f"s_add_u32 s71, s77, {WS_MLBF - WS_MLB}")
            Lp = self.lab("bfp")
            a(f"s_mov_b32 s{sCnt}, 0")
            a(f"{Lp}:")
            for j in range(3): a(f"buffer_load_dwordx4 {V(EG+4*j)}, v{tmp+1}, {WS}, s70 offen offset:{1024*j} sc1")
            for j in range(3): a(f"buffer_load_dwordx4 {V(ME+4*j)}, v{tmp+2}, {WS}, s71 offen offset:{32*j} sc1")
            for j in range(3): a(f"buffer_load_dwordx4 {V(ES+4*j)}, v{tmp+1}, {WS}, s78 offen offset:{1024*j} sc1")
            for j in range(3): a(f"buffer_load_dwordx4 {V(ES+12+4*j)}, v{tmp+2}, {WS}, s77 offen offset:{32*j} sc1")
            a("s_waitcnt vmcnt(6)")
            self.check([EG + 4 * j + 3 for j in range(6)], 6)
            a("s_cmp_eq_u64 s[6:7], 0"); a(f"s_cbranch_scc1 {Lp}_d")
            a("s_waitcnt vmcnt(0)")
            self.check([ES + 4 * j + 3 for j in range(6)], 6)
            a("s_cmp_eq_u64 s[6:7], 0"); a(f"s_cbranch_scc1 {Lp}_s")
            a(f"s_add_u32 s{sCnt}, s{sCnt}, 1"); a(f"s_cmp_lt_u32 s{sCnt}, {self.spin}"); a(f"s_cbranch_scc1 {Lp}")
            a(f"{Lp}_s:")
            for r in range(24): a(f"v_mov_b32 v{EG+r}, v{ES+r}")
            a(f"{Lp}_d:")
        self.stamp(6)
        vMx = T; vL = T + 1
        def half_allred(r, op, t):
            a(f"v_mov_b32 v{t}, v{r}"); a(f"v_permlane32_swap_b32 v{r}, v{t}"); a(f"{op} v{r}, v{r}, v{t}")
        a(f"v_max3_f32 v{vMx}, v{ME}, v{ME+4}, v{ME+8}")
        half_allred(vMx, "v_max_f32", T + 2)
        for j in range(3): self.unpack(EG + 4 * j)
        for j in range(3): a(f"v_sub_f32 v{ME+4*j}, v{ME+4*j}, v{vMx}")
        for j in range(3): a(f"v_exp_f32 v{ME+4*j}, v{ME+4*j}")
        a(f"v_mul_f32 v{vL}, v{ME}, v{ME+1}")
        for v in range(4): a(f"v_mul_f32 v{O+v}, v{ME}, v{EG+v}")
        for j in range(1, 3):
            a(f"v_fmac_f32 v{vL}, v{ME+4*j}, v{ME+4*j+1}")
            for v in range(4): a(f"v_fmac_f32 v{O+v}, v{ME+4*j}, v{EG+4*j+v}")
        for v in range(4): a(f"v_mov_b32 v{T+4+v}, v{O+v}") if False else None
        a(f"v_mov_b32 v{EG}, v{vL}")
        for v in range(4): a(f"v_mov_b32 v{EG+1+v}, v{O+v}")
        a(f"v_permlane32_swap_b32 v{vL}, v{EG}")
        for v in range(4): a(f"v_permlane32_swap_b32 v{O+v}, v{EG+1+v}")
        a(f"v_add_f32 v{vL}, v{vL}, v{EG}")
        for v in range(4): a(f"v_add_f32 v{O+v}, v{O+v}, v{EG+1+v}")
        a(f"v_rcp_f32 v{vL}, v{vL}")
        for v in range(4): a(f"v_mul_f32 v{O+v}, v{vL}, v{O+v}")
        for v in range(4): a(f"v_cvt_pk_bf16_f32 v{O+v}, v{O+v}, v{O+v}")
        self.exec_lo32()
        a(f"ds_write_b128 v{tmp}, {V(O)} offset:{L_C}")
        self.exec_full()
        a("s_waitcnt lgkmcnt(0)")
        a(f"s_branch {L}_j")
        a(f"{L}:")
        a("s_waitcnt vmcnt(0)")
        a(f"{L}_j:")
        a(f"s_lshl_b32 s68, s{sW}, 6"); a(f"v_add_u32 v{vG}, s68, v{vG}")
        a("s_barrier")
        a(f"ds_read_b128 {V(O)}, v{vG} offset:{L_C}")
        a("s_waitcnt lgkmcnt(0)")
        self.rowacc(DD, AB, M0, 4, lambda i: (O + i, None), lambda i: WO + 4 * i)
        self.exec_lo32()
        a(f"ds_write_b128 v{vA}, {V(DD)} offset:{L_Y}")
        self.exec_full()
        a("s_waitcnt lgkmcnt(0)")
        a("s_barrier")
        a(f"s_cmp_eq_u32 s{sW}, 0"); a(f"s_cbranch_scc0 {Le}")
        a(f"v_and_b32 v{tmp}, 31, v1"); a(f"v_lshlrev_b32 v{tmp}, 4, v{tmp}")
        for k in range(8): a(f"ds_read_b128 {V(G2+4*k)}, v{tmp} offset:{L_Y+512*k}")
        a(f"s_mul_i32 s68, s{sH}, 2560"); a(f"s_lshl_b32 s69, s{sSub}, 9"); a("s_add_u32 s68, s68, s69"); a(f"s_add_u32 s68, s68, {WS_YB}")
        a("s_waitcnt lgkmcnt(0)")
        self.tree_add(G2, 8)
        self.pack(G2, vTag)
        self.exec_lo32()
        a(f"buffer_store_dwordx4 {V(G2)}, v{tmp}, {WS}, s68 offen sc1")
        self.exec_full()
        a(f"{Le}:")
        self.stamp(7)
        self.finish("B")

    def role_PR(self):
        a = self.a; V = self.V; S = self.S
        vUK, vUV, M0, QF, DD, AB, T, U, vTag, vLD, tmp = 2, 3, 4, 8, 12, 16, 24, 32, 36, 37, 40
        UK, UV, CT, ML, GQ, G = 64, 128, 192, 224, 192, 48
        self.code_prefetch("L_PR", "L_Q", 254, 255, 1)
        a(f"s_add_u32 s{sH}, s6, s7")
        a(f"v_lshrrev_b32 v{tmp+2}, 4, v1"); a(f"v_and_b32 v{tmp+3}, 15, v1"); a(f"v_lshlrev_b32 v{tmp+3}, 4, v{tmp+3}")
        a(f"v_lshl_add_u32 v{vUK}, v{tmp+2}, 16, v{tmp+3}")
        a(f"v_lshl_add_u32 v{vUV}, v{tmp+2}, 17, v{tmp+3}")
        a(f"s_and_b32 s68, s{sW}, 3"); a("s_add_u32 s79, s68, s6")
        a(f"s_lshr_b32 s70, s{sW}, 2"); a("s_lshl_b32 s71, s7, 1"); a("s_add_u32 s70, s70, s71")
        a("s_lshl_b32 s73, s70, 19"); a("s_lshl_b32 s69, s79, 8"); a("s_add_u32 s73, s73, s69")
        a(f"s_lshl_b32 s74, s{sW}, 19"); a(f"s_lshl_b32 s69, s{sH}, 8"); a("s_add_u32 s74, s74, s69")
        a(f"s_mul_i32 s76, s79, {512*NS}"); a(f"s_add_u32 s76, s76, {WS_QA}")
        a("s_waitcnt lgkmcnt(0)")
        self.srd(SRD2, pWUK, 512 * 8192)
        for i in range(16):
            b, ii = i >> 3, i & 7
            if i == 8: a(f"s_add_u32 s73, s73, {8192*25}")
            elif i: a("s_add_u32 s73, s73, 8192")
            a(f"buffer_load_dwordx4 {V(UK+4*i)}, v{vUK}, {S(SRD2)}, s73 offen {self.nt}")
        self.common2()
        self.srd(SRD3, pWUV, 512 * 8192)
        self.masks(M0, 1, tmp, tmp + 1)
        a(f"v_and_b32 v{tmp}, 15, v1"); a(f"v_bfe_u32 v{tmp+1}, v1, 4, 1")
        a(f"v_lshl_add_u32 v{tmp}, v{tmp}, 1, v{tmp+1}"); a(f"v_lshlrev_b32 v{tmp}, 4, v{tmp}")
        a(f"s_lshl_b32 s68, s{sW}, 9"); a(f"v_add_u32 v{vLD}, s68, v{tmp}")
        self.tag(vTag)
        a(f"v_and_b32 v{tmp}, 31, v1"); a(f"v_lshlrev_b32 v{tmp}, 4, v{tmp}")
        def gather_q():
            for i in range(NS): a(f"buffer_load_dwordx4 {V(GQ+4*i)}, v{tmp}, {WS}, s76 offen offset:{512*i} sc1")
        a("s_waitcnt vmcnt(3)")
        self.stamp(1)
        self.poll_loop(gather_q, [GQ + 4 * i + 3 for i in range(NS)], sleep=1, name="pq")
        self.stamp(2)
        for i in range(NS): self.unpack(GQ + 4 * i)
        self.tree_add(GQ, NS)
        a(f"v_cvt_pk_bf16_f32 v{GQ}, v{GQ}, v{GQ+1}"); a(f"v_cvt_pk_bf16_f32 v{GQ+1}, v{GQ+2}, v{GQ+3}")
        a(f"s_lshl_b32 s68, s{sW}, 8"); a(f"v_lshrrev_b32 v{tmp}, 1, v{tmp}"); a(f"v_add_u32 v{tmp}, s68, v{tmp}")
        self.exec_lo32()
        a(f"ds_write_b64 v{tmp}, {V(GQ,2)} offset:8192")
        self.exec_full()
        a(f"v_and_b32 v{tmp}, 15, v1"); a(f"v_lshlrev_b32 v{tmp}, 4, v{tmp}"); a(f"v_add_u32 v{tmp}, s68, v{tmp}")
        a("s_waitcnt lgkmcnt(0)")
        a(f"ds_read_b128 {V(QF)}, v{tmp} offset:8192")
        a(f"v_lshrrev_b32 v{tmp}, 3, v1"); a(f"v_lshlrev_b32 v{tmp}, 4, v{tmp}")
        a("s_lshl_b32 s68, s79, 11"); a("s_lshl_b32 s69, s70, 8"); a("s_add_u32 s68, s68, s69"); a(f"s_add_u32 s68, s68, {WS_QABS}")
        a("s_waitcnt lgkmcnt(0)")
        self.stamp(3)
        for b in range(2):
            Ub = U if b == 0 else 48
            for r in range(4):
                for i in range(8):
                    kr = UK + 4 * (8 * b + i)
                    if r == 0: a(f"v_dot2_f32_bf16 v{T+i}, v{kr}, v{QF}, 0")
                    else: a(f"v_dot2c_f32_bf16 v{T+i}, v{kr+r}, v{QF+r}")
            for k in range(4): a(f"v_add_f32_dpp v{Ub+k}, v{T+k}, v{T+k} row_ror:8 row_mask:0xf bank_mask:0x3")
            for k in range(4): a(f"v_add_f32_dpp v{Ub+k}, v{T+k+4}, v{T+k+4} row_ror:8 row_mask:0xf bank_mask:0xc")
            for k in range(4): a(f"v_add_f32_dpp v{Ub+k}, v{Ub+k}, v{Ub+k} row_half_mirror row_mask:0xf bank_mask:0xf")
            for k in range(4): a(f"v_add_f32_dpp v{Ub+k}, v{Ub+k}, v{Ub+k} quad_perm:[2,3,0,1] row_mask:0xf bank_mask:0xf")
            for k in range(4): a(f"v_add_f32_dpp v{Ub+k}, v{Ub+k}, v{Ub+k} quad_perm:[1,0,3,2] row_mask:0xf bank_mask:0xf")
            self.pack(Ub, vTag)
            a("s_mov_b32 exec_lo, 0x01010101"); a("s_mov_b32 exec_hi, 0x01010101")
            a(f"buffer_store_dwordx4 {V(Ub)}, v{tmp}, {WS}, s68 offen offset:{128*b} sc1")
            self.exec_full()
        self.stamp(4)
        a("s_barrier")
        for i in range(16):
            if i: a("s_add_u32 s74, s74, 8192")
            a(f"buffer_load_dwordx4 {V(UV+4*i)}, v{vUV}, {S(SRD3)}, s74 offen {self.nt}")
        self.code_prefetch("L_PR_t", "L_Q", 254, 255, 1)
        a("L_PR_t:")
        MLr, CO = 208, 48
        a(f"v_lshrrev_b32 v{tmp}, 3, v1"); a(f"v_lshlrev_b32 v{tmp+2}, 4, v{tmp}")
        a(f"v_and_b32 v{tmp+1}, 7, v1"); a(f"v_lshlrev_b32 v{tmp+1}, 4, v{tmp+1}"); a(f"v_lshl_add_u32 v{tmp+3}, v{tmp}, 10, v{tmp+1}")
        a(f"s_lshl_b32 s76, s{sH}, 9"); a(f"s_add_u32 s76, s76, {WS_ML}")
        a(f"s_lshl_b32 s78, s{sH}, 15"); a(f"s_lshl_b32 s68, s{sW}, 7"); a("s_add_u32 s78, s78, s68"); a(f"s_add_u32 s78, s78, {WS_CTX}")
        def gather_ml():
            for i in range(4): a(f"buffer_load_dwordx4 {V(MLr+4*i)}, v{tmp+2}, {WS}, s76 offen offset:{128*i} sc1")
        self.poll_loop(gather_ml, [MLr + 4 * i + 3 for i in range(4)], sleep=2, name="pml")
        self.stamp(5)
        for i in range(4):
            if i: a("s_add_u32 s78, s78, 8192")
            a(f"buffer_load_dwordx4 {V(CT+4*i)}, v{tmp+3}, {WS}, s78 offen sc1")
        vM, vL = T, T + 1
        a(f"v_max3_f32 v{vM}, v{MLr}, v{MLr+4}, v{MLr+8}"); a(f"v_max_f32 v{vM}, v{vM}, v{MLr+12}")
        def allred(r, op, t):
            a(f"{op}_dpp v{r}, v{r}, v{r} row_ror:8 row_mask:0xf bank_mask:0xf")
            a(f"v_mov_b32 v{t}, v{r}"); a(f"v_permlane16_swap_b32 v{r}, v{t}"); a(f"{op} v{r}, v{r}, v{t}")
            a(f"v_mov_b32 v{t}, v{r}"); a(f"v_permlane32_swap_b32 v{r}, v{t}"); a(f"{op} v{r}, v{r}, v{t}")
        allred(vM, "v_max_f32", T + 2)
        for i in range(4): a(f"v_sub_f32 v{MLr+4*i}, v{MLr+4*i}, v{vM}")
        for i in range(4): a(f"v_exp_f32 v{MLr+4*i}, v{MLr+4*i}")
        a(f"v_mul_f32 v{vL}, v{MLr}, v{MLr+1}")
        for i in range(1, 4): a(f"v_fmac_f32 v{vL}, v{MLr+4*i}, v{MLr+4*i+1}")
        allred(vL, "v_add_f32", T + 2)
        a(f"v_rcp_f32 v{vL}, v{vL}")
        for i in range(4): a(f"v_mul_f32 v{MLr+4*i}, v{vL}, v{MLr+4*i}")
        for i in range(4): a(f"v_cvt_pk_bf16_f32 v{MLr+4*i}, v{MLr+4*i}, v{MLr+4*i}")
        a(f"v_and_b32 v{tmp}, 7, v1"); a(f"v_bfe_u32 v{tmp+1}, v1, 4, 1"); a(f"v_lshl_add_u32 v{tmp}, v{tmp}, 1, v{tmp+1}"); a(f"v_lshlrev_b32 v{tmp}, 4, v{tmp}")
        a(f"s_lshl_b32 s68, s{sW}, 8"); a(f"v_add_u32 v{tmp}, s68, v{tmp}")
        a(f"v_lshrrev_b32 v{tmp+1}, 4, v1"); a(f"v_lshlrev_b32 v{tmp+1}, 6, v{tmp+1}"); a(f"v_add_u32 v{tmp+1}, s68, v{tmp+1}")
        a("s_waitcnt vmcnt(0)")
        self.stamp(6)
        self.rowacc(DD, AB, M0, 4, lambda i: (MLr + 4 * i, None), lambda i: CT + 4 * i)
        for v in range(4): a(f"v_mov_b32 v{T+v}, v{DD+v}")
        for v in range(4): a(f"v_permlane32_swap_b32 v{DD+v}, v{T+v}")
        for v in range(4): a(f"v_add_f32_dpp v{DD+v}, v{T+v}, v{DD+v} row_shl:8 row_mask:0xf bank_mask:0x3")
        for v in range(4): a(f"v_cvt_pk_bf16_f32 v{DD+v}, v{DD+v}, v{DD+v}")
        a("s_mov_b32 exec_lo, 0x00ff00ff"); a("s_mov_b32 exec_hi, 0")
        a(f"ds_write_b128 v{tmp}, {V(DD)} offset:8192")
        self.exec_full()
        a("s_waitcnt lgkmcnt(0)")
        for k in range(4): a(f"ds_read_b128 {V(CO+4*k)}, v{tmp+1} offset:{8192+16*k}")
        a("s_waitcnt lgkmcnt(0)")
        self.rowacc(DD, AB, M0, 16, lambda i: (CO + i, None), lambda i: UV + 4 * i)
        self.exec_lo32()
        a(f"ds_write_b128 v{vLD}, {V(DD)}")
        self.exec_full()
        a("s_waitcnt lgkmcnt(0)")
        a("s_barrier")
        L = self.lab("p4"); a(f"s_cmp_eq_u32 s{sW}, 0"); a(f"s_cbranch_scc0 {L}")
        a(f"v_and_b32 v{tmp}, 31, v1"); a(f"v_lshlrev_b32 v{tmp}, 4, v{tmp}")
        for k in range(8): a(f"ds_read_b128 {V(CT+4*k)}, v{tmp} offset:{512*k}")
        a(f"s_lshl_b32 s68, s{sH}, 9"); a(f"s_add_u32 s68, s68, {WS_CTXF}")
        a("s_waitcnt lgkmcnt(0)")
        self.tree_add(CT, 8)
        self.pack(CT, vTag)
        self.exec_lo32()
        a(f"buffer_store_dwordx4 {V(CT)}, v{tmp}, {WS}, s68 offen sc1")
        self.exec_full()
        a(f"{L}:")
        self.stamp(7)
        Le = self.lab("pend"); LB = self.lab("pfb")
        a(f"s_lshl_b32 s79, s{sH}, 3"); a(f"s_add_u32 s79, s79, s{sW}")
        a(f"v_and_b32 v{tmp}, 31, v1"); a("s_movk_i32 s68, 2560"); a(f"v_mul_u32_u24 v{tmp}, s68, v{tmp}")
        a(f"v_lshrrev_b32 v{tmp+1}, 5, v1"); a(f"v_lshl_add_u32 v{tmp}, v{tmp+1}, 4, v{tmp}")
        a(f"v_lshlrev_b32 v{tmp+1}, 3, v{tmp+1}"); a(f"v_mov_b32 v{tmp+2}, 0")
        a("s_cmp_lt_u32 s79, 160"); a(f"s_cbranch_scc0 {Le}")
        a("s_cmp_lt_u32 s79, 80"); a(f"s_cbranch_scc0 {LB}")
        regs = [G + v for v in range(4)]
        def final(br):
            a(f"s_lshl_b32 s76, s79, 5"); a(f"s_add_u32 s76, s76, {WS_YB if br else WS_YA}")
            a("s_lshl_b32 s78, s79, 4")
            if br:
                a("s_add_u32 s78, s78, 1280")
                a("s_and_b32 s68, s79, 31"); a("s_lshl_b32 s68, s68, 7"); a(f"s_add_u32 s77, s68, {WS_MLB}")
                def gather_ind(): a(f"buffer_load_dwordx4 {V(G)}, v{tmp+2}, {WS}, s77 offen sc1")
                self.poll_loop(gather_ind, [G + 3], sleep=4, name="pind")
            def gather_y(): a(f"buffer_load_dwordx4 {V(G)}, v{tmp}, {WS}, s76 offen sc1")
            self.poll_loop(gather_y, [G + 3], sleep=(0 if br else 2), name="py")
            self.unpack(G)
            self.row_allreduce(regs, "v_add_f32")
            for r in regs: a(f"v_add_f32_dpp v{r}, v{r}, v{r} row_bcast:15 row_mask:0xa bank_mask:0xf")
            a(f"v_cvt_pk_bf16_f32 v{G}, v{G}, v{G+1}"); a(f"v_cvt_pk_bf16_f32 v{G+1}, v{G+2}, v{G+3}")
            a("s_mov_b32 exec_lo, 0x80000000"); a("s_mov_b32 exec_hi, 0x80000000")
            a(f"buffer_store_dwordx2 {V(G,2)}, v{tmp+1}, {OUT}, s78 offen")
            self.exec_full()
            self.stamp(1 + br)
        final(0)
        a("s_cmp_eq_u32 s79, 0"); a(f"s_cbranch_scc0 {Le}")
        a(f"s_add_u32 s68, s{sEpoch}, 1"); a(f"v_mov_b32 v{tmp}, s68")
        a("s_mov_b64 exec, 1")
        a(f"buffer_store_dword v{tmp}, v{tmp+2}, {WS}, 0 offen")
        self.exec_full()
        a(f"s_branch {Le}")
        a(f"{LB}:")
        a("s_sub_u32 s79, s79, 80")
        final(1)
        a(f"{Le}:")
        self.finish("PR")

    def role_Q(self):
        a = self.a; V = self.V; S = self.S
        vL16, M0, Z, DS, AB, G, vTag = 2, 4, 8, 16, 24, 32, 3
        SA, PA = 64, 192
        tmp = 12
        t2 = 24
        a("; ---------------- role Q ----------------")
        self.code_prefetch("L_Q", "L_end", 14, 32, 1)
        a(f"s_sub_u32 s7, s7, 4"); a(f"s_add_u32 s{sH}, s6, s7")
        a(f"v_lshlrev_b32 v{vL16}, 4, v1")
        a(f"s_lshl_b32 s72, s{sH}, 17"); a(f"s_lshl_b32 s68, s{sW}, 14"); a("s_add_u32 s72, s72, s68")
        a(f"s_lshl_b32 s73, s{sW}, 14")
        a("s_waitcnt lgkmcnt(0)")
        self.srd(SRD1, pCKV, 4096 * 1024)
        for r in range(16):
            f = (r & 8) | ((r & 3) << 1)
            a(f"v_xor_b32 v{tmp + (r & 1)}, {16*f}, v{vL16}")
            a(f"s_add_u32 m0, s73, {1024*r}")
            a(f"s_add_u32 s74, s72, {1024*r}")
            a(f"buffer_load_dwordx4 v{tmp + (r & 1)}, {S(SRD1)}, s74 offen {self.nt} lds")
        self.common2()
        self.srd(SRD2, pWOA, 4096 * 1280)
        self.masks(M0, 1, tmp, tmp + 1)
        a(f"v_and_b32 v{tmp}, 3, v1"); a(f"v_lshlrev_b32 v{tmp}, 1, v{tmp}"); a(f"v_and_b32 v{tmp+1}, 8, v1"); a(f"v_or_b32 v{tmp}, v{tmp}, v{tmp+1}")
        a(f"v_lshrrev_b32 v{tmp+1}, 4, v1"); a(f"v_xor_b32 v{tmp}, v{tmp}, v{tmp+1}"); a(f"v_lshlrev_b32 v{tmp}, 4, v{tmp}")
        for m in range(4): a(f"v_xor_b32 v{Z+m}, {64*m}, v{tmp}")
        a(f"v_and_b32 v{tmp+2}, 15, v1")
        a(f"s_and_b32 s68, s{sW}, 3"); a("s_lshl_b32 s68, s68, 15"); a(f"v_lshl_add_u32 v{tmp+3}, v{tmp+2}, 10, s68")
        for m in range(4): a(f"v_add_u32 v{t2+m}, v{tmp+3}, v{Z+m}")
        a(f"v_bfe_u32 v{tmp}, v1, 2, 2")
        a(f"v_bfe_u32 v{tmp+1}, v1, 4, 1"); a(f"v_lshlrev_b32 v{tmp+1}, 3, v{tmp+1}"); a(f"v_lshl_or_b32 v{tmp+1}, v{tmp}, 1, v{tmp+1}")
        a(f"v_bfe_u32 v{tmp+3}, v1, 1, 1"); a(f"v_xor_b32 v{tmp+1}, v{tmp+1}, v{tmp+3}")
        a(f"s_and_b32 s68, s{sW}, 1"); a("s_lshl_b32 s68, s68, 3"); a(f"v_xor_b32 v{tmp+1}, s68, v{tmp+1}")
        a(f"v_lshrrev_b32 v{tmp+3}, 4, v1"); a(f"v_lshl_add_u32 v{tmp}, v{tmp+3}, 3, v{tmp}")
        a(f"v_lshlrev_b32 v{tmp}, 10, v{tmp}"); a(f"v_and_b32 v{tmp+3}, 1, v1"); a(f"v_lshl_add_u32 v{tmp}, v{tmp+3}, 3, v{tmp}")
        a(f"s_lshr_b32 s68, s{sW}, 1"); a("s_lshl_b32 s68, s68, 8"); a(f"v_add_u32 v{tmp}, s68, v{tmp}")
        for ct in range(4):
            a(f"v_xor_b32 v{t2+4+ct}, {2*ct}, v{tmp+1}"); a(f"v_lshl_add_u32 v{t2+4+ct}, v{t2+4+ct}, 4, v{tmp}")
        a("s_waitcnt vmcnt(0)")
        self.tag(vTag)
        a("s_barrier")
        self.stamp(1)
        for kt in range(2):
            for ks in range(16):
                a(f"ds_read_b128 {V(SA+64*kt+4*ks)}, v{t2+(ks&3)} offset:{256*(ks>>2)+16384*kt}")
            a("s_waitcnt lgkmcnt(8)")
        for half in range(2):
            for ct in range(4):
                for kk in range(2):
                    for hh in range(2):
                        r = PA + 16 * ct + 4 * (2 * half + kk) + 2 * hh
                        a(f"ds_read_b64_tr_b16 {V(r,2)}, v{t2+4+ct} offset:{(32*kk+4*hh)*1024}")
                a("s_waitcnt lgkmcnt(8)")
            if half == 0:
                for ct in range(4): a(f"v_add_u32 v{t2+4+ct}, 0x10000, v{t2+4+ct}")
        a("s_waitcnt lgkmcnt(0)")
        a("s_barrier")
        self.stamp(2)
        WL = 98304
        NL = self.NL
        vWO = 62
        a(f"v_lshrrev_b32 v{vWO}, 4, v1"); a("s_movk_i32 s68, 5120"); a(f"v_mul_u32_u24 v{vWO}, s68, v{vWO}"); a(f"v_lshl_add_u32 v{vWO}, v{tmp+2}, 4, v{vWO}")
        a(f"s_lshl_b32 s68, s{sH}, 3"); a(f"s_add_u32 s68, s68, s{sW}"); a(f"s_mul_i32 s72, s68, {16*1280}")
        a(f"s_lshl_b32 s73, s{sW}, 13"); a(f"s_add_u32 s73, s73, {WL}")
        for n in range(NL):
            rg, cb = divmod(n, 5)
            a(f"s_add_u32 m0, s73, {1024*n}")
            a(f"s_add_u32 s74, s72, {1280*rg + 256*cb}")
            a(f"buffer_load_dwordx4 v{vWO}, {S(SRD2)}, s74 offen {self.nt} lds")
        self.code_prefetch("L_Q_t", "L_end", 14 + 1, 63, 1)
        a("L_Q_t:")
        a(f"s_lshl_b32 s76, s{sW}, 13"); a(f"s_add_u32 s76, s76, {WS_QABS}"); a("s_add_u32 s77, s76, 4096")
        a(f"v_mov_b32 v{tmp}, 0")
        def gather_ind(): a(f"buffer_load_dwordx4 {V(G)}, v{tmp}, {WS}, s76 offen sc1")
        self.poll_loop(gather_ind, [G + 3], sleep=2, name="qind")
        def gather_qabs():
            for i in range(8):
                a(f"buffer_load_dwordx4 {V(G+4*i)}, v{vL16}, {WS}, s{76 if i < 4 else 77} offen offset:{1024*(i&3)} sc1")
        self.poll_loop(gather_qabs, [G + 4 * i + 3 for i in range(8)], sleep=0, name="qabs")
        self.stamp(3)
        a(f"s_bfe_u32 s68, s{sW}, 0x10001"); a("s_lshl_b32 s68, s68, 7"); a(f"v_lshlrev_b32 v{tmp}, 3, v1"); a(f"v_xor_b32 v{tmp}, s68, v{tmp}")
        a(f"s_lshl_b32 s68, s{sW}, 12")
        for ii in range(4):
            a(f"v_xor_b32 v{t2+ii}, {32*ii}, v{tmp}"); a(f"v_add_u32 v{t2+ii}, s68, v{t2+ii}")
        for i in range(8):
            r = G + 4 * i
            self.unpack(r)
            a(f"v_cvt_pk_bf16_f32 v{r}, v{r}, v{r+1}"); a(f"v_cvt_pk_bf16_f32 v{r+1}, v{r+2}, v{r+3}")
            a(f"ds_write_b64 v{t2+(i>>1)}, {V(r,2)} offset:{1024*(i>>1)+512*(i&1)}")
        a(f"s_lshr_b32 s68, s{sW}, 2"); a("s_lshl_b32 s68, s68, 14"); a(f"v_lshl_add_u32 v{tmp+3}, v{tmp+2}, 10, s68")
        for m in range(4): a(f"v_add_u32 v{t2+4+m}, v{tmp+3}, v{Z+m}")
        a("s_waitcnt lgkmcnt(0)")
        a("s_barrier")
        for ks in range(8): a(f"ds_read_b128 {V(G+4*ks)}, v{t2+4+(ks&3)} offset:{256*(ks>>2)}")
        for ks in range(16):
            a(f"s_waitcnt lgkmcnt({min(7, 15-ks)})")
            for kt in range(2):
                a(f"v_mfma_f32_16x16x32_bf16 {V(DS+4*kt)}, {V(SA+64*kt+4*ks)}, {V(G+4*(ks&7))}, {'0' if ks == 0 else V(DS+4*kt)}")
            if ks < 8:
                k2 = ks + 8
                a(f"ds_read_b128 {V(G+4*ks)}, v{t2+4+(k2&3)} offset:{256*(k2>>2)}")
        WO, YD = 96, 176
        def wo_load(n):
            rg, cb = divmod(n, 5)
            a(f"s_add_u32 s73, s72, {1280*rg}")
            a(f"buffer_load_dwordx4 {V(WO+4*n)}, v{vWO}, {S(SRD2)}, s73 offen offset:{256*cb} {self.nt}")
        vM = tmp; SM, SS, PO = 32768, 33280, 36864
        a(f"v_max3_f32 v{vM}, v{DS}, v{DS+1}, v{DS+2}"); a(f"v_max3_f32 v{vM}, v{vM}, v{DS+3}, v{DS+4}")
        a(f"v_max3_f32 v{vM}, v{vM}, v{DS+5}, v{DS+6}"); a(f"v_max_f32 v{vM}, v{vM}, v{DS+7}")
        def allrows(r, op, t):
            a(f"v_mov_b32 v{t}, v{r}"); a(f"v_permlane16_swap_b32 v{r}, v{t}"); a(f"{op} v{r}, v{r}, v{t}")
            a(f"v_mov_b32 v{t}, v{r}"); a(f"v_permlane32_swap_b32 v{r}, v{t}"); a(f"{op} v{r}, v{r}, v{t}")
        allrows(vM, "v_max_f32", tmp + 1)
        a(f"s_lshr_b32 s68, s{sW}, 2"); a("s_lshl_b32 s68, s68, 8"); a(f"v_lshl_add_u32 v{t2}, v{tmp+2}, 4, s68")
        a(f"s_and_b32 s69, s{sW}, 3"); a("s_lshl_b32 s69, s69, 2"); a(f"v_add_u32 v{t2+1}, s69, v{t2}")
        a("s_mov_b32 exec_hi, 0"); a("s_mov_b32 exec_lo, 0xffff")
        a(f"ds_write_b32 v{t2+1}, v{vM} offset:{SM}")
        self.exec_full()
        a("s_waitcnt lgkmcnt(0)")
        a("s_barrier")
        a(f"ds_read_b128 {V(G)}, v{t2} offset:{SM}")
        a(f"v_and_b32 v{t2+2}, 3, v1"); a(f"v_lshlrev_b32 v{t2+2}, 1, v{t2+2}"); a(f"v_and_b32 v{t2+3}, 8, v1"); a(f"v_or_b32 v{t2+2}, v{t2+2}, v{t2+3}")
        a(f"v_lshrrev_b32 v{t2+3}, 5, v1"); a(f"v_xor_b32 v{t2+2}, v{t2+2}, v{t2+3}")
        a(f"s_and_b32 s69, s{sW}, 3"); a("s_lshl_b32 s69, s69, 2"); a(f"v_xor_b32 v{t2+2}, s69, v{t2+2}")
        a(f"v_bfe_u32 v{t2+3}, v1, 4, 1"); a(f"v_lshlrev_b32 v{t2+3}, 3, v{t2+3}")
        a(f"v_lshl_add_u32 v{t2+3}, v{tmp+2}, 8, v{t2+3}"); a("s_lshl_b32 s68, s68, 4"); a(f"v_add_u32 v{t2+3}, s68, v{t2+3}")
        a(f"v_lshl_add_u32 v{t2+4}, v{t2+2}, 4, v{t2+3}")
        a(f"v_xor_b32 v{t2+2}, 2, v{t2+2}"); a(f"v_lshl_add_u32 v{t2+5}, v{t2+2}, 4, v{t2+3}")
        a("s_waitcnt lgkmcnt(0)")
        a(f"v_max3_f32 v{vM}, v{G}, v{G+1}, v{G+2}"); a(f"v_max_f32 v{vM}, v{vM}, v{G+3}")
        a(f"v_mul_f32 v{vM}, s{sC1}, v{vM}")
        for k in range(8): a(f"v_fma_f32 v{DS+k}, v{DS+k}, s{sC1}, -v{vM}")
        for k in range(8): a(f"v_exp_f32 v{DS+k}, v{DS+k}")
        vS = tmp + 3
        a(f"v_add_f32 v{vS}, v{DS}, v{DS+1}")
        for k in range(2, 8): a(f"v_add_f32 v{vS}, v{vS}, v{DS+k}")
        for kt in range(2):
            a(f"v_cvt_pk_bf16_f32 v{DS+4*kt}, v{DS+4*kt}, v{DS+4*kt+1}"); a(f"v_cvt_pk_bf16_f32 v{DS+4*kt+1}, v{DS+4*kt+2}, v{DS+4*kt+3}")
            a(f"ds_write_b64 v{t2+4+kt}, {V(DS+4*kt,2)} offset:{PO}")
        allrows(vS, "v_add_f32", tmp + 1)
        a("s_mov_b32 exec_hi, 0"); a("s_mov_b32 exec_lo, 0xffff")
        a(f"ds_write_b32 v{t2+1}, v{vS} offset:{SS}")
        self.exec_full()
        a("s_waitcnt lgkmcnt(0)")
        a("s_barrier")
        self.stamp(4)
        a(f"v_lshlrev_b32 v{tmp+3}, 8, v{tmp+2}")
        for kk in range(4): a(f"v_add_u32 v{t2+kk}, v{tmp+3}, v{Z+kk}")
        for ht in range(2):
            for kk in range(4): a(f"ds_read_b128 {V(G+16*ht+4*kk)}, v{t2+kk} offset:{PO+4096*ht}")
        PD = SA
        for ht in range(2):
            a(f"s_waitcnt lgkmcnt({4 if ht == 0 else 0})")
            for kk in range(4):
                for ct in range(4):
                    d = PD + 16 * ht + 4 * ct
                    a(f"v_mfma_f32_16x16x32_bf16 {V(d)}, {V(PA+16*ct+4*kk)}, {V(G+16*ht+4*kk)}, {'0' if kk == 0 else V(d)}")
        TO = 65536
        a(f"v_lshrrev_b32 v{t2}, 4, v1")
        a(f"v_and_b32 v{t2+1}, 7, v1"); a(f"v_lshlrev_b32 v{t2+1}, 1, v{t2+1}"); a(f"v_xor_b32 v{t2+1}, v{t2+1}, v{t2}")
        a(f"s_lshl_b32 s68, s{sW}, 12"); a(f"s_add_u32 s68, s68, {TO}")
        a(f"v_lshl_add_u32 v{t2+2}, v{tmp+2}, 7, s68")
        for ct in range(4):
            a(f"v_xor_b32 v{t2+4+ct}, {4*ct}, v{t2+1}"); a(f"v_lshl_add_u32 v{t2+4+ct}, v{t2+4+ct}, 3, v{t2+2}")
        for ht in range(2):
            for ct in range(4):
                d = PD + 16 * ht + 4 * ct
                a(f"v_cvt_pk_bf16_f32 v{d}, v{d}, v{d+1}"); a(f"v_cvt_pk_bf16_f32 v{d+1}, v{d+2}, v{d+3}")
                a(f"ds_write_b64 v{t2+4+ct}, {V(d,2)} offset:{2048*ht}")
        a(f"v_lshrrev_b32 v{t2}, 3, v1"); a(f"v_and_b32 v{t2+1}, 7, v1")
        a(f"v_xor_b32 v{t2+2}, v{t2}, v{t2+1}"); a(f"v_lshlrev_b32 v{t2+2}, 4, v{t2+2}"); a(f"v_lshl_add_u32 v{t2+2}, v{t2}, 7, v{t2+2}"); a(f"v_add_u32 v{t2+2}, s68, v{t2+2}")
        a(f"v_lshlrev_b32 v{t2+1}, 4, v{t2+1}"); a(f"v_lshl_add_u32 v{t2+1}, v{t2}, 15, v{t2+1}")
        a(f"s_lshl_b32 s76, s{sH}, 10"); a(f"s_lshl_b32 s69, s{sW}, 7"); a("s_add_u32 s76, s76, s69"); a(f"s_add_u32 s76, s76, {WS_CTX}")
        a("s_waitcnt lgkmcnt(0)")
        for i in range(4): a(f"ds_read_b128 {V(G+4*i)}, v{t2+2} offset:{1024*i}")
        for i in range(4):
            a(f"s_waitcnt lgkmcnt({3-i})")
            a(f"buffer_store_dwordx4 {V(G+4*i)}, v{t2+1}, {WS}, s76 offen sc1")
            if i < 3: a("s_add_u32 s76, s76, 0x40000")
        if self.exp == 1: self.stamp(6)
        a("s_waitcnt vmcnt(0)")
        if self.exp == 1: self.stamp(7)
        a("s_barrier")
        L = self.lab("q1"); a(f"s_cmp_eq_u32 s{sW}, 0"); a(f"s_cbranch_scc0 {L}")
        a(f"v_and_b32 v{tmp}, 31, v1"); a(f"v_lshlrev_b32 v{tmp+1}, 4, v{tmp}")
        a(f"ds_read_b128 {V(PA)}, v{tmp+1} offset:{SM}"); a(f"ds_read_b128 {V(PA+4)}, v{tmp+1} offset:{SS}")
        a(f"v_lshlrev_b32 v{tmp}, 9, v{tmp}"); a(f"s_lshl_b32 s68, s{sH}, 4"); a(f"s_add_u32 s68, s68, {WS_ML}")
        a("s_waitcnt lgkmcnt(0)")
        a(f"v_max3_f32 v{PA}, v{PA}, v{PA+1}, v{PA+2}"); a(f"v_max_f32 v{PA}, v{PA}, v{PA+3}"); a(f"v_mul_f32 v{PA}, s{sC1}, v{PA}")
        a(f"v_pk_add_f32 {V(PA+4,2)}, {V(PA+4,2)}, {V(PA+6,2)}"); a(f"v_add_f32 v{PA+1}, v{PA+4}, v{PA+5}")
        a(f"v_mov_b32 v{PA+2}, 0"); a(f"v_mov_b32 v{PA+3}, v{vTag}")
        self.exec_lo32()
        a(f"buffer_store_dwordx4 {V(PA)}, v{tmp}, {WS}, s68 offen sc1")
        self.exec_full()
        a(f"{L}:")
        a("s_barrier")
        self.stamp(5)
        a(f"v_lshrrev_b32 v{vWO}, 4, v1"); a("s_movk_i32 s68, 5120"); a(f"v_mul_u32_u24 v{vWO}, s68, v{vWO}"); a(f"v_lshl_add_u32 v{vWO}, v{tmp+2}, 4, v{vWO}")
        for n in range(NL, 20): wo_load(n)
        if NL:
            a(f"s_lshl_b32 s68, s{sW}, 13"); a(f"s_add_u32 s68, s68, {WL}"); a(f"v_add_u32 v{vWO+1}, s68, v{vL16}")
            for n in range(NL): a(f"ds_read_b128 {V(WO+4*n)}, v{vWO+1} offset:{1024*n}")
        a(f"v_lshrrev_b32 v{tmp}, 4, v1"); a(f"v_lshlrev_b32 v{tmp}, 4, v{tmp}")
        a(f"s_lshl_b32 s76, s{sH}, 9"); a(f"s_lshl_b32 s68, s{sW}, 6"); a("s_add_u32 s76, s76, s68"); a(f"s_add_u32 s76, s76, {WS_CTXF}")
        O = G
        def gather_cf(): a(f"buffer_load_dwordx4 {V(O)}, v{tmp}, {WS}, s76 offen sc1")
        self.poll_loop(gather_cf, [O + 3], sleep=2, name="qcf")
        a("s_waitcnt lgkmcnt(0)")
        if self.exp != 1: self.stamp(6)
        self.unpack(O)
        for v in range(4): a(f"v_cvt_pk_bf16_f32 v{O+v}, v{O+v}, v{O+v}")
        def ands(rg):
            ab = AB + 4 * (rg & 1)
            for t in range(4): a(f"v_and_b32 v{ab+t}, v{O+rg}, v{M0+t}")
        ands(0)
        for rg in range(4):
            if rg + 1 < 4: ands(rg + 1)
            ab = AB + 4 * (rg & 1)
            for cb in range(5):
                a(f"v_mfma_f32_16x16x32_bf16 {V(YD+4*cb)}, {V(ab)}, {V(WO+4*(5*rg+cb))}, {'0' if rg == 0 else V(YD+4*cb)}")
        YO = 45056
        a(f"v_and_b32 v{tmp}, 15, v1"); a(f"v_bfe_u32 v{tmp+1}, v1, 4, 1"); a(f"v_lshl_add_u32 v{tmp}, v{tmp}, 1, v{tmp+1}"); a(f"v_lshlrev_b32 v{tmp}, 4, v{tmp}")
        a(f"s_mul_i32 s68, s{sW}, 2560"); a(f"v_add_u32 v{tmp}, s68, v{tmp}")
        self.exec_lo32()
        for cb in range(5): a(f"ds_write_b128 v{tmp}, {V(YD+4*cb)} offset:{YO+512*cb}")
        self.exec_full()
        a("s_waitcnt lgkmcnt(0)")
        a("s_barrier")
        Le = self.lab("qend")
        a(f"v_lshlrev_b32 v{tmp}, 4, v0")
        a(f"s_cmp_lt_u32 s{sW}, 3"); a(f"s_cbranch_scc0 {Le}")
        for k in range(8): a(f"ds_read_b128 {V(G+4*k)}, v{tmp} offset:{YO+2560*k}")
        a(f"s_mul_i32 s68, s{sH}, 2560"); a(f"s_add_u32 s68, s68, {WS_YA}")
        a("v_cmp_gt_u32 vcc, 160, v0")
        a("s_waitcnt lgkmcnt(0)")
        self.tree_add(G, 8)
        self.pack(G, vTag)
        a("s_and_b64 exec, exec, vcc")
        a(f"buffer_store_dwordx4 {V(G)}, v{tmp}, {WS}, s68 offen sc1")
        self.exec_full()
        a(f"{Le}:")
        if self.exp != 1: self.stamp(7)
        self.finish("Q")

if __name__ == "__main__":
    import argparse
    ap = argparse.ArgumentParser()
    ap.add_argument("-o", default="k.s"); ap.add_argument("--prof", action="store_true"); ap.add_argument("--dbgst", action="store_true")
    ap.add_argument("--roles", default="BPQ"); ap.add_argument("--spin", type=int, default=20000); ap.add_argument("--nt", default="nt")
    for k, d in dict(D=5, D0=2, Ds=5, ns=0, Dv=5, pf=1, bar=3, n1=10, prioA=1, light=1, exp=0, NE=5, NL=5, rot=0, pf2=1, fast=0, bmap=0).items(): ap.add_argument("--" + k, type=int, default=d)
    args = ap.parse_args()
    g = Gen3(prof=args.prof, D=args.D, spin=args.spin, roles=args.roles, nt=args.nt, dbgst=args.dbgst, D0=args.D0, Ds=args.Ds, ns=args.ns, Dv=args.Dv, pf=args.pf, bar=args.bar, n1=args.n1)
    g.prioA = args.prioA; g.light = args.light; g.exp = args.exp; g.NE = args.NE; g.NL = args.NL; g.rot = args.rot; g.pf2 = args.pf2; g.fast = args.fast; g.bmap = args.bmap; g.lds = 163840 if args.NL else 131072
    open(args.o, "w").write(g.build())
    sys.path.insert(0, "exp"); import build
    print(build.build(args.o))
```

```python
import sys
import gen as G0
from gen import (Gen, f2u, C1, NEG, KN, sW, sH, sSub, WS, OUT, pAX, pCKV, pWQA, pWUK, pWUV, pWOA, pBX, pK, pV, pWQB, pWOB, pOUT, pDBG, pWS,
                 SRD1, SRD2, SRD3, SRD4, sEpoch, sTag, sP0, sP1, sP2, sU, sLo, sHi, sC1, sCnt, sBias, sProf)

WS_QB   = 0x01000
WS_QA   = 0x1A000
WS_OB   = 0x33000
WS_MLB  = 0x4C000
WS_ML   = 0x50000
WS_CTXF = 0x54000
WS_QABS = 0x60000
WS_YA   = 0x70000
WS_YB   = 0x88000
WS_OBF  = 0xA0000
WS_MLBF = 0xB9000
WS_PROF = 0xC0000
WS_CTX  = 0x100000
G0.WS_PROF = WS_PROF
NS = 6

class Gen3(Gen):
    prioA = 1; light = 1; exp = 0; NE = 5; NL = 5; rot = 0; fast = 0; bmap = 0; N1 = 4
    def prologue(self):
        a = self.a
        a("s_cmp_ge_u32 s2, 256"); a("s_cbranch_scc1 L_end")
        a("s_load_dwordx4 s[40:43], s[0:1], 96")
        a("s_load_dwordx16 s[16:31], s[0:1], 0")
        a("s_load_dwordx8 s[32:39], s[0:1], 64")
        self.stamp(0)
        if self.prof: a("s_mov_b32 s100, 0")
        a("v_lshrrev_b32 v2, 6, v0")
        a("v_and_b32 v1, 63, v0")
        a(f"v_readfirstlane_b32 s{sW}, v2")
        a("s_and_b32 s6, s2, 7")
        a("s_lshr_b32 s7, s2, 3")
        a(f"s_mov_b32 s{sP0}, 0x07060501"); a(f"s_mov_b32 s{sP1}, 0x07060502"); a(f"s_mov_b32 s{sP2}, 0x07060503")
        a(f"s_mov_b32 s{sU}, 0x0c04000c"); a(f"s_mov_b32 s{sLo}, 0x01000100"); a(f"s_mov_b32 s{sHi}, 0x03020302")
        a(f"s_mov_b32 s{sC1}, {f2u(C1):#x}")
        a("s_lshl_b32 s6, s6, 2")
        a("s_cmp_lt_u32 s7, 4"); a("s_cbranch_scc1 L_PR")
        a("s_cmp_lt_u32 s7, 8"); a("s_cbranch_scc1 L_Q")

    def role_B(self):
        a = self.a; D = self.D; V = self.V; S = self.S
        vL16, vLast, M0, QF, DD, AB, T, T0, T1, U, vTag, vA, vB = 2, 3, 4, 8, 12, 16, 24, 28, 29, 30, 37, 38, 39
        NK = 22; NG = 6
        KT, VT = 40, 128
        WA, WB, X, G = 128, 144, 160, 164
        DA = 24
        tmp = 248; vOne = 216
        L_PB, L_Q, L_O, L_M, L_L, L_F, L_PA, L_Y = 0, 4096, 8192, 12288, 12416, 12544, 16384, 20480
        a("; ---------------- role B ----------------")
        a("L_B:")
        self.code_prefetch("L_B", "L_PR", 254, 255, 1)
        if self.bmap == 0:
            a("s_sub_u32 s7, s7, 8")
            a("s_mul_i32 s68, s7, 43"); a("s_lshr_b32 s68, s68, 8")
            a(f"s_add_u32 s{sH}, s6, s68")
            a("s_mul_i32 s68, s68, 6"); a(f"s_sub_u32 s{sSub}, s7, s68")
        elif self.bmap == 1:
            a("s_sub_u32 s7, s2, 64")
            a(f"s_mul_i32 s{sH}, s7, 10923"); a(f"s_lshr_b32 s{sH}, s{sH}, 16")
            a(f"s_mul_i32 s68, s{sH}, 6"); a(f"s_sub_u32 s{sSub}, s7, s68")
        else:
            a("s_sub_u32 s7, s2, 64")
            a(f"s_and_b32 s{sH}, s7, 31"); a(f"s_lshr_b32 s{sSub}, s7, 5")
        a(f"v_lshlrev_b32 v{vL16}, 4, v1")
        a(f"v_lshrrev_b32 v{tmp}, 4, v1")
        a(f"v_and_b32 v{tmp+1}, 15, v1")
        a(f"v_lshlrev_b32 v{vB}, 15, v{tmp}"); a(f"v_lshl_add_u32 v{vB}, v{tmp+1}, 4, v{vB}")
        a(f"s_mul_i32 s68, s{sSub}, 7"); a(f"s_add_u32 s68, s68, s{sW}")
        a("s_cmp_lt_u32 s68, 40"); a("s_cselect_b32 s69, 0, 0x7f000000")
        a(f"s_cmp_lt_u32 s{sW}, 7"); a("s_cselect_b32 s69, s69, 0x7f000000")
        a("s_cmp_eq_u32 s69, 0"); a("s_cselect_b32 s68, s68, 0")
        a(f"v_or_b32 v{vB}, s69, v{vB}")
        a("s_lshl_b32 s74, s68, 5"); a(f"v_lshl_add_u32 v{vA}, v{tmp}, 3, s74")
        a("s_lshl_b32 s73, s68, 17"); a(f"s_lshl_b32 s74, s{sH}, 8"); a("s_add_u32 s73, s73, s74")
        a(f"s_lshl_b32 s68, s{sSub}, 3"); a(f"s_add_u32 s68, s68, s{sW}")
        a("s_lshl_b32 s69, s68, 6"); a("s_mul_hi_u32 s70, s69, 0x55555556")
        a("s_add_u32 s69, s69, 64"); a("s_mul_hi_u32 s71, s69, 0x55555556")
        a("s_sub_u32 s71, s71, s70")
        a(f"s_lshl_b32 s72, s{sH}, 20"); a("s_lshl_b32 s70, s70, 10"); a("s_add_u32 s72, s72, s70")
        a(f"s_cmp_eq_u32 s71, {NK}")
        a(f"s_cselect_b32 s{sBias}, 0, {f2u(NEG):#x}")
        a(f"s_cselect_b32 s74, 0, 0x7f000000")
        a(f"v_or_b32 v{vLast}, s74, v{vL16}")
        a(f"v_mov_b32 v{tmp+2}, 0"); a(f"v_mov_b32 v{tmp+3}, 0")
        a(f"s_lshl_b32 s68, s{sW}, 3"); a(f"v_mov_b32 v{tmp+4}, s68"); a(f"s_lshl_b32 s68, s{sW}, 2"); a(f"v_mov_b32 v{tmp+5}, s68")
        a("s_mov_b64 exec, 1")
        a(f"ds_write_b64 v{tmp+4}, {V(tmp+2,2)} offset:{L_M}")
        a(f"ds_write_b32 v{tmp+5}, v{tmp+2} offset:{L_F}")
        a(f"ds_write_b32 v{tmp+2}, v{tmp+2} offset:{L_F+32}")
        a(f"ds_write_b32 v{tmp+5}, v{tmp+2} offset:{L_F+64}")
        self.exec_full()
        a(f"v_mov_b32 v{vOne}, 1")
        a("s_waitcnt lgkmcnt(0)")
        self.srd(SRD3, pWQA, 640 * 8192); self.srd(SRD4, pWQB, 640 * 8192)
        a(f"global_load_dwordx2 {V(X,2)}, v{vA}, s[{pAX}:{pAX+1}]")
        a(f"global_load_dwordx2 {V(X+2,2)}, v{vA}, s[{pBX}:{pBX+1}]")
        def wq_loads(br):
            for i in range(4):
                if i == 0: a("s_mov_b32 s69, s73")
                else: a("s_add_u32 s69, s69, 8192")
                a(f"buffer_load_dwordx4 {V((WB if br else WA)+4*i)}, v{vB}, {S(SRD4 if br else SRD3)}, s69 offen {self.nt}")
        self.srd(SRD1, pK, 32 << 20); self.srd(SRD2, pV, 32 << 20)
        a("s_mov_b32 s75, s72")
        if self.rot:
            a(f"s_mul_i32 s68, s{sH}, {self.rot}"); a("s_and_b32 s68, s68, 15"); a("s_lshl_b32 s68, s68, 10")
            a("s_lshl_b32 s83, s71, 10"); a("s_add_u32 s83, s83, s72")
            a("s_mov_b32 s101, s72"); a("s_add_u32 s72, s72, s68"); a("s_mov_b32 s75, s72")
        def kv_load(srd, base, i, soff):
            voff = vLast if i == NK - 1 else vL16
            if self.rot:
                if i:
                    a(f"s_add_u32 s{soff}, s{soff}, 1024"); a(f"s_cmp_eq_u32 s{soff}, s83"); a(f"s_cselect_b32 s{soff}, s101, s{soff}")
                a(f"buffer_load_dwordx4 {V(base+4*i)}, v{voff}, {S(srd)}, s{soff} offen {self.nt}")
                return
            if i and i % 4 == 0: a(f"s_add_u32 s{soff}, s{soff}, 4096")
            a(f"buffer_load_dwordx4 {V(base+4*i)}, v{voff}, {S(srd)}, s{soff} offen offset:{1024*(i%4)} {self.nt}")
        D0 = self.D0
        late = self.prioA
        wq_loads(0)
        if not late:
            wq_loads(1)
            for i in range(D0): kv_load(SRD1, KT, i, 75)
        a("s_barrier")
        self.common2()
        self.masks(M0, 1, tmp, tmp + 1)
        a(f"v_and_b32 v{tmp}, 15, v1"); a(f"v_bfe_u32 v{tmp+1}, v1, 4, 1")
        a(f"v_lshl_add_u32 v{tmp}, v{tmp}, 1, v{tmp+1}"); a(f"v_lshlrev_b32 v{tmp}, 4, v{tmp}")
        a(f"s_lshl_b32 s68, s{sW}, 9"); a(f"v_add_u32 v{vA}, s68, v{tmp}")
        sels = [(0, sLo), (0, sHi), (1, sLo), (1, sHi)]
        def project(br):
            for i in range(4):
                xr, sel = sels[i]; xr += X + 2 * br
                a(f"v_perm_b32 v{G+i}, v{xr}, v{xr}, s{sel}")
            self.rowacc(DD if br else DA, AB, M0, 4, lambda i: (G + i, None), lambda i: (WB if br else WA) + 4 * i)
        def publish(wv, fl, lo, wsb):
            L = self.lab("b1"); a(f"s_cmp_eq_u32 s{sW}, {wv}"); a(f"s_cbranch_scc0 {L}")
            a(f"v_mov_b32 v{tmp+4}, 0")
            def rd():
                a(f"ds_read_b128 {V(G+32)}, v{tmp+4} offset:{fl}"); a(f"ds_read_b128 {V(G+36)}, v{tmp+4} offset:{fl+16}")
            self.lds_spin(rd, [G + 32 + k for k in range(8)], "bf1")
            a(f"v_and_b32 v{tmp}, 31, v1"); a(f"v_lshlrev_b32 v{tmp}, 4, v{tmp}")
            for k in range(8): a(f"ds_read_b128 {V(G+4*k)}, v{tmp} offset:{lo+512*k}")
            a(f"s_mul_i32 s68, s{sH}, {NS}"); a(f"s_add_u32 s68, s68, s{sSub}"); a("s_lshl_b32 s68, s68, 9"); a(f"s_add_u32 s68, s68, {wsb}")
            a("s_waitcnt lgkmcnt(0)")
            self.tree_add(G, 8)
            self.pack(G, vTag)
            self.exec_lo32()
            a(f"buffer_store_dwordx4 {V(G)}, v{tmp}, {WS}, s68 offen sc1")
            self.exec_full()
            a(f"{L}:")
        def write_part(br):
            self.exec_lo32()
            a(f"ds_write_b128 v{vA}, {V(DD if br else DA)} offset:{L_PB if br else L_PA}")
            a("s_mov_b32 exec_lo, 1")
            a(f"ds_write_b32 v{tmp+5}, v{vOne} offset:{L_F + (64 if br == 0 else 0)}")
            self.exec_full()
        a(f"s_waitcnt vmcnt({0 if late else 4 + D0})")
        self.stamp(1)
        a(f"v_mov_b32 v{vOne + 0}, 1") if False else None
        project(0)
        self.tag(vTag)
        write_part(0)
        publish(0, L_F + 64, L_PA, WS_QA)
        if late:
            wq_loads(1)
            for i in range(D0): kv_load(SRD1, KT, i, 75)
        a(f"s_waitcnt vmcnt({D0})")
        project(1)
        write_part(1)
        publish(2, L_F, L_PB, WS_QB)
        n1 = self.n1; n2 = n1 + D + 1
        assert n2 < NK
        win = lambda i: self.Ds if i < self.ns else D
        def gather_q():
            for s in range(NS):
                a(f"buffer_load_dwordx4 {V(G+4*s)}, v{tmp+3}, {WS}, s76 offen offset:{512*s} sc1")
        for i in range(D0, NK):
            if i >= win(i): a(f"s_waitcnt vmcnt({win(i)-1})")
            kv_load(SRD1, KT, i, 75)
            if i == n1:
                L = self.lab("b2")
                a(f"v_and_b32 v{tmp+3}, 31, v1"); a(f"v_lshlrev_b32 v{tmp+3}, 4, v{tmp+3}")
                a(f"s_mul_i32 s76, s{sH}, {512*NS}"); a(f"s_add_u32 s76, s76, {WS_QB}")
                a(f"s_cmp_eq_u32 s{sW}, 1"); a(f"s_cbranch_scc0 {L}")
                gather_q()
                a(f"{L}:")
            if i == n2:
                L = self.lab("b3"); a(f"s_cmp_eq_u32 s{sW}, 1"); a(f"s_cbranch_scc0 {L}")
                self.poll_loop(gather_q, [G + 4 * s + 3 for s in range(NS)], first_issued=True,
                               first_wait=f"s_waitcnt vmcnt({n2-n1})", name="bq")
                for s in range(NS): self.unpack(G + 4 * s)
                self.tree_add(G, NS)
                a(f"v_cvt_pk_bf16_f32 v{G}, v{G}, v{G+1}")
                a(f"v_cvt_pk_bf16_f32 v{G+1}, v{G+2}, v{G+3}")
                a(f"v_lshrrev_b32 v{tmp+3}, 1, v{tmp+3}")
                self.exec_lo32()
                a(f"ds_write_b64 v{tmp+3}, {V(G,2)} offset:{L_Q}")
                a("s_mov_b32 exec_lo, 1")
                a(f"v_mov_b32 v{tmp+3}, 0")
                a(f"ds_write_b32 v{tmp+3}, v{vOne} offset:{L_F+32}")
                self.exec_full()
                a(f"{L}:")
        self.stamp(2)
        if self.bar & 1: a("s_barrier")
        a("s_mov_b32 s75, s72")
        def wait_q():
            a(f"v_and_b32 v{tmp}, 15, v1"); a(f"v_lshlrev_b32 v{tmp}, 4, v{tmp}"); a(f"v_mov_b32 v{tmp+4}, 0")
            def rd():
                a(f"ds_read_b32 v{tmp+2}, v{tmp+4} offset:{L_F+32}")
                a(f"ds_read_b128 {V(QF)}, v{tmp} offset:{L_Q}")
            self.lds_spin(rd, [tmp + 2], "bq2")
        def kgroup(k):
            n = min(4, NK - 4 * k)
            for r in range(4):
                for u in range(n):
                    kreg = KT + 4 * (4 * k + u) + r
                    if r == 0: a(f"v_dot2_f32_bf16 v{T+u}, v{kreg}, v{QF}, 0")
                    else: a(f"v_dot2c_f32_bf16 v{T+u}, v{kreg}, v{QF+r}")
            if n < 4:
                a(f"v_mov_b32 v{T0}, {f2u(NEG):#x}"); a(f"v_mov_b32 v{T1}, {f2u(NEG):#x}")
                a(f"v_add_f32 v{T+1}, s{sBias}, v{T+1}")
            a(f"v_add_f32_dpp v{T0}, v{T}, v{T} row_ror:8 row_mask:0xf bank_mask:0x3")
            a(f"v_add_f32_dpp v{T1}, v{T+1}, v{T+1} row_ror:8 row_mask:0xf bank_mask:0x3")
            if n == 4:
                a(f"v_add_f32_dpp v{T0}, v{T+2}, v{T+2} row_ror:8 row_mask:0xf bank_mask:0xc")
                a(f"v_add_f32_dpp v{T1}, v{T+3}, v{T+3} row_ror:8 row_mask:0xf bank_mask:0xc")
            a(f"v_add_f32_dpp v{U+k}, v{T0}, v{T0} row_half_mirror row_mask:0xf bank_mask:0x5")
            a(f"v_add_f32_dpp v{U+k}, v{T1}, v{T1} row_half_mirror row_mask:0xf bank_mask:0xa")
            a(f"v_add_f32_dpp v{U+k}, v{U+k}, v{U+k} quad_perm:[2,3,0,1] row_mask:0xf bank_mask:0xf")
            a(f"v_add_f32_dpp v{U+k}, v{U+k}, v{U+k} quad_perm:[1,0,3,2] row_mask:0xf bank_mask:0xf")
        def allreduce_rows(r, op, t):
            a(f"v_mov_b32 v{t}, v{r}"); a(f"v_permlane16_swap_b32 v{r}, v{t}"); a(f"{op} v{r}, v{r}, v{t}")
            a(f"v_mov_b32 v{t}, v{r}"); a(f"v_permlane32_swap_b32 v{r}, v{t}"); a(f"{op} v{r}, v{r}, v{t}")
        vM, vLs = tmp, tmp + 1
        def softmax():
            a(f"v_max3_f32 v{vM}, v{U}, v{U+1}, v{U+2}")
            a(f"v_max3_f32 v{vM}, v{vM}, v{U+3}, v{U+4}")
            a(f"v_max_f32 v{vM}, v{vM}, v{U+5}")
            a(f"v_max_f32_dpp v{vM}, v{vM}, v{vM} row_ror:4 row_mask:0xf bank_mask:0xf")
            a(f"v_max_f32_dpp v{vM}, v{vM}, v{vM} row_ror:8 row_mask:0xf bank_mask:0xf")
            allreduce_rows(vM, "v_max_f32", tmp + 2)
            a(f"v_mul_f32 v{vM}, s{sC1}, v{vM}")
            a(f"v_mov_b32 v{tmp+2}, v{vM}"); a(f"v_mov_b32 v{tmp+3}, 1")
            a(f"s_lshl_b32 s68, s{sW}, 3"); a(f"v_mov_b32 v{tmp+4}, s68")
            a("s_mov_b64 exec, 1")
            a(f"ds_write_b64 v{tmp+4}, {V(tmp+2,2)} offset:{L_M}")
            self.exec_full()
            for k in range(NG): a(f"v_fma_f32 v{U+k}, v{U+k}, s{sC1}, -v{vM}")
            for k in range(NG): a(f"v_exp_f32 v{U+k}, v{U+k}")
            a(f"v_add_f32 v{vLs}, v{U}, v{U+1}")
            for k in range(2, NG): a(f"v_add_f32 v{vLs}, v{vLs}, v{U+k}")
            for k in range(NG): a(f"v_cvt_pk_bf16_f32 v{U+k}, v{U+k}, v{U+k}")
            a(f"v_add_f32_dpp v{vLs}, v{vLs}, v{vLs} row_ror:4 row_mask:0xf bank_mask:0xf")
            a(f"v_add_f32_dpp v{vLs}, v{vLs}, v{vLs} row_ror:8 row_mask:0xf bank_mask:0xf")
            allreduce_rows(vLs, "v_add_f32", tmp + 2)
        def pv_and(i):
            ab = AB + 4 * (i & 1)
            for t in range(4):
                a(f"v_and_b32_dpp v{ab+t}, v{U+(i>>2)}, v{M0+t} row_newbcast:{4*(i&3)} row_mask:0xf bank_mask:0xf")
        def pv_mfma(i):
            ab = AB + 4 * (i & 1)
            a(f"v_mfma_f32_16x16x32_bf16 {V(DD)}, {V(ab)}, {V(VT+4*i)}, {'0' if i == 0 else V(DD)}")
        pv = 0
        SM = 2 * NG
        D = self.Dv
        for i in range(NK):
            a(f"s_waitcnt vmcnt({D-1})")
            kv_load(SRD2, VT, i, 75)
            if i == 1: wait_q()
            if i == SM - 1 and self.bar & 2: a("s_barrier")
            if i < SM and i % 2 == 1: kgroup(i // 2)
            if i == SM - 1:
                softmax(); pv_and(0)
            if i == SM: self.code_prefetch("L_B_t", "L_PR", 254, 255, 1)
            if i >= SM:
                lim = i - D
                for _ in range(2):
                    if pv <= lim:
                        pv_and(pv + 1); pv_mfma(pv); pv += 1
        a("L_B_t:")
        self.stamp(3)
        WO = KT + 24
        a(f"v_lshrrev_b32 v{tmp+4}, 4, v1"); a("s_movk_i32 s68, 5120"); a(f"v_mul_u32_u24 v{tmp+4}, s68, v{tmp+4}")
        a(f"v_and_b32 v{tmp+5}, 15, v1"); a(f"v_lshl_add_u32 v{tmp+4}, v{tmp+5}, 4, v{tmp+4}")
        a(f"s_cmp_lt_u32 s{sSub}, 5"); a("s_cselect_b32 s68, 0, 0x7f000000"); a(f"v_or_b32 v{tmp+4}, s68, v{tmp+4}")
        a(f"s_lshl_b32 s68, s{sH}, 3"); a(f"s_add_u32 s68, s68, s{sW}"); a(f"s_mul_i32 s69, s68, {16*1280}"); a(f"s_lshl_b32 s68, s{sSub}, 8"); a("s_add_u32 s69, s69, s68")
        self.srd(SRD3, pWOB, 4096 * 1280)
        for rg in range(4):
            a(f"buffer_load_dwordx4 {V(WO+4*rg)}, v{tmp+4}, {S(SRD3)}, s69 offen offset:{1280*rg} {self.nt}")
        a(f"v_mov_b32 v{tmp+4}, 0")
        R8 = KT
        def rdm():
            for k in range(4): a(f"ds_read_b128 {V(R8+4*k)}, v{tmp+4} offset:{L_M+16*k}")
        self.lds_spin(rdm, [R8 + 2 * k + 1 for k in range(8)], "bm")
        vMc = R8 + 16; vF = R8 + 17
        a(f"v_max3_f32 v{vMc}, v{R8}, v{R8+2}, v{R8+4}")
        a(f"v_max3_f32 v{vMc}, v{vMc}, v{R8+6}, v{R8+8}")
        a(f"v_max3_f32 v{vMc}, v{vMc}, v{R8+10}, v{R8+12}")
        a(f"v_max_f32 v{vMc}, v{vMc}, v{R8+14}")
        a(f"v_sub_f32 v{vF}, v{vM}, v{vMc}")
        a(f"v_exp_f32 v{vF}, v{vF}")
        a(f"v_mul_f32 v{vLs}, v{vLs}, v{vF}")
        vG = R8 + 18; vZ = R8 + 19
        a(f"v_lshrrev_b32 v{vG}, 4, v1"); a(f"v_lshlrev_b32 v{vG}, 4, v{vG}"); a(f"v_mov_b32 v{vZ}, 0")
        a(f"s_mul_i32 s76, s{sH}, {512*NS}"); a(f"s_add_u32 s78, s76, {WS_OB}"); a(f"s_lshl_b32 s68, s{sW}, 6"); a("s_add_u32 s76, s78, s68")
        a(f"s_lshl_b32 s77, s{sH}, 7"); a(f"s_add_u32 s77, s77, {WS_MLB}")
        while pv < NK:
            a(f"s_waitcnt vmcnt({NK-1-pv+4})")
            if pv + 1 < NK: pv_and(pv + 1)
            pv_mfma(pv); pv += 1
        self.stamp(4)
        for v in range(4): a(f"v_mul_f32 v{DD+v}, v{vF}, v{DD+v}")
        a(f"s_lshl_b32 s68, s{sW}, 2"); a(f"v_mov_b32 v{tmp+4}, s68")
        self.exec_lo32()
        a(f"ds_write_b128 v{vA}, {V(DD)} offset:{L_O}")
        a("s_mov_b32 exec_lo, 1")
        a(f"ds_write_b32 v{tmp+4}, v{vLs} offset:{L_L}")
        self.exec_full()
        a("s_waitcnt lgkmcnt(0)")
        a("s_barrier")
        L = self.lab("b4"); a(f"s_cmp_eq_u32 s{sW}, 0"); a(f"s_cbranch_scc0 {L}")
        a(f"v_and_b32 v{tmp}, 31, v1"); a(f"v_lshlrev_b32 v{tmp}, 4, v{tmp}")
        G2 = VT
        for k in range(8): a(f"ds_read_b128 {V(G2+4*k)}, v{tmp} offset:{L_O+512*k}")
        a(f"ds_read_b128 {V(G2+32)}, v{vZ} offset:{L_L}")
        a(f"ds_read_b128 {V(G2+36)}, v{vZ} offset:{L_L+16}")
        a(f"s_lshl_b32 s68, s{sSub}, 9"); a("s_add_u32 s68, s68, s78")
        a(f"s_lshl_b32 s69, s{sSub}, 4"); a("s_add_u32 s69, s69, s77")
        a("s_waitcnt lgkmcnt(2)")
        self.tree_add(G2, 8)
        self.pack(G2, vTag)
        self.exec_lo32()
        if self.fast:
            a(f"s_add_u32 s70, s68, {WS_OBF - WS_OB}")
            a(f"buffer_store_dwordx4 {V(G2)}, v{tmp}, {WS}, s70 offen")
        a(f"buffer_store_dwordx4 {V(G2)}, v{tmp}, {WS}, s68 offen sc1")
        a("s_waitcnt lgkmcnt(0)")
        ML = R8 + 20
        a(f"v_pk_add_f32 {V(G2+32,2)}, {V(G2+32,2)}, {V(G2+34,2)}")
        a(f"v_pk_add_f32 {V(G2+36,2)}, {V(G2+36,2)}, {V(G2+38,2)}")
        a(f"v_pk_add_f32 {V(G2+32,2)}, {V(G2+32,2)}, {V(G2+36,2)}")
        a(f"v_mov_b32 v{ML}, v{vMc}")
        a(f"v_add_f32 v{ML+1}, v{G2+32}, v{G2+33}")
        a(f"v_mov_b32 v{ML+2}, 0"); a(f"v_mov_b32 v{ML+3}, v{vTag}")
        a("s_mov_b32 exec_lo, 1")
        if self.fast:
            a(f"s_add_u32 s70, s69, {WS_MLBF - WS_MLB}")
            a(f"buffer_store_dwordx4 {V(ML)}, v{vZ}, {WS}, s70 offen")
        a(f"buffer_store_dwordx4 {V(ML)}, v{vZ}, {WS}, s69 offen sc1")
        self.exec_full()
        a(f"{L}:")
        self.stamp(5)
        Le = self.lab("bend")
        a(f"s_cmp_lt_u32 s{sSub}, 5"); a(f"s_cbranch_scc0 {Le}")
        EG = VT + 40; ME = EG + 12; L_C = 24576
        O = U
        L = self.lab("bc"); a(f"s_cmp_eq_u32 s{sW}, 0"); a(f"s_cbranch_scc0 {L}")
        a(f"v_lshrrev_b32 v{tmp+1}, 5, v1"); a(f"v_lshlrev_b32 v{tmp+2}, 4, v{tmp+1}")
        a(f"v_lshl_add_u32 v{tmp+1}, v{tmp+1}, 9, v{tmp}")
        def gather_ob():
            for j in range(3): a(f"buffer_load_dwordx4 {V(EG+4*j)}, v{tmp+1}, {WS}, s78 offen offset:{1024*j} sc1")
            for j in range(3): a(f"buffer_load_dwordx4 {V(ME+4*j)}, v{tmp+2}, {WS}, s77 offen offset:{32*j} sc1")
        if not self.fast:
            self.poll_loop(gather_ob, [EG + 4 * j + 3 for j in range(6)], sleep=0, name="bob")
        else:
            ES = 80
            a(f"s_add_u32 s70, s78, {WS_OBF - WS_OB}"); a(f"s_add_u32 s71, s77, {WS_MLBF - WS_MLB}")
            Lp = self.lab("bfp")
            a(f"s_mov_b32 s{sCnt}, 0")
            a(f"{Lp}:")
            for j in range(3): a(f"buffer_load_dwordx4 {V(EG+4*j)}, v{tmp+1}, {WS}, s70 offen offset:{1024*j} sc1")
            for j in range(3): a(f"buffer_load_dwordx4 {V(ME+4*j)}, v{tmp+2}, {WS}, s71 offen offset:{32*j} sc1")
            for j in range(3): a(f"buffer_load_dwordx4 {V(ES+4*j)}, v{tmp+1}, {WS}, s78 offen offset:{1024*j} sc1")
            for j in range(3): a(f"buffer_load_dwordx4 {V(ES+12+4*j)}, v{tmp+2}, {WS}, s77 offen offset:{32*j} sc1")
            a("s_waitcnt vmcnt(6)")
            self.check([EG + 4 * j + 3 for j in range(6)], 6)
            a("s_cmp_eq_u64 s[6:7], 0"); a(f"s_cbranch_scc1 {Lp}_d")
            a("s_waitcnt vmcnt(0)")
            self.check([ES + 4 * j + 3 for j in range(6)], 6)
            a("s_cmp_eq_u64 s[6:7], 0"); a(f"s_cbranch_scc1 {Lp}_s")
            a(f"s_add_u32 s{sCnt}, s{sCnt}, 1"); a(f"s_cmp_lt_u32 s{sCnt}, {self.spin}"); a(f"s_cbranch_scc1 {Lp}")
            a(f"{Lp}_s:")
            for r in range(24): a(f"v_mov_b32 v{EG+r}, v{ES+r}")
            a(f"{Lp}_d:")
        self.stamp(6)
        vMx = T; vL = T + 1
        def half_allred(r, op, t):
            a(f"v_mov_b32 v{t}, v{r}"); a(f"v_permlane32_swap_b32 v{r}, v{t}"); a(f"{op} v{r}, v{r}, v{t}")
        a(f"v_max3_f32 v{vMx}, v{ME}, v{ME+4}, v{ME+8}")
        half_allred(vMx, "v_max_f32", T + 2)
        for j in range(3): self.unpack(EG + 4 * j)
        for j in range(3): a(f"v_sub_f32 v{ME+4*j}, v{ME+4*j}, v{vMx}")
        for j in range(3): a(f"v_exp_f32 v{ME+4*j}, v{ME+4*j}")
        a(f"v_mul_f32 v{vL}, v{ME}, v{ME+1}")
        for v in range(4): a(f"v_mul_f32 v{O+v}, v{ME}, v{EG+v}")
        for j in range(1, 3):
            a(f"v_fmac_f32 v{vL}, v{ME+4*j}, v{ME+4*j+1}")
            for v in range(4): a(f"v_fmac_f32 v{O+v}, v{ME+4*j}, v{EG+4*j+v}")
        for v in range(4): a(f"v_mov_b32 v{T+4+v}, v{O+v}") if False else None
        a(f"v_mov_b32 v{EG}, v{vL}")
        for v in range(4): a(f"v_mov_b32 v{EG+1+v}, v{O+v}")
        a(f"v_permlane32_swap_b32 v{vL}, v{EG}")
        for v in range(4): a(f"v_permlane32_swap_b32 v{O+v}, v{EG+1+v}")
        a(f"v_add_f32 v{vL}, v{vL}, v{EG}")
        for v in range(4): a(f"v_add_f32 v{O+v}, v{O+v}, v{EG+1+v}")
        a(f"v_rcp_f32 v{vL}, v{vL}")
        for v in range(4): a(f"v_mul_f32 v{O+v}, v{vL}, v{O+v}")
        for v in range(4): a(f"v_cvt_pk_bf16_f32 v{O+v}, v{O+v}, v{O+v}")
        self.exec_lo32()
        a(f"ds_write_b128 v{tmp}, {V(O)} offset:{L_C}")
        self.exec_full()
        a("s_waitcnt lgkmcnt(0)")
        a(f"s_branch {L}_j")
        a(f"{L}:")
        a("s_waitcnt vmcnt(0)")
        a(f"{L}_j:")
        a(f"s_lshl_b32 s68, s{sW}, 6"); a(f"v_add_u32 v{vG}, s68, v{vG}")
        a("s_barrier")
        a(f"ds_read_b128 {V(O)}, v{vG} offset:{L_C}")
        a("s_waitcnt lgkmcnt(0)")
        self.rowacc(DD, AB, M0, 4, lambda i: (O + i, None), lambda i: WO + 4 * i)
        self.exec_lo32()
        a(f"ds_write_b128 v{vA}, {V(DD)} offset:{L_Y}")
        self.exec_full()
        a("s_waitcnt lgkmcnt(0)")
        a("s_barrier")
        a(f"s_cmp_eq_u32 s{sW}, 0"); a(f"s_cbranch_scc0 {Le}")
        a(f"v_and_b32 v{tmp}, 31, v1"); a(f"v_lshlrev_b32 v{tmp}, 4, v{tmp}")
        for k in range(8): a(f"ds_read_b128 {V(G2+4*k)}, v{tmp} offset:{L_Y+512*k}")
        a(f"s_mul_i32 s68, s{sH}, 2560"); a(f"s_lshl_b32 s69, s{sSub}, 9"); a("s_add_u32 s68, s68, s69"); a(f"s_add_u32 s68, s68, {WS_YB}")
        a("s_waitcnt lgkmcnt(0)")
        self.tree_add(G2, 8)
        self.pack(G2, vTag)
        self.exec_lo32()
        a(f"buffer_store_dwordx4 {V(G2)}, v{tmp}, {WS}, s68 offen sc1")
        self.exec_full()
        a(f"{Le}:")
        self.stamp(7)
        self.finish("B")

    def role_PR(self):
        a = self.a; V = self.V; S = self.S
        vUK, vUV, M0, QF, DD, AB, T, U, vTag, vLD, tmp = 2, 3, 4, 8, 12, 16, 24, 32, 36, 37, 40
        UK, UV, CT, ML, GQ, G = 64, 128, 192, 224, 192, 48
        self.code_prefetch("L_PR", "L_Q", 254, 255, 1)
        a(f"s_add_u32 s{sH}, s6, s7")
        a(f"v_lshrrev_b32 v{tmp+2}, 4, v1"); a(f"v_and_b32 v{tmp+3}, 15, v1"); a(f"v_lshlrev_b32 v{tmp+3}, 4, v{tmp+3}")
        a(f"v_lshl_add_u32 v{vUK}, v{tmp+2}, 16, v{tmp+3}")
        a(f"v_lshl_add_u32 v{vUV}, v{tmp+2}, 17, v{tmp+3}")
        a(f"s_and_b32 s68, s{sW}, 3"); a("s_add_u32 s79, s68, s6")
        a(f"s_lshr_b32 s70, s{sW}, 2"); a("s_lshl_b32 s71, s7, 1"); a("s_add_u32 s70, s70, s71")
        a("s_lshl_b32 s73, s70, 19"); a("s_lshl_b32 s69, s79, 8"); a("s_add_u32 s73, s73, s69")
        a(f"s_lshl_b32 s74, s{sW}, 19"); a(f"s_lshl_b32 s69, s{sH}, 8"); a("s_add_u32 s74, s74, s69")
        a(f"s_mul_i32 s76, s79, {512*NS}"); a(f"s_add_u32 s76, s76, {WS_QA}")
        a("s_waitcnt lgkmcnt(0)")
        self.srd(SRD2, pWUK, 512 * 8192)
        for i in range(16):
            b, ii = i >> 3, i & 7
            if i == 8: a(f"s_add_u32 s73, s73, {8192*25}")
            elif i: a("s_add_u32 s73, s73, 8192")
            a(f"buffer_load_dwordx4 {V(UK+4*i)}, v{vUK}, {S(SRD2)}, s73 offen {self.nt}")
        self.common2()
        self.srd(SRD3, pWUV, 512 * 8192)
        self.masks(M0, 1, tmp, tmp + 1)
        a(f"v_and_b32 v{tmp}, 15, v1"); a(f"v_bfe_u32 v{tmp+1}, v1, 4, 1")
        a(f"v_lshl_add_u32 v{tmp}, v{tmp}, 1, v{tmp+1}"); a(f"v_lshlrev_b32 v{tmp}, 4, v{tmp}")
        a(f"s_lshl_b32 s68, s{sW}, 9"); a(f"v_add_u32 v{vLD}, s68, v{tmp}")
        self.tag(vTag)
        a(f"v_and_b32 v{tmp}, 31, v1"); a(f"v_lshlrev_b32 v{tmp}, 4, v{tmp}")
        def gather_q():
            for i in range(NS): a(f"buffer_load_dwordx4 {V(GQ+4*i)}, v{tmp}, {WS}, s76 offen offset:{512*i} sc1")
        a("s_waitcnt vmcnt(3)")
        self.stamp(1)
        self.poll_loop(gather_q, [GQ + 4 * i + 3 for i in range(NS)], sleep=1, name="pq")
        self.stamp(2)
        for i in range(NS): self.unpack(GQ + 4 * i)
        self.tree_add(GQ, NS)
        a(f"v_cvt_pk_bf16_f32 v{GQ}, v{GQ}, v{GQ+1}"); a(f"v_cvt_pk_bf16_f32 v{GQ+1}, v{GQ+2}, v{GQ+3}")
        a(f"s_lshl_b32 s68, s{sW}, 8"); a(f"v_lshrrev_b32 v{tmp}, 1, v{tmp}"); a(f"v_add_u32 v{tmp}, s68, v{tmp}")
        self.exec_lo32()
        a(f"ds_write_b64 v{tmp}, {V(GQ,2)} offset:8192")
        self.exec_full()
        a(f"v_and_b32 v{tmp}, 15, v1"); a(f"v_lshlrev_b32 v{tmp}, 4, v{tmp}"); a(f"v_add_u32 v{tmp}, s68, v{tmp}")
        a("s_waitcnt lgkmcnt(0)")
        a(f"ds_read_b128 {V(QF)}, v{tmp} offset:8192")
        a(f"v_lshrrev_b32 v{tmp}, 3, v1"); a(f"v_lshlrev_b32 v{tmp}, 4, v{tmp}")
        a("s_lshl_b32 s68, s79, 11"); a("s_lshl_b32 s69, s70, 8"); a("s_add_u32 s68, s68, s69"); a(f"s_add_u32 s68, s68, {WS_QABS}")
        a("s_waitcnt lgkmcnt(0)")
        self.stamp(3)
        for b in range(2):
            Ub = U if b == 0 else 48
            for r in range(4):
                for i in range(8):
                    kr = UK + 4 * (8 * b + i)
                    if r == 0: a(f"v_dot2_f32_bf16 v{T+i}, v{kr}, v{QF}, 0")
                    else: a(f"v_dot2c_f32_bf16 v{T+i}, v{kr+r}, v{QF+r}")
            for k in range(4): a(f"v_add_f32_dpp v{Ub+k}, v{T+k}, v{T+k} row_ror:8 row_mask:0xf bank_mask:0x3")
            for k in range(4): a(f"v_add_f32_dpp v{Ub+k}, v{T+k+4}, v{T+k+4} row_ror:8 row_mask:0xf bank_mask:0xc")
            for k in range(4): a(f"v_add_f32_dpp v{Ub+k}, v{Ub+k}, v{Ub+k} row_half_mirror row_mask:0xf bank_mask:0xf")
            for k in range(4): a(f"v_add_f32_dpp v{Ub+k}, v{Ub+k}, v{Ub+k} quad_perm:[2,3,0,1] row_mask:0xf bank_mask:0xf")
            for k in range(4): a(f"v_add_f32_dpp v{Ub+k}, v{Ub+k}, v{Ub+k} quad_perm:[1,0,3,2] row_mask:0xf bank_mask:0xf")
            self.pack(Ub, vTag)
            a("s_mov_b32 exec_lo, 0x01010101"); a("s_mov_b32 exec_hi, 0x01010101")
            a(f"buffer_store_dwordx4 {V(Ub)}, v{tmp}, {WS}, s68 offen offset:{128*b} sc1")
            self.exec_full()
        self.stamp(4)
        a("s_barrier")
        for i in range(16):
            if i: a("s_add_u32 s74, s74, 8192")
            a(f"buffer_load_dwordx4 {V(UV+4*i)}, v{vUV}, {S(SRD3)}, s74 offen {self.nt}")
        self.code_prefetch("L_PR_t", "L_Q", 254, 255, 1)
        if self.exp == 2:
            a("s_waitcnt vmcnt(0)"); self.stamp(3)
        a("L_PR_t:")
        MLr, CO = 208, 48
        a(f"v_lshrrev_b32 v{tmp}, 3, v1"); a(f"v_lshlrev_b32 v{tmp+2}, 4, v{tmp}")
        a(f"v_and_b32 v{tmp+1}, 7, v1"); a(f"v_lshlrev_b32 v{tmp+1}, 4, v{tmp+1}"); a(f"v_lshl_add_u32 v{tmp+3}, v{tmp}, 10, v{tmp+1}")
        a(f"s_lshl_b32 s76, s{sH}, 9"); a(f"s_add_u32 s76, s76, {WS_ML}")
        a(f"s_lshl_b32 s78, s{sH}, 15"); a(f"s_lshl_b32 s68, s{sW}, 7"); a("s_add_u32 s78, s78, s68"); a(f"s_add_u32 s78, s78, {WS_CTX}")
        def gather_ml():
            for i in range(4): a(f"buffer_load_dwordx4 {V(MLr+4*i)}, v{tmp+2}, {WS}, s76 offen offset:{128*i} sc1")
        self.poll_loop(gather_ml, [MLr + 4 * i + 3 for i in range(4)], sleep=2, name="pml")
        self.stamp(5)
        for i in range(4):
            if i: a("s_add_u32 s78, s78, 8192")
            a(f"buffer_load_dwordx4 {V(CT+4*i)}, v{tmp+3}, {WS}, s78 offen sc1")
        vM, vL = T, T + 1
        a(f"v_max3_f32 v{vM}, v{MLr}, v{MLr+4}, v{MLr+8}"); a(f"v_max_f32 v{vM}, v{vM}, v{MLr+12}")
        def allred(r, op, t):
            a(f"{op}_dpp v{r}, v{r}, v{r} row_ror:8 row_mask:0xf bank_mask:0xf")
            a(f"v_mov_b32 v{t}, v{r}"); a(f"v_permlane16_swap_b32 v{r}, v{t}"); a(f"{op} v{r}, v{r}, v{t}")
            a(f"v_mov_b32 v{t}, v{r}"); a(f"v_permlane32_swap_b32 v{r}, v{t}"); a(f"{op} v{r}, v{r}, v{t}")
        allred(vM, "v_max_f32", T + 2)
        for i in range(4): a(f"v_sub_f32 v{MLr+4*i}, v{MLr+4*i}, v{vM}")
        for i in range(4): a(f"v_exp_f32 v{MLr+4*i}, v{MLr+4*i}")
        a(f"v_mul_f32 v{vL}, v{MLr}, v{MLr+1}")
        for i in range(1, 4): a(f"v_fmac_f32 v{vL}, v{MLr+4*i}, v{MLr+4*i+1}")
        allred(vL, "v_add_f32", T + 2)
        a(f"v_rcp_f32 v{vL}, v{vL}")
        for i in range(4): a(f"v_mul_f32 v{MLr+4*i}, v{vL}, v{MLr+4*i}")
        for i in range(4): a(f"v_cvt_pk_bf16_f32 v{MLr+4*i}, v{MLr+4*i}, v{MLr+4*i}")
        a(f"v_and_b32 v{tmp}, 7, v1"); a(f"v_bfe_u32 v{tmp+1}, v1, 4, 1"); a(f"v_lshl_add_u32 v{tmp}, v{tmp}, 1, v{tmp+1}"); a(f"v_lshlrev_b32 v{tmp}, 4, v{tmp}")
        a(f"s_lshl_b32 s68, s{sW}, 8"); a(f"v_add_u32 v{tmp}, s68, v{tmp}")
        a(f"v_lshrrev_b32 v{tmp+1}, 4, v1"); a(f"v_lshlrev_b32 v{tmp+1}, 6, v{tmp+1}"); a(f"v_add_u32 v{tmp+1}, s68, v{tmp+1}")
        a("s_waitcnt vmcnt(0)")
        self.stamp(6)
        self.rowacc(DD, AB, M0, 4, lambda i: (MLr + 4 * i, None), lambda i: CT + 4 * i)
        for v in range(4): a(f"v_mov_b32 v{T+v}, v{DD+v}")
        for v in range(4): a(f"v_permlane32_swap_b32 v{DD+v}, v{T+v}")
        for v in range(4): a(f"v_add_f32_dpp v{DD+v}, v{T+v}, v{DD+v} row_shl:8 row_mask:0xf bank_mask:0x3")
        for v in range(4): a(f"v_cvt_pk_bf16_f32 v{DD+v}, v{DD+v}, v{DD+v}")
        a("s_mov_b32 exec_lo, 0x00ff00ff"); a("s_mov_b32 exec_hi, 0")
        a(f"ds_write_b128 v{tmp}, {V(DD)} offset:8192")
        self.exec_full()
        a("s_waitcnt lgkmcnt(0)")
        for k in range(4): a(f"ds_read_b128 {V(CO+4*k)}, v{tmp+1} offset:{8192+16*k}")
        a("s_waitcnt lgkmcnt(0)")
        self.rowacc(DD, AB, M0, 16, lambda i: (CO + i, None), lambda i: UV + 4 * i)
        self.exec_lo32()
        a(f"ds_write_b128 v{vLD}, {V(DD)}")
        self.exec_full()
        a("s_waitcnt lgkmcnt(0)")
        a("s_barrier")
        L = self.lab("p4"); a(f"s_cmp_eq_u32 s{sW}, 0"); a(f"s_cbranch_scc0 {L}")
        a(f"v_and_b32 v{tmp}, 31, v1"); a(f"v_lshlrev_b32 v{tmp}, 4, v{tmp}")
        for k in range(8): a(f"ds_read_b128 {V(CT+4*k)}, v{tmp} offset:{512*k}")
        a(f"s_lshl_b32 s68, s{sH}, 9"); a(f"s_add_u32 s68, s68, {WS_CTXF}")
        a("s_waitcnt lgkmcnt(0)")
        self.tree_add(CT, 8)
        self.pack(CT, vTag)
        self.exec_lo32()
        a(f"buffer_store_dwordx4 {V(CT)}, v{tmp}, {WS}, s68 offen sc1")
        self.exec_full()
        a(f"{L}:")
        self.stamp(7)
        Le = self.lab("pend"); LB = self.lab("pfb")
        a(f"s_lshl_b32 s79, s{sH}, 3"); a(f"s_add_u32 s79, s79, s{sW}")
        a(f"v_and_b32 v{tmp}, 31, v1"); a("s_movk_i32 s68, 2560"); a(f"v_mul_u32_u24 v{tmp}, s68, v{tmp}")
        a(f"v_lshrrev_b32 v{tmp+1}, 5, v1"); a(f"v_lshl_add_u32 v{tmp}, v{tmp+1}, 4, v{tmp}")
        a(f"v_lshlrev_b32 v{tmp+1}, 3, v{tmp+1}"); a(f"v_mov_b32 v{tmp+2}, 0")
        a("s_cmp_lt_u32 s79, 160"); a(f"s_cbranch_scc0 {Le}")
        a("s_cmp_lt_u32 s79, 80"); a(f"s_cbranch_scc0 {LB}")
        regs = [G + v for v in range(4)]
        def final(br):
            a(f"s_lshl_b32 s76, s79, 5"); a(f"s_add_u32 s76, s76, {WS_YB if br else WS_YA}")
            a("s_lshl_b32 s78, s79, 4")
            if br:
                a("s_add_u32 s78, s78, 1280")
                a("s_and_b32 s68, s79, 31"); a("s_lshl_b32 s68, s68, 7"); a(f"s_add_u32 s77, s68, {WS_MLB}")
                def gather_ind(): a(f"buffer_load_dwordx4 {V(G)}, v{tmp+2}, {WS}, s77 offen sc1")
                self.poll_loop(gather_ind, [G + 3], sleep=4, name="pind")
            def gather_y(): a(f"buffer_load_dwordx4 {V(G)}, v{tmp}, {WS}, s76 offen sc1")
            self.poll_loop(gather_y, [G + 3], sleep=(0 if br else 2), name="py")
            self.unpack(G)
            self.row_allreduce(regs, "v_add_f32")
            for r in regs: a(f"v_add_f32_dpp v{r}, v{r}, v{r} row_bcast:15 row_mask:0xa bank_mask:0xf")
            a(f"v_cvt_pk_bf16_f32 v{G}, v{G}, v{G+1}"); a(f"v_cvt_pk_bf16_f32 v{G+1}, v{G+2}, v{G+3}")
            a("s_mov_b32 exec_lo, 0x80000000"); a("s_mov_b32 exec_hi, 0x80000000")
            a(f"buffer_store_dwordx2 {V(G,2)}, v{tmp+1}, {OUT}, s78 offen")
            self.exec_full()
            self.stamp(1 + br)
        final(0)
        a("s_cmp_eq_u32 s79, 0"); a(f"s_cbranch_scc0 {Le}")
        a(f"s_add_u32 s68, s{sEpoch}, 1"); a(f"v_mov_b32 v{tmp}, s68")
        a("s_mov_b64 exec, 1")
        a(f"buffer_store_dword v{tmp}, v{tmp+2}, {WS}, 0 offen sc1")
        self.exec_full()
        a(f"s_branch {Le}")
        a(f"{LB}:")
        a("s_sub_u32 s79, s79, 80")
        final(1)
        a(f"{Le}:")
        self.finish("PR")

    def role_Q(self):
        a = self.a; V = self.V; S = self.S
        vL16, M0, Z, DS, AB, G, vTag = 2, 4, 8, 16, 24, 32, 3
        SA, PA = 64, 192
        tmp = 12
        t2 = 24
        a("; ---------------- role Q ----------------")
        self.code_prefetch("L_Q", "L_end", 14, 32, 1)
        a(f"s_sub_u32 s7, s7, 4"); a(f"s_add_u32 s{sH}, s6, s7")
        a(f"v_lshlrev_b32 v{vL16}, 4, v1")
        a(f"s_lshl_b32 s72, s{sH}, 17"); a(f"s_lshl_b32 s68, s{sW}, 14"); a("s_add_u32 s72, s72, s68")
        a(f"s_lshl_b32 s73, s{sW}, 14")
        a("s_waitcnt lgkmcnt(0)")
        self.srd(SRD1, pCKV, 4096 * 1024)
        for r in range(16):
            f = (r & 8) | ((r & 3) << 1)
            a(f"v_xor_b32 v{tmp + (r & 1)}, {16*f}, v{vL16}")
            a(f"s_add_u32 m0, s73, {1024*r}")
            a(f"s_add_u32 s74, s72, {1024*r}")
            a(f"buffer_load_dwordx4 v{tmp + (r & 1)}, {S(SRD1)}, s74 offen {self.nt} lds")
        self.srd(SRD2, pWOA, 4096 * 1280)
        N1 = self.N1
        if N1:
            a(f"v_lshrrev_b32 v62, 4, v1"); a("s_movk_i32 s68, 5120"); a(f"v_mul_u32_u24 v62, s68, v62"); a(f"v_and_b32 v63, 15, v1"); a(f"v_lshl_add_u32 v62, v63, 4, v62")
            a(f"s_lshl_b32 s68, s{sH}, 3"); a(f"s_add_u32 s68, s68, s{sW}"); a(f"s_mul_i32 s75, s68, {16*1280}")
            a(f"s_lshl_b32 s73, s{sW}, 12"); a(f"s_add_u32 s73, s73, 131072")
            for n in range(N1):
                rg, cb = divmod(n, 5)
                a(f"s_add_u32 m0, s73, {1024*n}")
                a(f"s_add_u32 s74, s75, {1280*rg + 256*cb}")
                a(f"buffer_load_dwordx4 v62, {S(SRD2)}, s74 offen {self.nt} lds")
        self.common2()
        self.masks(M0, 1, tmp, tmp + 1)
        a(f"v_and_b32 v{tmp}, 3, v1"); a(f"v_lshlrev_b32 v{tmp}, 1, v{tmp}"); a(f"v_and_b32 v{tmp+1}, 8, v1"); a(f"v_or_b32 v{tmp}, v{tmp}, v{tmp+1}")
        a(f"v_lshrrev_b32 v{tmp+1}, 4, v1"); a(f"v_xor_b32 v{tmp}, v{tmp}, v{tmp+1}"); a(f"v_lshlrev_b32 v{tmp}, 4, v{tmp}")
        for m in range(4): a(f"v_xor_b32 v{Z+m}, {64*m}, v{tmp}")
        a(f"v_and_b32 v{tmp+2}, 15, v1")
        a(f"s_and_b32 s68, s{sW}, 3"); a("s_lshl_b32 s68, s68, 15"); a(f"v_lshl_add_u32 v{tmp+3}, v{tmp+2}, 10, s68")
        for m in range(4): a(f"v_add_u32 v{t2+m}, v{tmp+3}, v{Z+m}")
        a(f"v_bfe_u32 v{tmp}, v1, 2, 2")
        a(f"v_bfe_u32 v{tmp+1}, v1, 4, 1"); a(f"v_lshlrev_b32 v{tmp+1}, 3, v{tmp+1}"); a(f"v_lshl_or_b32 v{tmp+1}, v{tmp}, 1, v{tmp+1}")
        a(f"v_bfe_u32 v{tmp+3}, v1, 1, 1"); a(f"v_xor_b32 v{tmp+1}, v{tmp+1}, v{tmp+3}")
        a(f"s_and_b32 s68, s{sW}, 1"); a("s_lshl_b32 s68, s68, 3"); a(f"v_xor_b32 v{tmp+1}, s68, v{tmp+1}")
        a(f"v_lshrrev_b32 v{tmp+3}, 4, v1"); a(f"v_lshl_add_u32 v{tmp}, v{tmp+3}, 3, v{tmp}")
        a(f"v_lshlrev_b32 v{tmp}, 10, v{tmp}"); a(f"v_and_b32 v{tmp+3}, 1, v1"); a(f"v_lshl_add_u32 v{tmp}, v{tmp+3}, 3, v{tmp}")
        a(f"s_lshr_b32 s68, s{sW}, 1"); a("s_lshl_b32 s68, s68, 8"); a(f"v_add_u32 v{tmp}, s68, v{tmp}")
        for ct in range(4):
            a(f"v_xor_b32 v{t2+4+ct}, {2*ct}, v{tmp+1}"); a(f"v_lshl_add_u32 v{t2+4+ct}, v{t2+4+ct}, 4, v{tmp}")
        a(f"s_waitcnt vmcnt({N1})")
        self.tag(vTag)
        a("s_barrier")
        self.stamp(1)
        for kt in range(2):
            for ks in range(16):
                a(f"ds_read_b128 {V(SA+64*kt+4*ks)}, v{t2+(ks&3)} offset:{256*(ks>>2)+16384*kt}")
            a("s_waitcnt lgkmcnt(8)")
        for half in range(2):
            for ct in range(4):
                for kk in range(2):
                    for hh in range(2):
                        r = PA + 16 * ct + 4 * (2 * half + kk) + 2 * hh
                        a(f"ds_read_b64_tr_b16 {V(r,2)}, v{t2+4+ct} offset:{(32*kk+4*hh)*1024}")
                a("s_waitcnt lgkmcnt(8)")
            if half == 0:
                for ct in range(4): a(f"v_add_u32 v{t2+4+ct}, 0x10000, v{t2+4+ct}")
        a("s_waitcnt lgkmcnt(0)")
        a("s_barrier")
        self.stamp(2)
        WL = 98304
        NL = self.NL
        vWO = 62
        a(f"v_lshrrev_b32 v{vWO}, 4, v1"); a("s_movk_i32 s68, 5120"); a(f"v_mul_u32_u24 v{vWO}, s68, v{vWO}"); a(f"v_lshl_add_u32 v{vWO}, v{tmp+2}, 4, v{vWO}")
        a(f"s_lshl_b32 s68, s{sH}, 3"); a(f"s_add_u32 s68, s68, s{sW}"); a(f"s_mul_i32 s72, s68, {16*1280}")
        a(f"s_lshl_b32 s73, s{sW}, 12"); a(f"s_add_u32 s73, s73, {WL}")
        assert N1 <= 4 and NL - N1 <= 8
        if N1: assert NL - N1 <= 4 or True
        for n in range(N1, NL):
            rg, cb = divmod(n, 5)
            m = n - N1
            a(f"s_add_u32 m0, s73, {1024*(m & 3) - 32768*(m >> 2)}")
            a(f"s_add_u32 s74, s72, {1280*rg + 256*cb}")
            a(f"buffer_load_dwordx4 v{vWO}, {S(SRD2)}, s74 offen {self.nt} lds")
        self.code_prefetch("L_Q_t", "L_end", 14 + 1, 63, 1)
        a("L_Q_t:")
        a(f"s_lshl_b32 s76, s{sW}, 13"); a(f"s_add_u32 s76, s76, {WS_QABS}"); a("s_add_u32 s77, s76, 4096")
        a(f"v_mov_b32 v{tmp}, 0")
        def gather_ind(): a(f"buffer_load_dwordx4 {V(G)}, v{tmp}, {WS}, s76 offen sc1")
        self.poll_loop(gather_ind, [G + 3], sleep=2, name="qind")
        def gather_qabs():
            for i in range(8):
                a(f"buffer_load_dwordx4 {V(G+4*i)}, v{vL16}, {WS}, s{76 if i < 4 else 77} offen offset:{1024*(i&3)} sc1")
        self.poll_loop(gather_qabs, [G + 4 * i + 3 for i in range(8)], sleep=0, name="qabs")
        self.stamp(3)
        a(f"s_bfe_u32 s68, s{sW}, 0x10001"); a("s_lshl_b32 s68, s68, 7"); a(f"v_lshlrev_b32 v{tmp}, 3, v1"); a(f"v_xor_b32 v{tmp}, s68, v{tmp}")
        a(f"s_lshl_b32 s68, s{sW}, 12")
        for ii in range(4):
            a(f"v_xor_b32 v{t2+ii}, {32*ii}, v{tmp}"); a(f"v_add_u32 v{t2+ii}, s68, v{t2+ii}")
        for i in range(8):
            r = G + 4 * i
            self.unpack(r)
            a(f"v_cvt_pk_bf16_f32 v{r}, v{r}, v{r+1}"); a(f"v_cvt_pk_bf16_f32 v{r+1}, v{r+2}, v{r+3}")
            a(f"ds_write_b64 v{t2+(i>>1)}, {V(r,2)} offset:{1024*(i>>1)+512*(i&1)}")
        a(f"s_lshr_b32 s68, s{sW}, 2"); a("s_lshl_b32 s68, s68, 14"); a(f"v_lshl_add_u32 v{tmp+3}, v{tmp+2}, 10, s68")
        for m in range(4): a(f"v_add_u32 v{t2+4+m}, v{tmp+3}, v{Z+m}")
        a("s_waitcnt lgkmcnt(0)")
        a("s_barrier")
        for ks in range(8): a(f"ds_read_b128 {V(G+4*ks)}, v{t2+4+(ks&3)} offset:{256*(ks>>2)}")
        for ks in range(16):
            a(f"s_waitcnt lgkmcnt({min(7, 15-ks)})")
            for kt in range(2):
                a(f"v_mfma_f32_16x16x32_bf16 {V(DS+4*kt)}, {V(SA+64*kt+4*ks)}, {V(G+4*(ks&7))}, {'0' if ks == 0 else V(DS+4*kt)}")
            if ks < 8:
                k2 = ks + 8
                a(f"ds_read_b128 {V(G+4*ks)}, v{t2+4+(k2&3)} offset:{256*(k2>>2)}")
        WO, YD = 96, 176
        def wo_load(n):
            rg, cb = divmod(n, 5)
            a(f"s_add_u32 s73, s72, {1280*rg}")
            a(f"buffer_load_dwordx4 {V(WO+4*n)}, v{vWO}, {S(SRD2)}, s73 offen offset:{256*cb} {self.nt}")
        vM = tmp; SM, SS, PO = 32768, 33280, 36864
        a(f"v_max3_f32 v{vM}, v{DS}, v{DS+1}, v{DS+2}"); a(f"v_max3_f32 v{vM}, v{vM}, v{DS+3}, v{DS+4}")
        a(f"v_max3_f32 v{vM}, v{vM}, v{DS+5}, v{DS+6}"); a(f"v_max_f32 v{vM}, v{vM}, v{DS+7}")
        def allrows(r, op, t):
            a(f"v_mov_b32 v{t}, v{r}"); a(f"v_permlane16_swap_b32 v{r}, v{t}"); a(f"{op} v{r}, v{r}, v{t}")
            a(f"v_mov_b32 v{t}, v{r}"); a(f"v_permlane32_swap_b32 v{r}, v{t}"); a(f"{op} v{r}, v{r}, v{t}")
        allrows(vM, "v_max_f32", tmp + 1)
        a(f"s_lshr_b32 s68, s{sW}, 2"); a("s_lshl_b32 s68, s68, 8"); a(f"v_lshl_add_u32 v{t2}, v{tmp+2}, 4, s68")
        a(f"s_and_b32 s69, s{sW}, 3"); a("s_lshl_b32 s69, s69, 2"); a(f"v_add_u32 v{t2+1}, s69, v{t2}")
        a("s_mov_b32 exec_hi, 0"); a("s_mov_b32 exec_lo, 0xffff")
        a(f"ds_write_b32 v{t2+1}, v{vM} offset:{SM}")
        self.exec_full()
        a("s_waitcnt lgkmcnt(0)")
        a("s_barrier")
        a(f"ds_read_b128 {V(G)}, v{t2} offset:{SM}")
        a(f"v_and_b32 v{t2+2}, 3, v1"); a(f"v_lshlrev_b32 v{t2+2}, 1, v{t2+2}"); a(f"v_and_b32 v{t2+3}, 8, v1"); a(f"v_or_b32 v{t2+2}, v{t2+2}, v{t2+3}")
        a(f"v_lshrrev_b32 v{t2+3}, 5, v1"); a(f"v_xor_b32 v{t2+2}, v{t2+2}, v{t2+3}")
        a(f"s_and_b32 s69, s{sW}, 3"); a("s_lshl_b32 s69, s69, 2"); a(f"v_xor_b32 v{t2+2}, s69, v{t2+2}")
        a(f"v_bfe_u32 v{t2+3}, v1, 4, 1"); a(f"v_lshlrev_b32 v{t2+3}, 3, v{t2+3}")
        a(f"v_lshl_add_u32 v{t2+3}, v{tmp+2}, 8, v{t2+3}"); a("s_lshl_b32 s68, s68, 4"); a(f"v_add_u32 v{t2+3}, s68, v{t2+3}")
        a(f"v_lshl_add_u32 v{t2+4}, v{t2+2}, 4, v{t2+3}")
        a(f"v_xor_b32 v{t2+2}, 2, v{t2+2}"); a(f"v_lshl_add_u32 v{t2+5}, v{t2+2}, 4, v{t2+3}")
        a("s_waitcnt lgkmcnt(0)")
        a(f"v_max3_f32 v{vM}, v{G}, v{G+1}, v{G+2}"); a(f"v_max_f32 v{vM}, v{vM}, v{G+3}")
        a(f"v_mul_f32 v{vM}, s{sC1}, v{vM}")
        for k in range(8): a(f"v_fma_f32 v{DS+k}, v{DS+k}, s{sC1}, -v{vM}")
        for k in range(8): a(f"v_exp_f32 v{DS+k}, v{DS+k}")
        vS = tmp + 3
        a(f"v_add_f32 v{vS}, v{DS}, v{DS+1}")
        for k in range(2, 8): a(f"v_add_f32 v{vS}, v{vS}, v{DS+k}")
        for kt in range(2):
            a(f"v_cvt_pk_bf16_f32 v{DS+4*kt}, v{DS+4*kt}, v{DS+4*kt+1}"); a(f"v_cvt_pk_bf16_f32 v{DS+4*kt+1}, v{DS+4*kt+2}, v{DS+4*kt+3}")
            a(f"ds_write_b64 v{t2+4+kt}, {V(DS+4*kt,2)} offset:{PO}")
        allrows(vS, "v_add_f32", tmp + 1)
        a("s_mov_b32 exec_hi, 0"); a("s_mov_b32 exec_lo, 0xffff")
        a(f"ds_write_b32 v{t2+1}, v{vS} offset:{SS}")
        self.exec_full()
        a("s_waitcnt lgkmcnt(0)")
        a("s_barrier")
        self.stamp(4)
        a(f"v_lshlrev_b32 v{tmp+3}, 8, v{tmp+2}")
        for kk in range(4): a(f"v_add_u32 v{t2+kk}, v{tmp+3}, v{Z+kk}")
        for ht in range(2):
            for kk in range(4): a(f"ds_read_b128 {V(G+16*ht+4*kk)}, v{t2+kk} offset:{PO+4096*ht}")
        PD = SA
        for ht in range(2):
            a(f"s_waitcnt lgkmcnt({4 if ht == 0 else 0})")
            for kk in range(4):
                for ct in range(4):
                    d = PD + 16 * ht + 4 * ct
                    a(f"v_mfma_f32_16x16x32_bf16 {V(d)}, {V(PA+16*ct+4*kk)}, {V(G+16*ht+4*kk)}, {'0' if kk == 0 else V(d)}")
        TO = 65536
        a(f"v_lshrrev_b32 v{t2}, 4, v1")
        a(f"v_and_b32 v{t2+1}, 7, v1"); a(f"v_lshlrev_b32 v{t2+1}, 1, v{t2+1}"); a(f"v_xor_b32 v{t2+1}, v{t2+1}, v{t2}")
        a(f"s_lshl_b32 s68, s{sW}, 12"); a(f"s_add_u32 s68, s68, {TO}")
        a(f"v_lshl_add_u32 v{t2+2}, v{tmp+2}, 7, s68")
        for ct in range(4):
            a(f"v_xor_b32 v{t2+4+ct}, {4*ct}, v{t2+1}"); a(f"v_lshl_add_u32 v{t2+4+ct}, v{t2+4+ct}, 3, v{t2+2}")
        for ht in range(2):
            for ct in range(4):
                d = PD + 16 * ht + 4 * ct
                a(f"v_cvt_pk_bf16_f32 v{d}, v{d}, v{d+1}"); a(f"v_cvt_pk_bf16_f32 v{d+1}, v{d+2}, v{d+3}")
                a(f"ds_write_b64 v{t2+4+ct}, {V(d,2)} offset:{2048*ht}")
        a(f"v_lshrrev_b32 v{t2}, 3, v1"); a(f"v_and_b32 v{t2+1}, 7, v1")
        a(f"v_xor_b32 v{t2+2}, v{t2}, v{t2+1}"); a(f"v_lshlrev_b32 v{t2+2}, 4, v{t2+2}"); a(f"v_lshl_add_u32 v{t2+2}, v{t2}, 7, v{t2+2}"); a(f"v_add_u32 v{t2+2}, s68, v{t2+2}")
        a(f"v_lshlrev_b32 v{t2+1}, 4, v{t2+1}"); a(f"v_lshl_add_u32 v{t2+1}, v{t2}, 15, v{t2+1}")
        a(f"s_lshl_b32 s76, s{sH}, 10"); a(f"s_lshl_b32 s69, s{sW}, 7"); a("s_add_u32 s76, s76, s69"); a(f"s_add_u32 s76, s76, {WS_CTX}")
        a("s_waitcnt lgkmcnt(0)")
        for i in range(4): a(f"ds_read_b128 {V(G+4*i)}, v{t2+2} offset:{1024*i}")
        for i in range(4):
            a(f"s_waitcnt lgkmcnt({3-i})")
            a(f"buffer_store_dwordx4 {V(G+4*i)}, v{t2+1}, {WS}, s76 offen sc1")
            if i < 3: a("s_add_u32 s76, s76, 0x40000")
        if self.exp == 1: self.stamp(6)
        a("s_waitcnt vmcnt(0)")
        if self.exp == 1: self.stamp(7)
        a("s_barrier")
        L = self.lab("q1"); a(f"s_cmp_eq_u32 s{sW}, 0"); a(f"s_cbranch_scc0 {L}")
        a(f"v_and_b32 v{tmp}, 31, v1"); a(f"v_lshlrev_b32 v{tmp+1}, 4, v{tmp}")
        a(f"ds_read_b128 {V(PA)}, v{tmp+1} offset:{SM}"); a(f"ds_read_b128 {V(PA+4)}, v{tmp+1} offset:{SS}")
        a(f"v_lshlrev_b32 v{tmp}, 9, v{tmp}"); a(f"s_lshl_b32 s68, s{sH}, 4"); a(f"s_add_u32 s68, s68, {WS_ML}")
        a("s_waitcnt lgkmcnt(0)")
        a(f"v_max3_f32 v{PA}, v{PA}, v{PA+1}, v{PA+2}"); a(f"v_max_f32 v{PA}, v{PA}, v{PA+3}"); a(f"v_mul_f32 v{PA}, s{sC1}, v{PA}")
        a(f"v_pk_add_f32 {V(PA+4,2)}, {V(PA+4,2)}, {V(PA+6,2)}"); a(f"v_add_f32 v{PA+1}, v{PA+4}, v{PA+5}")
        a(f"v_mov_b32 v{PA+2}, 0"); a(f"v_mov_b32 v{PA+3}, v{vTag}")
        self.exec_lo32()
        a(f"buffer_store_dwordx4 {V(PA)}, v{tmp}, {WS}, s68 offen sc1")
        self.exec_full()
        a(f"{L}:")
        a("s_barrier")
        self.stamp(5)
        a(f"v_lshrrev_b32 v{vWO}, 4, v1"); a("s_movk_i32 s68, 5120"); a(f"v_mul_u32_u24 v{vWO}, s68, v{vWO}"); a(f"v_lshl_add_u32 v{vWO}, v{tmp+2}, 4, v{vWO}")
        for n in range(NL, 20): wo_load(n)
        if NL:
            a(f"s_lshl_b32 s68, s{sW}, 12"); a(f"s_add_u32 s68, s68, {WL}"); a(f"v_add_u32 v{vWO+1}, s68, v{vL16}")
            for n in range(N1): a(f"ds_read_b128 {V(WO+4*n)}, v{vWO+1} offset:{32768+1024*n}")
            for n in range(N1, min(NL, N1 + 4)): a(f"ds_read_b128 {V(WO+4*n)}, v{vWO+1} offset:{1024*(n-N1)}")
            assert NL <= N1 + 4
        a(f"v_lshrrev_b32 v{tmp}, 4, v1"); a(f"v_lshlrev_b32 v{tmp}, 4, v{tmp}")
        a(f"s_lshl_b32 s76, s{sH}, 9"); a(f"s_lshl_b32 s68, s{sW}, 6"); a("s_add_u32 s76, s76, s68"); a(f"s_add_u32 s76, s76, {WS_CTXF}")
        O = G
        def gather_cf(): a(f"buffer_load_dwordx4 {V(O)}, v{tmp}, {WS}, s76 offen sc1")
        self.poll_loop(gather_cf, [O + 3], sleep=2, name="qcf")
        a("s_waitcnt lgkmcnt(0)")
        if self.exp != 1: self.stamp(6)
        self.unpack(O)
        for v in range(4): a(f"v_cvt_pk_bf16_f32 v{O+v}, v{O+v}, v{O+v}")
        def ands(rg):
            ab = AB + 4 * (rg & 1)
            for t in range(4): a(f"v_and_b32 v{ab+t}, v{O+rg}, v{M0+t}")
        ands(0)
        for rg in range(4):
            if rg + 1 < 4: ands(rg + 1)
            ab = AB + 4 * (rg & 1)
            for cb in range(5):
                a(f"v_mfma_f32_16x16x32_bf16 {V(YD+4*cb)}, {V(ab)}, {V(WO+4*(5*rg+cb))}, {'0' if rg == 0 else V(YD+4*cb)}")
        YO = 45056
        a(f"v_and_b32 v{tmp}, 15, v1"); a(f"v_bfe_u32 v{tmp+1}, v1, 4, 1"); a(f"v_lshl_add_u32 v{tmp}, v{tmp}, 1, v{tmp+1}"); a(f"v_lshlrev_b32 v{tmp}, 4, v{tmp}")
        a(f"s_mul_i32 s68, s{sW}, 2560"); a(f"v_add_u32 v{tmp}, s68, v{tmp}")
        self.exec_lo32()
        for cb in range(5): a(f"ds_write_b128 v{tmp}, {V(YD+4*cb)} offset:{YO+512*cb}")
        self.exec_full()
        a("s_waitcnt lgkmcnt(0)")
        a("s_barrier")
        Le = self.lab("qend")
        a(f"v_lshlrev_b32 v{tmp}, 4, v0")
        a(f"s_cmp_lt_u32 s{sW}, 3"); a(f"s_cbranch_scc0 {Le}")
        for k in range(8): a(f"ds_read_b128 {V(G+4*k)}, v{tmp} offset:{YO+2560*k}")
        a(f"s_mul_i32 s68, s{sH}, 2560"); a(f"s_add_u32 s68, s68, {WS_YA}")
        a("v_cmp_gt_u32 vcc, 160, v0")
        a("s_waitcnt lgkmcnt(0)")
        self.tree_add(G, 8)
        self.pack(G, vTag)
        a("s_and_b64 exec, exec, vcc")
        a(f"buffer_store_dwordx4 {V(G)}, v{tmp}, {WS}, s68 offen sc1")
        self.exec_full()
        a(f"{Le}:")
        if self.exp != 1: self.stamp(7)
        self.finish("Q")

if __name__ == "__main__":
    import argparse
    ap = argparse.ArgumentParser()
    ap.add_argument("-o", default="k.s"); ap.add_argument("--prof", action="store_true"); ap.add_argument("--dbgst", action="store_true")
    ap.add_argument("--roles", default="BPQ"); ap.add_argument("--spin", type=int, default=20000); ap.add_argument("--nt", default="nt")
    for k, d in dict(D=5, D0=2, Ds=5, ns=0, Dv=5, pf=1, bar=3, n1=10, prioA=1, light=1, exp=0, NE=5, NL=8, rot=0, pf2=1, fast=0, bmap=0, N1=4).items(): ap.add_argument("--" + k, type=int, default=d)
    args = ap.parse_args()
    g = Gen3(prof=args.prof, D=args.D, spin=args.spin, roles=args.roles, nt=args.nt, dbgst=args.dbgst, D0=args.D0, Ds=args.Ds, ns=args.ns, Dv=args.Dv, pf=args.pf, bar=args.bar, n1=args.n1)
    g.prioA = args.prioA; g.light = args.light; g.exp = args.exp; g.NE = args.NE; g.NL = args.NL; g.rot = args.rot; g.pf2 = args.pf2; g.fast = args.fast; g.bmap = args.bmap; g.N1 = args.N1; g.lds = 163840 if args.NL else 131072
    open(args.o, "w").write(g.build())
    sys.path.insert(0, "exp"); import build
    print(build.build(args.o))
```

```python
import sys
import gen3 as G3
from gen3 import *
from gen3 import Gen3, NS

WS_CNT = 0xBA000

class Gen4(Gen3):
    NKS = 18
    hrot = 1
    def role_B(self):
        a = self.a; D = self.D; V = self.V; S = self.S
        vL16, M0, QF, DD, AB, T, T0, T1, U, vTag, vA, vB = 2, 4, 8, 12, 16, 24, 28, 29, 30, 37, 38, 39
        NK = self.NKS; NG = (NK + 3) // 4
        POOL0 = 48 * NK; NU = (1024 - POOL0) // 4
        KT = 40; VT = KT + 4 * NK
        KU = VT + 4 * NK; VU = KU + 16
        vC = VU + 16; vOne = vC + 1; vZ = vC + 2
        WA, WB, X, G = VT, VT + 16, VT + 32, VT + 36
        assert G + 40 <= vC and vZ < 248
        DA = 24
        tmp = 248
        L_PB, L_Q, L_O, L_M, L_L, L_F, L_PA, L_Y = 0, 4096, 8192, 12288, 12416, 12544, 16384, 20480
        a("; ---------------- role B ----------------")
        a("L_B:")
        self.code_prefetch("L_B", "L_PR", 254, 255, 1)
        if self.bmap == 0:
            a("s_sub_u32 s7, s7, 8")
            a("s_mul_i32 s68, s7, 43"); a("s_lshr_b32 s68, s68, 8")
            a(f"s_add_u32 s{sH}, s6, s68")
            a("s_mul_i32 s68, s68, 6"); a(f"s_sub_u32 s{sSub}, s7, s68")
        elif self.bmap == 1:
            a("s_sub_u32 s7, s2, 64")
            a(f"s_mul_i32 s{sH}, s7, 10923"); a(f"s_lshr_b32 s{sH}, s{sH}, 16")
            a(f"s_mul_i32 s68, s{sH}, 6"); a(f"s_sub_u32 s{sSub}, s7, s68")
        else:
            a("s_sub_u32 s7, s2, 64")
            a(f"s_and_b32 s{sH}, s7, 31"); a(f"s_lshr_b32 s{sSub}, s7, 5")
        a(f"v_lshlrev_b32 v{vL16}, 4, v1")
        a(f"v_lshrrev_b32 v{tmp}, 4, v1")
        a(f"v_and_b32 v{tmp+1}, 15, v1")
        a(f"v_lshlrev_b32 v{vB}, 15, v{tmp}"); a(f"v_lshl_add_u32 v{vB}, v{tmp+1}, 4, v{vB}")
        a(f"s_mul_i32 s68, s{sSub}, 7"); a(f"s_add_u32 s68, s68, s{sW}")
        a("s_cmp_lt_u32 s68, 40"); a("s_cselect_b32 s69, 0, 0x7f000000")
        a(f"s_cmp_lt_u32 s{sW}, 7"); a("s_cselect_b32 s69, s69, 0x7f000000")
        a("s_cmp_eq_u32 s69, 0"); a("s_cselect_b32 s68, s68, 0")
        a(f"v_or_b32 v{vB}, s69, v{vB}")
        a("s_lshl_b32 s74, s68, 5"); a(f"v_lshl_add_u32 v{vA}, v{tmp}, 3, s74")
        if self.hrot:
            a(f"s_add_u32 s101, s{sH}, s{sSub}"); a("s_and_b32 s101, s101, 3"); a(f"s_and_b32 s74, s{sH}, 28"); a("s_or_b32 s101, s101, s74")
        else:
            a(f"s_mov_b32 s101, s{sH}")
        a("s_lshl_b32 s73, s68, 17"); a("s_lshl_b32 s74, s101, 8"); a("s_add_u32 s73, s73, s74")
        a(f"s_lshl_b32 s68, s{sSub}, 3"); a(f"s_add_u32 s68, s68, s{sW}")
        a(f"s_mul_i32 s70, s68, {NK*1024}"); a(f"s_lshl_b32 s72, s{sH}, 20")
        a(f"s_add_u32 s83, s72, {POOL0*1024}")
        a("s_add_u32 s72, s72, s70")
        a(f"s_lshl_b32 s82, s{sH}, 7"); a(f"s_add_u32 s82, s82, {WS_CNT}")
        a(f"v_mov_b32 v{vZ}, 0"); a(f"v_mov_b32 v{vOne}, 1")
        a(f"s_lshl_b32 s68, s{sW}, 2"); a(f"v_mov_b32 v{tmp+5}, s68")
        a("s_mov_b64 exec, 1")
        a(f"ds_write_b32 v{tmp+5}, v{vZ} offset:{L_F}")
        a(f"ds_write_b32 v{vZ}, v{vZ} offset:{L_F+32}")
        a(f"ds_write_b32 v{tmp+5}, v{vZ} offset:{L_F+64}")
        self.exec_full()
        a("s_waitcnt lgkmcnt(0)")
        self.srd(SRD3, pWQA, 640 * 8192); self.srd(SRD4, pWQB, 640 * 8192)
        a(f"global_load_dwordx2 {V(X,2)}, v{vA}, s[{pAX}:{pAX+1}]")
        a(f"global_load_dwordx2 {V(X+2,2)}, v{vA}, s[{pBX}:{pBX+1}]")
        def wq_loads(br):
            for i in range(4):
                if i == 0: a("s_mov_b32 s69, s73")
                else: a("s_add_u32 s69, s69, 8192")
                a(f"buffer_load_dwordx4 {V((WB if br else WA)+4*i)}, v{vB}, {S(SRD4 if br else SRD3)}, s69 offen {self.nt}")
        self.srd(SRD1, pK, 32 << 20); self.srd(SRD2, pV, 32 << 20)
        a("s_mov_b32 s75, s72")
        def kv_load(srd, base, i, soff):
            if i and i % 4 == 0: a(f"s_add_u32 s{soff}, s{soff}, 4096")
            a(f"buffer_load_dwordx4 {V(base+4*i)}, v{vL16}, {S(srd)}, s{soff} offen offset:{1024*(i%4)} {self.nt}")
        D0 = self.D0
        late = self.prioA
        wq_loads(0)
        if not late:
            wq_loads(1)
            for i in range(D0): kv_load(SRD1, KT, i, 75)
        a("s_barrier")
        self.common2()
        L = self.lab("bz"); a(f"s_cmp_eq_u32 s{sW}, 7"); a(f"s_cbranch_scc0 {L}"); a(f"s_cmp_eq_u32 s{sSub}, 0"); a(f"s_cbranch_scc0 {L}")
        a("s_mov_b64 exec, 1")
        a(f"buffer_store_dword v{vOne}, v{vZ}, {WS}, s82 offen sc1")
        self.exec_full()
        a("s_waitcnt vmcnt(0)")
        a(f"{L}:")
        self.masks(M0, 1, tmp, tmp + 1)
        a(f"v_and_b32 v{tmp}, 15, v1"); a(f"v_bfe_u32 v{tmp+1}, v1, 4, 1")
        a(f"v_lshl_add_u32 v{tmp}, v{tmp}, 1, v{tmp+1}"); a(f"v_lshlrev_b32 v{tmp}, 4, v{tmp}")
        a(f"s_lshl_b32 s68, s{sW}, 9"); a(f"v_add_u32 v{vA}, s68, v{tmp}")
        sels = [(0, sLo), (0, sHi), (1, sLo), (1, sHi)]
        def project(br):
            for i in range(4):
                xr, sel = sels[i]; xr += X + 2 * br
                a(f"v_perm_b32 v{G+i}, v{xr}, v{xr}, s{sel}")
            self.rowacc(DD if br else DA, AB, M0, 4, lambda i: (G + i, None), lambda i: (WB if br else WA) + 4 * i)
        def publish(wv, fl, lo, wsb):
            L = self.lab("b1"); a(f"s_cmp_eq_u32 s{sW}, {wv}"); a(f"s_cbranch_scc0 {L}")
            def rd():
                a(f"ds_read_b128 {V(G+32)}, v{vZ} offset:{fl}"); a(f"ds_read_b128 {V(G+36)}, v{vZ} offset:{fl+16}")
            self.lds_spin(rd, [G + 32 + k for k in range(8)], "bf1")
            a(f"v_and_b32 v{tmp}, 31, v1"); a(f"v_lshlrev_b32 v{tmp}, 4, v{tmp}")
            for k in range(8): a(f"ds_read_b128 {V(G+4*k)}, v{tmp} offset:{lo+512*k}")
            a(f"s_mul_i32 s68, s101, {NS}"); a(f"s_add_u32 s68, s68, s{sSub}"); a("s_lshl_b32 s68, s68, 9"); a(f"s_add_u32 s68, s68, {wsb}")
            a("s_waitcnt lgkmcnt(0)")
            self.tree_add(G, 8)
            self.pack(G, vTag)
            self.exec_lo32()
            a(f"buffer_store_dwordx4 {V(G)}, v{tmp}, {WS}, s68 offen sc1")
            self.exec_full()
            a(f"{L}:")
        def write_part(br):
            self.exec_lo32()
            a(f"ds_write_b128 v{vA}, {V(DD if br else DA)} offset:{L_PB if br else L_PA}")
            a("s_mov_b32 exec_lo, 1")
            a(f"ds_write_b32 v{tmp+5}, v{vOne} offset:{L_F + (64 if br == 0 else 0)}")
            self.exec_full()
        a(f"s_waitcnt vmcnt({0 if late else 4 + D0})")
        self.stamp(1)
        project(0)
        self.tag(vTag)
        write_part(0)
        publish(0, L_F + 64, L_PA, WS_QA)
        if late:
            wq_loads(1)
            for i in range(D0): kv_load(SRD1, KT, i, 75)
        a(f"s_waitcnt vmcnt({D0})")
        project(1)
        write_part(1)
        publish(2, L_F, L_PB, WS_QB)
        n1 = self.n1; n2 = n1 + D + 1
        assert n2 < NK
        win = lambda i: self.Ds if i < self.ns else D
        def gather_q():
            for s in range(NS):
                a(f"buffer_load_dwordx4 {V(G+4*s)}, v{tmp+3}, {WS}, s76 offen offset:{512*s} sc1")
        for i in range(D0, NK):
            if i >= win(i): a(f"s_waitcnt vmcnt({win(i)-1})")
            kv_load(SRD1, KT, i, 75)
            if i == n1:
                L = self.lab("b2")
                a(f"v_and_b32 v{tmp+3}, 31, v1"); a(f"v_lshlrev_b32 v{tmp+3}, 4, v{tmp+3}")
                a(f"s_mul_i32 s76, s{sH}, {512*NS}"); a(f"s_add_u32 s76, s76, {WS_QB}")
                a(f"s_cmp_eq_u32 s{sW}, 1"); a(f"s_cbranch_scc0 {L}")
                gather_q()
                a(f"{L}:")
            if i == n2:
                L = self.lab("b3"); a(f"s_cmp_eq_u32 s{sW}, 1"); a(f"s_cbranch_scc0 {L}")
                self.poll_loop(gather_q, [G + 4 * s + 3 for s in range(NS)], first_issued=True,
                               first_wait=f"s_waitcnt vmcnt({n2-n1})", name="bq")
                for s in range(NS): self.unpack(G + 4 * s)
                self.tree_add(G, NS)
                a(f"v_cvt_pk_bf16_f32 v{G}, v{G}, v{G+1}")
                a(f"v_cvt_pk_bf16_f32 v{G+1}, v{G+2}, v{G+3}")
                a(f"v_lshrrev_b32 v{tmp+3}, 1, v{tmp+3}")
                self.exec_lo32()
                a(f"ds_write_b64 v{tmp+3}, {V(G,2)} offset:{L_Q}")
                a("s_mov_b32 exec_lo, 1")
                a(f"ds_write_b32 v{vZ}, v{vOne} offset:{L_F+32}")
                self.exec_full()
                a(f"{L}:")
        self.stamp(2)
        if self.bar & 1: a("s_barrier")
        a("s_mov_b32 s75, s72")
        def wait_q():
            a(f"v_and_b32 v{tmp}, 15, v1"); a(f"v_lshlrev_b32 v{tmp}, 4, v{tmp}")
            def rd():
                a(f"ds_read_b32 v{tmp+2}, v{vZ} offset:{L_F+32}")
                a(f"ds_read_b128 {V(QF)}, v{tmp} offset:{L_Q}")
            self.lds_spin(rd, [tmp + 2], "bq2")
        def kgroup(base, n, u):
            for r in range(4):
                for t in range(n):
                    kreg = base + 4 * t + r
                    if r == 0: a(f"v_dot2_f32_bf16 v{T+t}, v{kreg}, v{QF}, 0")
                    else: a(f"v_dot2c_f32_bf16 v{T+t}, v{kreg}, v{QF+r}")
            if n < 4:
                a(f"v_mov_b32 v{T0}, {f2u(NEG):#x}"); a(f"v_mov_b32 v{T1}, {f2u(NEG):#x}")
            for t in range(n):
                a(f"v_add_f32_dpp v{T1 if t & 1 else T0}, v{T+t}, v{T+t} row_ror:8 row_mask:0xf bank_mask:{'0xc' if t & 2 else '0x3'}")
            a(f"v_add_f32_dpp v{u}, v{T0}, v{T0} row_half_mirror row_mask:0xf bank_mask:0x5")
            a(f"v_add_f32_dpp v{u}, v{T1}, v{T1} row_half_mirror row_mask:0xf bank_mask:0xa")
            a(f"v_add_f32_dpp v{u}, v{u}, v{u} quad_perm:[2,3,0,1] row_mask:0xf bank_mask:0xf")
            a(f"v_add_f32_dpp v{u}, v{u}, v{u} quad_perm:[1,0,3,2] row_mask:0xf bank_mask:0xf")
        def allreduce(r, op, t):
            a(f"{op}_dpp v{r}, v{r}, v{r} row_ror:4 row_mask:0xf bank_mask:0xf")
            a(f"{op}_dpp v{r}, v{r}, v{r} row_ror:8 row_mask:0xf bank_mask:0xf")
            a(f"v_mov_b32 v{t}, v{r}"); a(f"v_permlane16_swap_b32 v{r}, v{t}"); a(f"{op} v{r}, v{r}, v{t}")
            a(f"v_mov_b32 v{t}, v{r}"); a(f"v_permlane32_swap_b32 v{r}, v{t}"); a(f"{op} v{r}, v{r}, v{t}")
        vM, vLs = tmp, tmp + 1
        def softmax():
            a(f"v_max3_f32 v{vM}, v{U}, v{U+1}, v{U+2}")
            k = 3
            while k < NG:
                if k + 1 < NG: a(f"v_max3_f32 v{vM}, v{vM}, v{U+k}, v{U+k+1}"); k += 2
                else: a(f"v_max_f32 v{vM}, v{vM}, v{U+k}"); k += 1
            allreduce(vM, "v_max_f32", tmp + 2)
            a(f"v_mul_f32 v{vM}, s{sC1}, v{vM}")
            for k in range(NG): a(f"v_fma_f32 v{U+k}, v{U+k}, s{sC1}, -v{vM}")
            for k in range(NG): a(f"v_exp_f32 v{U+k}, v{U+k}")
            a(f"v_add_f32 v{vLs}, v{U}, v{U+1}")
            for k in range(2, NG): a(f"v_add_f32 v{vLs}, v{vLs}, v{U+k}")
            for k in range(NG): a(f"v_cvt_pk_bf16_f32 v{U+k}, v{U+k}, v{U+k}")
            allreduce(vLs, "v_add_f32", tmp + 2)
        def pv_and(i, u=None, b=None):
            ab = AB + 4 * (i & 1)
            u = U + (i >> 2) if u is None else u
            b = (i & 3) if b is None else b
            for t in range(4):
                a(f"v_and_b32_dpp v{ab+t}, v{u}, v{M0+t} row_newbcast:{4*b} row_mask:0xf bank_mask:0xf")
        def pv_mfma(i, tile=None, first=False):
            ab = AB + 4 * (i & 1)
            tile = VT + 4 * i if tile is None else tile
            a(f"v_mfma_f32_16x16x32_bf16 {V(DD)}, {V(ab)}, {V(tile)}, {'0' if first else V(DD)}")
        def claim():
            a(f"v_mov_b32 v{vC}, 2")
            a("s_mov_b64 exec, 1")
            a(f"buffer_atomic_add v{vC}, v{vZ}, {WS}, s82 offen sc0")
            self.exec_full()
        pv = 0
        SM = 2 * NG
        D = self.Dv
        jA = NK - D
        for i in range(NK):
            a(f"s_waitcnt vmcnt({D-1})")
            kv_load(SRD2, VT, i, 75)
            if i == 1: wait_q()
            if i == jA: claim()
            if i == SM - 1 and self.bar & 2: a("s_barrier")
            if i < SM and i % 2 == 1: kgroup(KT + 16 * (i // 2), min(4, NK - 4 * (i // 2)), U + i // 2)
            if i == SM - 1:
                softmax(); pv_and(0)
            if i == SM: self.code_prefetch("L_B_t", "L_PR", 254, 255, 1)
            if i >= SM:
                lim = i - D
                for _ in range(2):
                    if pv <= lim and pv + 1 < NK:
                        pv_and(pv + 1); pv_mfma(pv, first=(pv == 0)); pv += 1
        assert jA > SM - 1 or True
        a("L_B_t:")
        self.stamp(3)
        WO = KT + 24
        vWo = tmp + 4
        a(f"v_lshrrev_b32 v{vWo}, 4, v1"); a("s_movk_i32 s68, 5120"); a(f"v_mul_u32_u24 v{vWo}, s68, v{vWo}")
        a(f"v_and_b32 v{tmp+5}, 15, v1"); a(f"v_lshl_add_u32 v{vWo}, v{tmp+5}, 4, v{vWo}")
        a(f"s_cmp_lt_u32 s{sSub}, 5"); a("s_cselect_b32 s68, 0, 0x7f000000"); a(f"v_or_b32 v{vWo}, s68, v{vWo}")
        a(f"s_lshl_b32 s68, s{sH}, 3"); a(f"s_add_u32 s68, s68, s{sW}"); a(f"s_mul_i32 s74, s68, {16*1280}"); a(f"s_lshl_b32 s68, s{sSub}, 8"); a("s_add_u32 s74, s74, s68")
        self.srd(SRD3, pWOB, 4096 * 1280)
        def wo_loads():
            for rg in range(4):
                a(f"buffer_load_dwordx4 {V(WO+4*rg)}, v{vWo}, {S(SRD3)}, s74 offen offset:{1280*rg} {self.nt}")
        def remainder(extra):
            p = pv
            while p < NK:
                a(f"s_waitcnt vmcnt({NK-1-p+extra})")
                if p + 1 < NK: pv_and(p + 1)
                pv_mfma(p, first=(p == 0)); p += 1
        def unit_loads():
            a("s_lshl_b32 s68, s79, 12"); a("s_add_u32 s68, s68, s83")
            claim()
            for t in range(4): a(f"buffer_load_dwordx4 {V(KU+4*t)}, v{vL16}, {S(SRD1)}, s68 offen offset:{1024*t} {self.nt}")
            for t in range(4): a(f"buffer_load_dwordx4 {V(VU+4*t)}, v{vL16}, {S(SRD2)}, s68 offen offset:{1024*t} {self.nt}")
        LN = self.lab("bn"); LL = self.lab("bu"); LJ = self.lab("bj")
        a(f"s_waitcnt vmcnt({NK-1-jA})")
        a(f"v_readfirstlane_b32 s79, v{vC}")
        a("s_bitcmp1_b32 s79, 0"); a(f"s_cbranch_scc1 {LN}_r")
        a("s_waitcnt vmcnt(0)")
        a(f"v_readfirstlane_b32 s79, v{vC}")
        a(f"{LN}_r:")
        a("s_lshr_b32 s79, s79, 1")
        a(f"s_cmp_lt_u32 s79, {NU}"); a(f"s_cbranch_scc0 {LN}")
        unit_loads()
        remainder(8)
        a(f"{LL}:")
        Uu = U; vMn = tmp + 2; vF = tmp + 3
        a("s_waitcnt vmcnt(4)")
        kgroup(KU, 4, Uu)
        a(f"v_mov_b32 v{vMn}, v{Uu}")
        allreduce(vMn, "v_max_f32", T0)
        a(f"v_mul_f32 v{vMn}, s{sC1}, v{vMn}")
        a(f"v_max_f32 v{vMn}, v{vMn}, v{vM}")
        a(f"v_sub_f32 v{vF}, v{vM}, v{vMn}")
        a(f"v_fma_f32 v{Uu}, v{Uu}, s{sC1}, -v{vMn}")
        a(f"v_exp_f32 v{vF}, v{vF}"); a(f"v_exp_f32 v{Uu}, v{Uu}")
        a(f"v_mov_b32 v{vM}, v{vMn}")
        a(f"v_mov_b32 v{vMn}, v{Uu}")
        a(f"v_cvt_pk_bf16_f32 v{Uu}, v{Uu}, v{Uu}")
        allreduce(vMn, "v_add_f32", T0)
        for v in range(4): a(f"v_mul_f32 v{DD+v}, v{vF}, v{DD+v}")
        a(f"v_fma_f32 v{vLs}, v{vLs}, v{vF}, v{vMn}")
        pv_and(0, Uu, 0)
        a("s_waitcnt vmcnt(0)")
        for t in range(4):
            if t + 1 < 4: pv_and(t + 1, Uu, t + 1)
            pv_mfma(t, VU + 4 * t)
        a(f"v_readfirstlane_b32 s79, v{vC}")
        a("s_lshr_b32 s79, s79, 1")
        a(f"s_cmp_lt_u32 s79, {NU}"); a(f"s_cbranch_scc0 {LL}_x")
        unit_loads()
        a(f"s_branch {LL}")
        a(f"{LL}_x:")
        wo_loads()
        a(f"s_branch {LJ}")
        a(f"{LN}:")
        wo_loads()
        remainder(4)
        a(f"{LJ}:")
        a("s_nop 7")
        self.stamp(4)
        a(f"s_lshl_b32 s68, s{sW}, 2"); a(f"v_mov_b32 v{tmp+4}, s68")
        self.exec_lo32()
        a(f"ds_write_b128 v{vA}, {V(DD)} offset:{L_O}")
        a("s_mov_b32 exec_lo, 1")
        a(f"ds_write_b32 v{tmp+4}, v{vM} offset:{L_M}")
        a(f"ds_write_b32 v{tmp+4}, v{vLs} offset:{L_L}")
        self.exec_full()
        R8 = KT
        vG = R8 + 18
        a(f"v_lshrrev_b32 v{vG}, 4, v1"); a(f"v_lshlrev_b32 v{vG}, 4, v{vG}")
        a(f"s_mul_i32 s76, s{sH}, {512*NS}"); a(f"s_add_u32 s78, s76, {WS_OB}")
        a(f"s_lshl_b32 s77, s{sH}, 7"); a(f"s_add_u32 s77, s77, {WS_MLB}")
        a("s_waitcnt lgkmcnt(0)")
        a("s_barrier")
        L = self.lab("b4"); a(f"s_cmp_eq_u32 s{sW}, 0"); a(f"s_cbranch_scc0 {L}")
        a(f"v_and_b32 v{tmp}, 31, v1"); a(f"v_lshlrev_b32 v{tmp}, 4, v{tmp}")
        G2 = VT; MM = G2 + 32; LLr = G2 + 40
        a(f"ds_read_b128 {V(MM)}, v{vZ} offset:{L_M}"); a(f"ds_read_b128 {V(MM+4)}, v{vZ} offset:{L_M+16}")
        a(f"ds_read_b128 {V(LLr)}, v{vZ} offset:{L_L}"); a(f"ds_read_b128 {V(LLr+4)}, v{vZ} offset:{L_L+16}")
        for k in range(8): a(f"ds_read_b128 {V(G2+4*k)}, v{tmp} offset:{L_O+512*k}")
        a(f"s_lshl_b32 s68, s{sSub}, 9"); a("s_add_u32 s68, s68, s78")
        a(f"s_lshl_b32 s69, s{sSub}, 4"); a("s_add_u32 s69, s69, s77")
        vMc = R8 + 16; ML = R8 + 20
        a("s_waitcnt lgkmcnt(10)")
        a(f"v_max3_f32 v{vMc}, v{MM}, v{MM+1}, v{MM+2}"); a(f"v_max3_f32 v{vMc}, v{vMc}, v{MM+3}, v{MM+4}")
        a(f"v_max3_f32 v{vMc}, v{vMc}, v{MM+5}, v{MM+6}"); a(f"v_max_f32 v{vMc}, v{vMc}, v{MM+7}")
        for k in range(8): a(f"v_sub_f32 v{MM+k}, v{MM+k}, v{vMc}")
        for k in range(8): a(f"v_exp_f32 v{MM+k}, v{MM+k}")
        a("s_waitcnt lgkmcnt(0)")
        a(f"v_mul_f32 v{ML+1}, v{MM}, v{LLr}")
        for v in range(4): a(f"v_mul_f32 v{G2+v}, v{MM}, v{G2+v}")
        for k in range(1, 8):
            a(f"v_fmac_f32 v{ML+1}, v{MM+k}, v{LLr+k}")
            for v in range(4): a(f"v_fmac_f32 v{G2+v}, v{MM+k}, v{G2+4*k+v}")
        self.pack(G2, vTag)
        self.exec_lo32()
        a(f"buffer_store_dwordx4 {V(G2)}, v{tmp}, {WS}, s68 offen sc1")
        a(f"v_mov_b32 v{ML}, v{vMc}")
        a(f"v_mov_b32 v{ML+2}, 0"); a(f"v_mov_b32 v{ML+3}, v{vTag}")
        a("s_mov_b32 exec_lo, 1")
        a(f"buffer_store_dwordx4 {V(ML)}, v{vZ}, {WS}, s69 offen sc1")
        self.exec_full()
        a(f"{L}:")
        self.stamp(5)
        Le = self.lab("bend")
        a(f"s_cmp_lt_u32 s{sSub}, 5"); a(f"s_cbranch_scc0 {Le}")
        EG = VT + 48; ME = EG + 12; L_C = 24576
        O = U
        L = self.lab("bc"); a(f"s_cmp_eq_u32 s{sW}, 0"); a(f"s_cbranch_scc0 {L}")
        a(f"v_lshrrev_b32 v{tmp+1}, 5, v1"); a(f"v_lshlrev_b32 v{tmp+2}, 4, v{tmp+1}")
        a(f"v_lshl_add_u32 v{tmp+1}, v{tmp+1}, 9, v{tmp}")
        def gather_ob():
            for j in range(3): a(f"buffer_load_dwordx4 {V(EG+4*j)}, v{tmp+1}, {WS}, s78 offen offset:{1024*j} sc1")
            for j in range(3): a(f"buffer_load_dwordx4 {V(ME+4*j)}, v{tmp+2}, {WS}, s77 offen offset:{32*j} sc1")
        self.poll_loop(gather_ob, [EG + 4 * j + 3 for j in range(6)], sleep=0, name="bob")
        self.stamp(6)
        vMx = T; vL = T + 1
        def half_allred(r, op, t):
            a(f"v_mov_b32 v{t}, v{r}"); a(f"v_permlane32_swap_b32 v{r}, v{t}"); a(f"{op} v{r}, v{r}, v{t}")
        a(f"v_max3_f32 v{vMx}, v{ME}, v{ME+4}, v{ME+8}")
        half_allred(vMx, "v_max_f32", T + 2)
        for j in range(3): self.unpack(EG + 4 * j)
        for j in range(3): a(f"v_sub_f32 v{ME+4*j}, v{ME+4*j}, v{vMx}")
        for j in range(3): a(f"v_exp_f32 v{ME+4*j}, v{ME+4*j}")
        a(f"v_mul_f32 v{vL}, v{ME}, v{ME+1}")
        for v in range(4): a(f"v_mul_f32 v{O+v}, v{ME}, v{EG+v}")
        for j in range(1, 3):
            a(f"v_fmac_f32 v{vL}, v{ME+4*j}, v{ME+4*j+1}")
            for v in range(4): a(f"v_fmac_f32 v{O+v}, v{ME+4*j}, v{EG+4*j+v}")
        a(f"v_mov_b32 v{EG}, v{vL}")
        for v in range(4): a(f"v_mov_b32 v{EG+1+v}, v{O+v}")
        a(f"v_permlane32_swap_b32 v{vL}, v{EG}")
        for v in range(4): a(f"v_permlane32_swap_b32 v{O+v}, v{EG+1+v}")
        a(f"v_add_f32 v{vL}, v{vL}, v{EG}")
        for v in range(4): a(f"v_add_f32 v{O+v}, v{O+v}, v{EG+1+v}")
        a(f"v_rcp_f32 v{vL}, v{vL}")
        for v in range(4): a(f"v_mul_f32 v{O+v}, v{vL}, v{O+v}")
        for v in range(4): a(f"v_cvt_pk_bf16_f32 v{O+v}, v{O+v}, v{O+v}")
        self.exec_lo32()
        a(f"ds_write_b128 v{tmp}, {V(O)} offset:{L_C}")
        self.exec_full()
        a("s_waitcnt lgkmcnt(0)")
        a(f"s_branch {L}_j")
        a(f"{L}:")
        a("s_waitcnt vmcnt(0)")
        a(f"{L}_j:")
        a(f"s_lshl_b32 s68, s{sW}, 6"); a(f"v_add_u32 v{vG}, s68, v{vG}")
        a("s_barrier")
        a(f"ds_read_b128 {V(O)}, v{vG} offset:{L_C}")
        a("s_waitcnt lgkmcnt(0)")
        self.rowacc(DD, AB, M0, 4, lambda i: (O + i, None), lambda i: WO + 4 * i)
        self.exec_lo32()
        a(f"ds_write_b128 v{vA}, {V(DD)} offset:{L_Y}")
        self.exec_full()
        a("s_waitcnt lgkmcnt(0)")
        a("s_barrier")
        a(f"s_cmp_eq_u32 s{sW}, 0"); a(f"s_cbranch_scc0 {Le}")
        a(f"v_and_b32 v{tmp}, 31, v1"); a(f"v_lshlrev_b32 v{tmp}, 4, v{tmp}")
        for k in range(8): a(f"ds_read_b128 {V(G2+4*k)}, v{tmp} offset:{L_Y+512*k}")
        a(f"s_mul_i32 s68, s{sH}, 2560"); a(f"s_lshl_b32 s69, s{sSub}, 9"); a("s_add_u32 s68, s68, s69"); a(f"s_add_u32 s68, s68, {WS_YB}")
        a("s_waitcnt lgkmcnt(0)")
        self.tree_add(G2, 8)
        self.pack(G2, vTag)
        self.exec_lo32()
        a(f"buffer_store_dwordx4 {V(G2)}, v{tmp}, {WS}, s68 offen sc1")
        self.exec_full()
        a(f"{Le}:")
        self.stamp(7)
        self.finish("B")

if __name__ == "__main__":
    import argparse
    ap = argparse.ArgumentParser()
    ap.add_argument("-o", default="k.s"); ap.add_argument("--prof", action="store_true"); ap.add_argument("--dbgst", action="store_true")
    ap.add_argument("--roles", default="BPQ"); ap.add_argument("--spin", type=int, default=20000); ap.add_argument("--nt", default="nt")
    for k, d in dict(D=4, D0=2, Ds=4, ns=0, Dv=6, pf=1, bar=3, n1=9, prioA=1, NL=8, N1=4, pf2=1, bmap=1, NKS=17, hrot=1).items(): ap.add_argument("--" + k, type=int, default=d)
    args = ap.parse_args()
    g = Gen4(prof=args.prof, D=args.D, spin=args.spin, roles=args.roles, nt=args.nt, dbgst=args.dbgst, D0=args.D0, Ds=args.Ds, ns=args.ns, Dv=args.Dv, pf=args.pf, bar=args.bar, n1=args.n1)
    g.prioA = args.prioA; g.NL = args.NL; g.N1 = args.N1; g.pf2 = args.pf2; g.bmap = args.bmap; g.NKS = args.NKS; g.hrot = args.hrot; g.lds = 163840 if args.NL else 131072
    open(args.o, "w").write(g.build())
    sys.path.insert(0, "exp"); import build
    print(build.build(args.o))
```

```python
import sys, struct
from asmlib import Asm

KN = "concat_heads__compressed_kv_cla__mha_block_cached__decode_kernel"

WS_QB   = 0x1000
WS_QA   = 0xA0000
WS_QABS = 0x20000
WS_ML   = 0x30000
WS_MLB  = 0x34000
WS_OB   = 0x38000
WS_YA   = 0x50000
WS_YB   = 0x78000
WS_PROF = 0xC0000
WS_CTX  = 0x100000
WS_SIZE = 0x300000

def f2u(x): return struct.unpack("<I", struct.pack("<f", x))[0]
C1 = 1.4426950408889634 / (128 ** 0.5)
NEG = -1.0e30

sW, sH, sSub = 3, 4, 5
WS = "s[8:11]"; OUT = "s[12:15]"
pAX, pCKV, pWQA, pWUK, pWUV, pWOA, pBX, pK, pV, pWQB, pWOB, pOUT, pDBG, pWS = 16, 18, 20, 22, 24, 26, 28, 30, 32, 34, 36, 38, 40, 42
SRD1, SRD2, SRD3, SRD4 = 44, 48, 52, 56
sEpoch, sTag = 60, 61
sP0, sP1, sP2, sU, sLo, sHi = 62, 63, 64, 65, 66, 67
sT = 68
sC1 = 80
sCnt = 81
sBias = 82
sProf = 84

class Gen:
    lds = 131072
    pf2 = 0
    def __init__(self, prof=False, D=5, spin=20000, roles="BPQ", dbg=False, nt="nt", dbgst=False, D0=2, Ds=2, ns=8, Dv=5, pf=1, slp=2, nu=4, n1=12, lin="", bar=0, tlb=0):
        self.a = Asm(); self.prof = prof; self.D = D; self.spin = spin; self.roles = roles; self.dbg = dbg
        self.nlab = 0; self.nstamp = 0; self.nt = nt; self.pf = pf; self.slp = slp; self.nu = nu; self.n1 = n1; self.lin = lin; self.bar = bar; self.tlb = tlb; self.D0 = D0; self.Ds = Ds; self.ns = ns; self.Dv = Dv; self.dbgst = dbgst
    def lab(self, base):
        self.nlab += 1; return f"L_{base}_{self.nlab}"
    def stamp(self, k):
        if self.prof or self.dbgst: self.a(f"s_memrealtime s[{sProf+2*k}:{sProf+2*k+1}]")
    def srd(self, base, ptr, size):
        a = self.a
        a(f"s_mov_b32 s{base}, s{ptr}"); a(f"s_mov_b32 s{base+1}, s{ptr+1}")
        a(f"s_mov_b32 s{base+2}, {size}"); a(f"s_mov_b32 s{base+3}, 0x20000")
    @staticmethod
    def S(base): return f"s[{base}:{base+3}]"
    @staticmethod
    def V(r, n=4): return f"v[{r}:{r+n-1}]"
    def pack(self, r, vtag):
        a = self.a
        a(f"v_perm_b32 v{r}, v{r}, v{r+3}, s{sP0}")
        a(f"v_perm_b32 v{r+1}, v{r+1}, v{r+3}, s{sP1}")
        a(f"v_perm_b32 v{r+2}, v{r+2}, v{r+3}, s{sP2}")
        a(f"v_mov_b32 v{r+3}, v{vtag}")
    def unpack(self, r):
        a = self.a
        a(f"v_perm_b32 v{r+3}, v{r+1}, v{r}, s{sU}")
        a(f"v_lshl_or_b32 v{r+3}, v{r+2}, 24, v{r+3}")
    def check(self, regs, acc, val=None):
        a = self.a
        val = val or f"s{sTag}"
        for i, r in enumerate(regs):
            if i == 0: a(f"v_cmp_ne_u32 s[{acc}:{acc+1}], {val}, v{r}")
            else:
                a(f"v_cmp_ne_u32 vcc, {val}, v{r}")
                a(f"s_or_b64 s[{acc}:{acc+1}], s[{acc}:{acc+1}], vcc")
    def poll_loop(self, issue, regs, first_issued=False, first_wait=None, sleep=1, name="poll"):
        a = self.a
        L = self.lab(name); Lc = L + "_c"; Ld = L + "_d"
        a(f"s_mov_b32 s{sCnt}, 0")
        if first_issued:
            a(first_wait)
            a(f"s_branch {Lc}")
        a(f"{L}:")
        issue()
        a("s_waitcnt vmcnt(0)")
        if first_issued: a(f"{Lc}:")
        self.check(regs, 6)
        a("s_cmp_eq_u64 s[6:7], 0")
        a(f"s_cbranch_scc1 {Ld}")
        a(f"s_add_u32 s{sCnt}, s{sCnt}, 1")
        a(f"s_cmp_lt_u32 s{sCnt}, {self.spin}")
        a(f"s_cbranch_scc0 {Ld}")
        if sleep: a(f"s_sleep {sleep}")
        a(f"s_branch {L}")
        a(f"{Ld}:")
        if self.prof:
            a(f"s_min_u32 s{sCnt}, s{sCnt}, 255"); a("s_lshl_b32 s100, s100, 8"); a(f"s_or_b32 s100, s100, s{sCnt}")
    def lds_spin(self, reads, regs, name):
        a = self.a
        L = self.lab(name)
        a(f"s_mov_b32 s{sCnt}, 0")
        a(f"{L}:")
        reads()
        a("s_waitcnt lgkmcnt(0)")
        self.check(regs, 6, "1")
        a("s_cmp_eq_u64 s[6:7], 0"); a(f"s_cbranch_scc1 {L}_d")
        a(f"s_add_u32 s{sCnt}, s{sCnt}, 1"); a(f"s_cmp_lt_u32 s{sCnt}, {self.spin * 8}"); a(f"s_cbranch_scc1 {L}")
        a(f"{L}_d:")
    def masks(self, m0, vlane, t0, t1):
        a = self.a
        a(f"v_and_b32 v{t0}, 1, v{vlane}")
        a(f"v_lshlrev_b32 v{t0}, 4, v{t0}")
        a(f"v_mov_b32 v{t1}, 0xffff")
        a(f"v_lshlrev_b32 v{t0}, v{t0}, v{t1}")
        a(f"v_bfe_u32 v{t1}, v{vlane}, 1, 2")
        for t in range(4):
            a(f"v_cmp_eq_u32 vcc, {t}, v{t1}")
            a(f"v_cndmask_b32 v{m0+t}, 0, v{t0}, vcc")
    def code_prefetch(self, lab0, lab1, vt, vd, nload, wave=7):
        if self.pf != 1: return
        if lab0.endswith("_t") and not self.pf2: return
        a = self.a
        L = self.lab("pf")
        a(f"s_cmp_eq_u32 s{sW}, {wave}"); a(f"s_cbranch_scc0 {L}")
        a("s_getpc_b64 s[70:71]")
        a(f"{L}_pc:")
        if lab0.endswith("_t"): a(f"s_add_u32 s70, s70, {lab0}-{L}_pc"); a("s_addc_u32 s71, s71, 0")
        else: a(f"s_sub_u32 s70, s70, {L}_pc-{lab0}"); a("s_subb_u32 s71, s71, 0")
        for k in range(nload):
            a(f"v_lshlrev_b32 v{vt}, 7, v1")
            if k: a(f"v_add_u32 v{vt}, {8192*k}, v{vt}")
            a(f"v_min_u32 v{vt}, {lab1}-{lab0}-4, v{vt}")
            a(f"global_load_dword v{vd}, v{vt}, s[70:71]")
        a(f"{L}:")
    def tlb_warm(self, items, vz, vd, wave=6):
        if not self.tlb: return
        a = self.a
        L = self.lab("tw")
        a(f"s_cmp_eq_u32 s{sW}, {wave}"); a(f"s_cbranch_scc0 {L}")
        a(f"v_mov_b32 v{vz}, 0")
        a("s_mov_b64 exec, 1")
        for srd, soff in items:
            a(f"buffer_load_dword v{vd}, v{vz}, {srd}, {soff} offen")
        self.exec_full()
        a(f"{L}:")
    def exec_lo32(self): self.a("s_mov_b32 exec_hi, 0")
    def exec_full(self): self.a("s_mov_b64 exec, -1")

    def prologue(self):
        a = self.a
        a("s_cmp_ge_u32 s2, 256"); a("s_cbranch_scc1 L_end")
        a("s_load_dwordx4 s[40:43], s[0:1], 96")
        a("s_load_dwordx16 s[16:31], s[0:1], 0")
        a("s_load_dwordx8 s[32:39], s[0:1], 64")
        self.stamp(0)
        if self.prof: a("s_mov_b32 s100, 0")
        a("v_lshrrev_b32 v2, 6, v0")
        a("v_and_b32 v1, 63, v0")
        a(f"v_readfirstlane_b32 s{sW}, v2")
        if self.pf == 2:
            a(f"s_cmp_eq_u32 s{sW}, 7"); a("s_cbranch_scc0 L_pf0")
            a("s_getpc_b64 s[70:71]")
            a("L_pf0_pc:")
            for k in range(3):
                a("v_lshlrev_b32 v254, 7, v1")
                if k: a(f"v_add_u32 v254, {8192*k}, v254")
                a("v_min_u32 v254, L_end-L_pf0_pc-4, v254")
                a(f"global_load_dword v{32 if False else 255}, v254, s[70:71]")
            a("L_pf0:")
        a("s_and_b32 s6, s2, 7")
        a("s_lshr_b32 s7, s2, 3")
        a(f"s_mov_b32 s{sP0}, 0x07060501"); a(f"s_mov_b32 s{sP1}, 0x07060502"); a(f"s_mov_b32 s{sP2}, 0x07060503")
        a(f"s_mov_b32 s{sU}, 0x0c04000c"); a(f"s_mov_b32 s{sLo}, 0x01000100"); a(f"s_mov_b32 s{sHi}, 0x03020302")
        a(f"s_mov_b32 s{sC1}, {f2u(C1):#x}")
        a("s_lshl_b32 s6, s6, 2")
        a("s_cmp_lt_u32 s7, 8"); a("s_cbranch_scc1 L_PR")
        a("s_cmp_lt_u32 s7, 12"); a("s_cbranch_scc1 L_Q")
    def common2(self):
        a = self.a
        a(f"s_load_dword s{sEpoch}, s[{pWS}:{pWS+1}], 0")
        self.srd(8, pWS, WS_SIZE)
        self.srd(12, pOUT, 2560)
    def tag(self, vtag):
        a = self.a
        a("s_waitcnt lgkmcnt(0)")
        a(f"s_mul_i32 s{sTag}, s{sEpoch}, 0x9E3779B1")
        a(f"s_add_u32 s{sTag}, s{sTag}, 0x85EBCA6B")
        a(f"v_mov_b32 v{vtag}, s{sTag}")
    def finish(self, role=None):
        a = self.a
        if self.prof:
            a("s_waitcnt lgkmcnt(0)")
            a("s_mov_b64 exec, -1")
            a("v_mov_b32 v250, 0")
            for k in range(17):
                a(f"v_writelane_b32 v250, s{sProf+k}, {k}")
            a("v_and_b32 v251, 63, v0"); a("v_lshlrev_b32 v251, 2, v251")
            a(f"s_lshl_b32 s6, s2, 3"); a(f"s_add_u32 s6, s6, s{sW}"); a("s_lshl_b32 s6, s6, 7"); a(f"s_add_u32 s6, s6, {WS_PROF}")
            a("s_mov_b32 exec_hi, 0"); a("s_mov_b32 exec_lo, 0x1ffff")
            a(f"buffer_store_dword v250, v251, {WS}, s6 offen")
        if self.dbgst and role:
            wg, base, ks = {"PR": (0, 0, [1, 4, 5, 6, 7]), "B": (255, 5, [2, 4, 5, 7]), "Q": (64, 9, [1, 2, 3, 4, 5, 6, 7])}[role]
            Ls = self.lab("dbg")
            a("s_waitcnt lgkmcnt(0)")
            a(f"s_cmp_eq_u32 s{sW}, 0"); a(f"s_cbranch_scc0 {Ls}")
            a(f"s_cmp_eq_u32 s2, {wg}"); a(f"s_cbranch_scc0 {Ls}")
            a("s_mov_b64 exec, -1")
            a("v_mov_b32 v250, 0")
            for n, k in enumerate(ks):
                a(f"s_sub_u32 s7, s{sProf+2*k}, s{sProf}"); a(f"v_writelane_b32 v250, s7, {n}")
            a("v_and_b32 v251, 63, v0"); a("v_lshlrev_b32 v251, 2, v251"); a(f"v_add_u32 v251, {4*base}, v251")
            a("s_mov_b32 exec_hi, 0"); a(f"s_mov_b32 exec_lo, {(1 << len(ks)) - 1}")
            a(f"global_store_dword v251, v250, s[{pDBG}:{pDBG+1}]")
            a(f"{Ls}:")
        a("s_endpgm")

    def role_B(self):
        a = self.a; D = self.D; V = self.V; S = self.S
        vL16, vLast, M0, QF, DD, AB, T, T0, T1, U, vTag, vA, vB = 2, 3, 4, 8, 12, 16, 24, 28, 29, 30, 37, 38, 39
        KT, VT = 40, 144
        WA, WB, X, G = 144, 160, 176, 180
        DA = 24
        tmp = 248; vOne = vB
        NK = 26
        L_PB, L_Q, L_O, L_M, L_L, L_F, L_PA, L_Y = 0, 4096, 8192, 12288, 12416, 12544, 16384, 20480
        a("; ---------------- role B ----------------")
        a("L_B:")
        self.code_prefetch("L_B", "L_PR", 254, 255, 1)
        a("s_sub_u32 s7, s7, 12")
        a("s_mul_i32 s68, s7, 52"); a("s_lshr_b32 s68, s68, 8")
        a(f"s_add_u32 s{sH}, s6, s68")
        a("s_mul_i32 s68, s68, 5"); a(f"s_sub_u32 s{sSub}, s7, s68")
        a(f"v_lshlrev_b32 v{vL16}, 4, v1")
        a(f"v_lshrrev_b32 v{tmp}, 4, v1")
        a(f"v_and_b32 v{tmp+1}, 15, v1")
        a(f"v_lshlrev_b32 v{vB}, 15, v{tmp}"); a(f"v_lshl_add_u32 v{vB}, v{tmp+1}, 4, v{vB}")
        a(f"s_lshl_b32 s68, s{sSub}, 3"); a(f"s_add_u32 s68, s68, s{sW}")
        a("s_lshl_b32 s74, s68, 5"); a(f"v_lshl_add_u32 v{vA}, v{tmp}, 3, s74")
        a("s_lshl_b32 s73, s68, 17"); a(f"s_lshl_b32 s74, s{sH}, 8"); a("s_add_u32 s73, s73, s74")
        a("s_lshl_b32 s69, s68, 7"); a("s_mul_hi_u32 s70, s69, 0xCCCCCCCD"); a("s_lshr_b32 s70, s70, 2")
        a("s_add_u32 s69, s69, 128"); a("s_mul_hi_u32 s71, s69, 0xCCCCCCCD"); a("s_lshr_b32 s71, s71, 2")
        a("s_sub_u32 s71, s71, s70")
        a(f"s_lshl_b32 s72, s{sH}, 20"); a("s_lshl_b32 s70, s70, 10"); a("s_add_u32 s72, s72, s70")
        a("s_cmp_eq_u32 s71, 26")
        a(f"s_cselect_b32 s{sBias}, 0, {f2u(NEG):#x}")
        a(f"s_cselect_b32 s74, 0, 0x7f000000")
        a(f"v_or_b32 v{vLast}, s74, v{vL16}")
        a(f"v_mov_b32 v{tmp+2}, 0"); a(f"v_mov_b32 v{tmp+3}, 0")
        a(f"s_lshl_b32 s68, s{sW}, 3"); a(f"v_mov_b32 v{tmp+4}, s68"); a(f"s_lshl_b32 s68, s{sW}, 2"); a(f"v_mov_b32 v{tmp+5}, s68")
        a("s_mov_b64 exec, 1")
        a(f"ds_write_b64 v{tmp+4}, {V(tmp+2,2)} offset:{L_M}")
        a(f"ds_write_b32 v{tmp+5}, v{tmp+2} offset:{L_F}")
        a(f"ds_write_b32 v{tmp+2}, v{tmp+2} offset:{L_F+32}")
        self.exec_full()
        a("s_waitcnt lgkmcnt(0)")
        if "wq" in self.lin:
            a(f"v_lshlrev_b32 v{vB}, 4, v1"); a(f"s_mul_i32 s68, s{sH}, 5"); a(f"s_add_u32 s68, s68, s{sSub}"); a("s_lshl_b32 s68, s68, 3"); a(f"s_add_u32 s68, s68, s{sW}"); a("s_lshl_b32 s73, s68, 12")
        self.srd(SRD4, pWQB, 640 * 8192)
        a(f"global_load_dwordx2 {V(X+2,2)}, v{vA}, s[{pBX}:{pBX+1}]")
        for i in range(4):
            if i == 0: a("s_mov_b32 s69, s73")
            else: a(f"s_add_u32 s69, s69, {1024 if 'wq' in self.lin else 8192}")
            a(f"buffer_load_dwordx4 {V(WB+4*i)}, v{vB}, {S(SRD4)}, s69 offen {self.nt}")
        self.srd(SRD1, pK, 32 << 20); self.srd(SRD2, pV, 32 << 20)
        a("s_mov_b32 s75, s72")
        def kv_load(srd, base, i, soff):
            if i and i % 4 == 0: a(f"s_add_u32 s{soff}, s{soff}, 4096")
            voff = vLast if i == NK - 1 else vL16
            a(f"buffer_load_dwordx4 {V(base+4*i)}, v{voff}, {S(srd)}, s{soff} offen offset:{1024*(i%4)} {self.nt}")
        D0 = self.D0
        for i in range(D0): kv_load(SRD1, KT, i, 75)
        a(f"v_mov_b32 v{vOne}, 1")
        a("s_barrier")
        self.common2()
        if self.tlb:
            self.srd(SRD3, pWOB, 4096 * 1280)
            a(f"s_mul_i32 s68, s{sH}, {128*1280}"); a("s_add_u32 s69, s72, 24576"); a(f"s_mov_b32 s70, {WS_OB}")
            self.tlb_warm([(S(SRD2), "s72"), (S(SRD2), "s69"), (S(SRD3), "s68"), (WS, "s70")], 254, 255)
        self.masks(M0, 1, tmp, tmp + 1)
        a(f"v_and_b32 v{tmp}, 15, v1"); a(f"v_bfe_u32 v{tmp+1}, v1, 4, 1")
        a(f"v_lshl_add_u32 v{tmp}, v{tmp}, 1, v{tmp+1}"); a(f"v_lshlrev_b32 v{tmp}, 4, v{tmp}")
        a(f"s_lshl_b32 s68, s{sW}, 9"); a(f"v_add_u32 v{vA}, s68, v{tmp}")
        sels = [(0, sLo), (0, sHi), (1, sLo), (1, sHi)]
        a(f"s_waitcnt vmcnt({D0})")
        self.stamp(1)
        for i in range(4):
            xr, sel = sels[i]; xr += X + 2
            a(f"v_perm_b32 v{G+i}, v{xr}, v{xr}, s{sel}")
        self.rowacc(DD, AB, M0, 4, lambda i: (G + i, None), lambda i: WB + 4 * i)
        self.tag(vTag)
        self.exec_lo32()
        a(f"ds_write_b128 v{vA}, {V(DD)} offset:{L_PB}")
        a("s_mov_b32 exec_lo, 1")
        a(f"ds_write_b32 v{tmp+5}, v{vOne} offset:{L_F}")
        self.exec_full()
        L = self.lab("b1"); a(f"s_cmp_eq_u32 s{sW}, 0"); a(f"s_cbranch_scc0 {L}")
        a(f"v_mov_b32 v{tmp+4}, 0")
        def rd():
            a(f"ds_read_b128 {V(G+32)}, v{tmp+4} offset:{L_F}"); a(f"ds_read_b128 {V(G+36)}, v{tmp+4} offset:{L_F+16}")
        self.lds_spin(rd, [G + 32 + k for k in range(8)], "bf1")
        a(f"v_and_b32 v{tmp}, 31, v1"); a(f"v_lshlrev_b32 v{tmp}, 4, v{tmp}")
        for k in range(8): a(f"ds_read_b128 {V(G+4*k)}, v{tmp} offset:{L_PB+512*k}")
        a(f"s_mul_i32 s68, s{sH}, 5"); a(f"s_add_u32 s68, s68, s{sSub}"); a("s_lshl_b32 s68, s68, 9"); a(f"s_add_u32 s68, s68, {WS_QB}")
        a("s_waitcnt lgkmcnt(0)")
        self.tree_add(G, 8)
        self.pack(G, vTag)
        self.exec_lo32()
        a(f"buffer_store_dwordx4 {V(G)}, v{tmp}, {WS}, s68 offen sc1")
        self.exec_full()
        a(f"{L}:")
        n1 = self.n1; n2 = n1 + D + 1
        win = lambda i: self.Ds if i < self.ns else D
        def gather_q():
            for s in range(5):
                a(f"buffer_load_dwordx4 {V(G+4*s)}, v{tmp+3}, {WS}, s76 offen offset:{512*s} sc1")
        for i in range(D0, NK):
            if i >= win(i): a(f"s_waitcnt vmcnt({win(i)-1})")
            kv_load(SRD1, KT, i, 75)
            if i == n1:
                L = self.lab("b2")
                a(f"v_and_b32 v{tmp+3}, 31, v1"); a(f"v_lshlrev_b32 v{tmp+3}, 4, v{tmp+3}")
                a(f"s_mul_i32 s76, s{sH}, 2560"); a(f"s_add_u32 s76, s76, {WS_QB}")
                a(f"s_cmp_eq_u32 s{sW}, 1"); a(f"s_cbranch_scc0 {L}")
                gather_q()
                a(f"{L}:")
            if i == n2:
                L = self.lab("b3"); a(f"s_cmp_eq_u32 s{sW}, 1"); a(f"s_cbranch_scc0 {L}")
                self.poll_loop(gather_q, [G + 4 * s + 3 for s in range(5)], first_issued=True,
                               first_wait=f"s_waitcnt vmcnt({n2-n1})", name="bq")
                for s in range(5): self.unpack(G + 4 * s)
                self.tree_add(G, 5)
                a(f"v_cvt_pk_bf16_f32 v{G}, v{G}, v{G+1}")
                a(f"v_cvt_pk_bf16_f32 v{G+1}, v{G+2}, v{G+3}")
                a(f"v_lshrrev_b32 v{tmp+3}, 1, v{tmp+3}")
                self.exec_lo32()
                a(f"ds_write_b64 v{tmp+3}, {V(G,2)} offset:{L_Q}")
                a("s_mov_b32 exec_lo, 1")
                a(f"v_mov_b32 v{tmp+3}, 0")
                a(f"ds_write_b32 v{tmp+3}, v{vOne} offset:{L_F+32}")
                self.exec_full()
                a(f"{L}:")
        self.stamp(2)
        if self.bar & 1: a("s_barrier")
        a("s_mov_b32 s75, s72")
        def wait_q():
            a(f"v_and_b32 v{tmp}, 15, v1"); a(f"v_lshlrev_b32 v{tmp}, 4, v{tmp}"); a(f"v_mov_b32 v{tmp+4}, 0")
            def rd():
                a(f"ds_read_b32 v{tmp+2}, v{tmp+4} offset:{L_F+32}")
                a(f"ds_read_b128 {V(QF)}, v{tmp} offset:{L_Q}")
            self.lds_spin(rd, [tmp + 2], "bq2")
        def kgroup(k):
            n = min(4, NK - 4 * k)
            for r in range(4):
                for u in range(n):
                    kreg = KT + 4 * (4 * k + u) + r
                    if r == 0: a(f"v_dot2_f32_bf16 v{T+u}, v{kreg}, v{QF}, 0")
                    else: a(f"v_dot2c_f32_bf16 v{T+u}, v{kreg}, v{QF+r}")
            if n < 4:
                a(f"v_mov_b32 v{T0}, {f2u(NEG):#x}"); a(f"v_mov_b32 v{T1}, {f2u(NEG):#x}")
                a(f"v_add_f32 v{T+1}, s{sBias}, v{T+1}")
            a(f"v_add_f32_dpp v{T0}, v{T}, v{T} row_ror:8 row_mask:0xf bank_mask:0x3")
            a(f"v_add_f32_dpp v{T1}, v{T+1}, v{T+1} row_ror:8 row_mask:0xf bank_mask:0x3")
            if n == 4:
                a(f"v_add_f32_dpp v{T0}, v{T+2}, v{T+2} row_ror:8 row_mask:0xf bank_mask:0xc")
                a(f"v_add_f32_dpp v{T1}, v{T+3}, v{T+3} row_ror:8 row_mask:0xf bank_mask:0xc")
            a(f"v_add_f32_dpp v{U+k}, v{T0}, v{T0} row_half_mirror row_mask:0xf bank_mask:0x5")
            a(f"v_add_f32_dpp v{U+k}, v{T1}, v{T1} row_half_mirror row_mask:0xf bank_mask:0xa")
            a(f"v_add_f32_dpp v{U+k}, v{U+k}, v{U+k} quad_perm:[2,3,0,1] row_mask:0xf bank_mask:0xf")
            a(f"v_add_f32_dpp v{U+k}, v{U+k}, v{U+k} quad_perm:[1,0,3,2] row_mask:0xf bank_mask:0xf")
        def allreduce_rows(r, op, t):
            a(f"v_mov_b32 v{t}, v{r}"); a(f"v_permlane16_swap_b32 v{r}, v{t}"); a(f"{op} v{r}, v{r}, v{t}")
            a(f"v_mov_b32 v{t}, v{r}"); a(f"v_permlane32_swap_b32 v{r}, v{t}"); a(f"{op} v{r}, v{r}, v{t}")
        vM, vLs = tmp, tmp + 1
        def softmax():
            a(f"v_max3_f32 v{vM}, v{U}, v{U+1}, v{U+2}")
            a(f"v_max3_f32 v{vM}, v{vM}, v{U+3}, v{U+4}")
            a(f"v_max3_f32 v{vM}, v{vM}, v{U+5}, v{U+6}")
            a(f"v_max_f32_dpp v{vM}, v{vM}, v{vM} row_ror:4 row_mask:0xf bank_mask:0xf")
            a(f"v_max_f32_dpp v{vM}, v{vM}, v{vM} row_ror:8 row_mask:0xf bank_mask:0xf")
            allreduce_rows(vM, "v_max_f32", tmp + 2)
            a(f"v_mul_f32 v{vM}, s{sC1}, v{vM}")
            a(f"v_mov_b32 v{tmp+2}, v{vM}"); a(f"v_mov_b32 v{tmp+3}, 1")
            a(f"s_lshl_b32 s68, s{sW}, 3"); a(f"v_mov_b32 v{tmp+4}, s68")
            a("s_mov_b64 exec, 1")
            a(f"ds_write_b64 v{tmp+4}, {V(tmp+2,2)} offset:{L_M}")
            self.exec_full()
            for k in range(7):
                a(f"v_fma_f32 v{U+k}, v{U+k}, s{sC1}, -v{vM}")
            for k in range(7):
                a(f"v_exp_f32 v{U+k}, v{U+k}")
            a(f"v_add_f32 v{vLs}, v{U}, v{U+1}")
            for k in range(2, 7): a(f"v_add_f32 v{vLs}, v{vLs}, v{U+k}")
            for k in range(7): a(f"v_cvt_pk_bf16_f32 v{U+k}, v{U+k}, v{U+k}")
            a(f"v_add_f32_dpp v{vLs}, v{vLs}, v{vLs} row_ror:4 row_mask:0xf bank_mask:0xf")
            a(f"v_add_f32_dpp v{vLs}, v{vLs}, v{vLs} row_ror:8 row_mask:0xf bank_mask:0xf")
            allreduce_rows(vLs, "v_add_f32", tmp + 2)
        def pv_and(i):
            ab = AB + 4 * (i & 1)
            for t in range(4):
                a(f"v_and_b32_dpp v{ab+t}, v{U+(i>>2)}, v{M0+t} row_newbcast:{4*(i&3)} row_mask:0xf bank_mask:0xf")
        def pv_mfma(i):
            ab = AB + 4 * (i & 1)
            a(f"v_mfma_f32_16x16x32_bf16 {V(DD)}, {V(ab)}, {V(VT+4*i)}, {'0' if i == 0 else V(DD)}")
        pv = 0
        SM = 14
        D = self.Dv
        for i in range(NK):
            a(f"s_waitcnt vmcnt({D-1})")
            kv_load(SRD2, VT, i, 75)
            if i == 1: wait_q()
            if i == 13 and self.bar & 2: a("s_barrier")
            if i < SM and i % 2 == 1 and i // 2 < 7: kgroup(i // 2)
            if i == SM - 1:
                softmax(); pv_and(0)
            if i >= SM:
                lim = i - D
                for _ in range(2):
                    if pv <= lim:
                        pv_and(pv + 1); pv_mfma(pv); pv += 1
        self.stamp(3)
        WO = KT + 24
        a(f"v_lshrrev_b32 v{tmp+4}, 4, v1"); a("s_movk_i32 s68, 5120"); a(f"v_mul_u32_u24 v{tmp+4}, s68, v{tmp+4}")
        a(f"v_and_b32 v{tmp+5}, 15, v1"); a(f"v_lshl_add_u32 v{tmp+4}, v{tmp+5}, 4, v{tmp+4}")
        a(f"s_lshl_b32 s68, s{sH}, 3"); a(f"s_add_u32 s68, s68, s{sW}"); a(f"s_mul_i32 s69, s68, {16*1280}"); a(f"s_lshl_b32 s68, s{sSub}, 8"); a("s_add_u32 s69, s69, s68")
        self.srd(SRD3, pWOB, 4096 * 1280)
        for rg in range(4):
            a(f"buffer_load_dwordx4 {V(WO+4*rg)}, v{tmp+4}, {S(SRD3)}, s69 offen offset:{1280*rg} {self.nt}")
        a(f"v_mov_b32 v{tmp+4}, 0")
        R8 = KT
        def rdm():
            for k in range(4): a(f"ds_read_b128 {V(R8+4*k)}, v{tmp+4} offset:{L_M+16*k}")
        self.lds_spin(rdm, [R8 + 2 * k + 1 for k in range(8)], "bm")
        vMc = R8 + 16; vF = R8 + 17
        a(f"v_max3_f32 v{vMc}, v{R8}, v{R8+2}, v{R8+4}")
        a(f"v_max3_f32 v{vMc}, v{vMc}, v{R8+6}, v{R8+8}")
        a(f"v_max3_f32 v{vMc}, v{vMc}, v{R8+10}, v{R8+12}")
        a(f"v_max_f32 v{vMc}, v{vMc}, v{R8+14}")
        a(f"v_sub_f32 v{vF}, v{vM}, v{vMc}")
        a(f"v_exp_f32 v{vF}, v{vF}")
        a(f"v_mul_f32 v{vLs}, v{vLs}, v{vF}")
        vG = R8 + 18; vZ = R8 + 19
        a(f"v_lshrrev_b32 v{vG}, 4, v1"); a(f"v_lshlrev_b32 v{vG}, 4, v{vG}"); a(f"v_mov_b32 v{vZ}, 0")
        a(f"s_mul_i32 s76, s{sH}, 2560"); a(f"s_add_u32 s78, s76, {WS_OB}"); a(f"s_lshl_b32 s68, s{sW}, 6"); a("s_add_u32 s76, s78, s68")
        a(f"s_lshl_b32 s77, s{sH}, 7"); a(f"s_add_u32 s77, s77, {WS_MLB}")
        while pv < NK:
            a(f"s_waitcnt vmcnt({NK-1-pv+4})")
            if pv + 1 < NK: pv_and(pv + 1)
            pv_mfma(pv); pv += 1
        self.stamp(4)
        for v in range(4): a(f"v_mul_f32 v{DD+v}, v{vF}, v{DD+v}")
        self.exec_lo32()
        a(f"ds_write_b128 v{vA}, {V(DD)} offset:{L_O}")
        a("s_mov_b32 exec_lo, 1")
        a(f"ds_write_b32 v{tmp+5}, v{vLs} offset:{L_L}") if False else None
        a(f"s_lshl_b32 s68, s{sW}, 2"); a(f"v_mov_b32 v{tmp+4}, s68")
        a(f"ds_write_b32 v{tmp+4}, v{vLs} offset:{L_L}")
        self.exec_full()
        a("s_waitcnt lgkmcnt(0)")
        a("s_barrier")
        L = self.lab("b4"); a(f"s_cmp_eq_u32 s{sW}, 0"); a(f"s_cbranch_scc0 {L}")
        a(f"v_and_b32 v{tmp}, 31, v1"); a(f"v_lshlrev_b32 v{tmp}, 4, v{tmp}")
        G2 = VT
        for k in range(8): a(f"ds_read_b128 {V(G2+4*k)}, v{tmp} offset:{L_O+512*k}")
        a(f"v_mov_b32 v{tmp+4}, 0")
        a(f"ds_read_b128 {V(G2+32)}, v{tmp+4} offset:{L_L}")
        a(f"ds_read_b128 {V(G2+36)}, v{tmp+4} offset:{L_L+16}")
        a(f"s_lshl_b32 s68, s{sSub}, 9"); a("s_add_u32 s68, s68, s78")
        a(f"s_lshl_b32 s69, s{sSub}, 4"); a("s_add_u32 s69, s69, s77")
        a("s_waitcnt lgkmcnt(2)")
        self.tree_add(G2, 8)
        self.pack(G2, vTag)
        self.exec_lo32()
        a(f"buffer_store_dwordx4 {V(G2)}, v{tmp}, {WS}, s68 offen sc1")
        a("s_waitcnt lgkmcnt(0)")
        ML = G2 + 40
        a(f"v_pk_add_f32 {V(G2+32,2)}, {V(G2+32,2)}, {V(G2+34,2)}")
        a(f"v_pk_add_f32 {V(G2+36,2)}, {V(G2+36,2)}, {V(G2+38,2)}")
        a(f"v_pk_add_f32 {V(G2+32,2)}, {V(G2+32,2)}, {V(G2+36,2)}")
        a(f"v_mov_b32 v{ML}, v{vMc}")
        a(f"v_add_f32 v{ML+1}, v{G2+32}, v{G2+33}")
        a(f"v_mov_b32 v{ML+2}, 0"); a(f"v_mov_b32 v{ML+3}, v{vTag}")
        a("s_mov_b32 exec_lo, 1")
        a(f"buffer_store_dwordx4 {V(ML)}, v{vZ}, {WS}, s69 offen sc1")
        self.exec_full()
        a(f"{L}:")
        self.stamp(5)
        EG = VT + 48
        def gather_ob():
            for s in range(5): a(f"buffer_load_dwordx4 {V(EG+4*s)}, v{vG}, {WS}, s76 offen offset:{512*s} sc1")
            for s in range(5): a(f"buffer_load_dwordx4 {V(EG+20+4*s)}, v{vZ}, {WS}, s77 offen offset:{16*s} sc1")
        self.poll_loop(gather_ob, [EG + 4 * s + 3 for s in range(10)], sleep=0, name="bob")
        self.stamp(6)
        ME = EG + 20
        vMx = T; vL = T + 1; O = U
        a(f"v_max3_f32 v{vMx}, v{ME}, v{ME+4}, v{ME+8}"); a(f"v_max3_f32 v{vMx}, v{vMx}, v{ME+12}, v{ME+16}")
        for s in range(5): a(f"v_sub_f32 v{ME+4*s}, v{ME+4*s}, v{vMx}")
        for s in range(5): a(f"v_exp_f32 v{ME+4*s}, v{ME+4*s}")
        for s in range(5): self.unpack(EG + 4 * s)
        a(f"v_mul_f32 v{vL}, v{ME}, v{ME+1}")
        for s in range(1, 5): a(f"v_fmac_f32 v{vL}, v{ME+4*s}, v{ME+4*s+1}")
        for v in range(4): a(f"v_mul_f32 v{O+v}, v{ME}, v{EG+v}")
        a(f"v_rcp_f32 v{vL}, v{vL}")
        for s in range(1, 5):
            for v in range(4): a(f"v_fmac_f32 v{O+v}, v{ME+4*s}, v{EG+4*s+v}")
        for v in range(4): a(f"v_mul_f32 v{O+v}, v{vL}, v{O+v}")
        for v in range(4): a(f"v_cvt_pk_bf16_f32 v{O+v}, v{O+v}, v{O+v}")
        self.rowacc(DD, AB, M0, 4, lambda i: (O + i, None), lambda i: WO + 4 * i)
        self.exec_lo32()
        a(f"ds_write_b128 v{vA}, {V(DD)} offset:{L_Y}")
        self.exec_full()
        a("s_waitcnt lgkmcnt(0)")
        a("s_barrier")
        L = self.lab("b5"); a(f"s_cmp_eq_u32 s{sW}, 0"); a(f"s_cbranch_scc0 {L}")
        a(f"v_and_b32 v{tmp}, 31, v1"); a(f"v_lshlrev_b32 v{tmp}, 4, v{tmp}")
        for k in range(8): a(f"ds_read_b128 {V(G2+4*k)}, v{tmp} offset:{L_Y+512*k}")
        a(f"s_mul_i32 s68, s{sH}, 2560"); a(f"s_lshl_b32 s69, s{sSub}, 9"); a("s_add_u32 s68, s68, s69"); a(f"s_add_u32 s68, s68, {WS_YB}")
        a("s_waitcnt lgkmcnt(0)")
        self.tree_add(G2, 8)
        self.pack(G2, vTag)
        self.exec_lo32()
        a(f"buffer_store_dwordx4 {V(G2)}, v{tmp}, {WS}, s68 offen sc1")
        self.exec_full()
        a(f"{L}:")
        self.stamp(7)
        self.finish("B")

    def tree_add(self, base, n):
        a = self.a; V = self.V
        step = 1
        while step < n:
            for k in range(0, n, 2 * step):
                if k + step < n:
                    for hh in (0, 2):
                        a(f"v_pk_add_f32 {V(base+4*k+hh,2)}, {V(base+4*k+hh,2)}, {V(base+4*(k+step)+hh,2)}")
            step *= 2

    def row_allreduce(self, regs, op, steps=(8, 4, 2, 1)):
        a = self.a
        for st in steps:
            for r in regs: a(f"{op}_dpp v{r}, v{r}, v{r} row_ror:{st} row_mask:0xf bank_mask:0xf")
    def rowacc(self, DD, AB, M0, n, coef, tile, first_zero=True):
        a = self.a; V = self.V
        def ands(i):
            src, mod = coef(i); ab = AB + 4 * (i & 1)
            for t in range(4):
                if mod: a(f"v_and_b32_dpp v{ab+t}, v{src}, v{M0+t} {mod} row_mask:0xf bank_mask:0xf")
                else: a(f"v_and_b32 v{ab+t}, v{src}, v{M0+t}")
        ands(0)
        for i in range(n):
            if i + 1 < n: ands(i + 1)
            ab = AB + 4 * (i & 1)
            a(f"v_mfma_f32_16x16x32_bf16 {V(DD)}, {V(ab)}, {V(tile(i))}, {'0' if (i == 0 and first_zero) else V(DD)}")

    def role_PR(self):
        a = self.a; V = self.V; S = self.S
        vWQ, vUK, M0, QF, DD, AB, T, U, vTag = 2, 3, 4, 8, 12, 16, 24, 32, 36
        vUV, vWO, vLD, vX, tmp = 37, 38, 39, 36, 40
        WQ, X, UK, UV, WO, G = 48, 88, 96, 128, 160, 224
        WB = 64
        self.code_prefetch("L_PR", "L_Q", 254, 255, 1)
        a(f"s_lshr_b32 s68, s7, 1"); a(f"s_add_u32 s{sH}, s6, s68"); a(f"s_and_b32 s{sSub}, s7, 1")
        a(f"v_lshrrev_b32 v{tmp}, 3, v1"); a(f"v_and_b32 v{tmp+1}, 7, v1")
        a(f"v_lshrrev_b32 v{tmp+2}, 4, v1"); a(f"v_and_b32 v{tmp+3}, 15, v1")
        a(f"v_lshlrev_b32 v{tmp+1}, 4, v{tmp+1}"); a(f"v_lshlrev_b32 v{tmp+3}, 4, v{tmp+3}")
        a("s_mov_b32 s68, 81920"); a(f"v_mad_u32_u24 v{vWQ}, v{tmp}, s68, v{tmp+1}")
        a(f"v_lshl_add_u32 v{vUK}, v{tmp+2}, 16, v{tmp+3}")
        a(f"v_lshl_add_u32 v{vUV}, v{tmp}, 16, v{tmp+1}")
        a("s_mov_b32 s68, 20480"); a(f"v_mad_u32_u24 v{vWO}, v{tmp+2}, s68, v{tmp+3}")
        a("s_mul_i32 s68, s7, 160"); a(f"v_mul_u32_u24 v{vX}, 20, v{tmp}"); a(f"v_add_u32 v{vX}, s68, v{vX}")
        a(f"s_mul_i32 s72, s7, {80*8192}"); a("s_lshl_b32 s69, s6, 8"); a("s_add_u32 s72, s72, s69"); a(f"s_lshl_b32 s70, s{sW}, 7"); a("s_add_u32 s72, s72, s70")
        a(f"s_lshr_b32 s70, s{sW}, 2"); a("s_lshl_b32 s71, s7, 1"); a("s_add_u32 s70, s70, s71")
        a("s_lshl_b32 s73, s70, 18"); a("s_add_u32 s73, s73, s69"); a(f"s_and_b32 s71, s{sW}, 3"); a("s_lshl_b32 s71, s71, 8"); a("s_add_u32 s73, s73, s71")
        a(f"s_lshl_b32 s69, s{sH}, 8"); a(f"s_lshl_b32 s71, s{sSub}, 7"); a("s_add_u32 s71, s71, s69")
        a(f"s_lshl_b32 s74, s{sW}, 19"); a("s_add_u32 s74, s74, s71")
        a("s_waitcnt lgkmcnt(0)")
        self.srd(SRD1, pWQA, 640 * 8192)
        a(f"global_load_dwordx4 {V(X)}, v{vX}, s[{pAX}:{pAX+1}]")
        a(f"global_load_dword v{X+4}, v{vX}, s[{pAX}:{pAX+1}] offset:16")
        for i in range(10):
            if i: a("s_add_u32 s72, s72, 8192")
            a(f"buffer_load_dwordx4 {V(WQ+4*i)}, v{vWQ}, {S(SRD1)}, s72 offen {self.nt}")
        self.srd(SRD2, pWUK, 512 * 8192)
        a("s_barrier")
        def uk_load(i):
            if i: a("s_add_u32 s73, s73, 8192")
            a(f"buffer_load_dwordx4 {V(UK+4*i)}, v{vUK}, {S(SRD2)}, s73 offen {self.nt}")
        NU = self.nu
        for i in range(NU): uk_load(i)
        self.common2()
        self.srd(SRD3, pWUV, 512 * 8192); self.srd(SRD4, pWOA, 4096 * 1280)
        if self.tlb:
            a(f"s_mul_i32 s68, s{sH}, {128*1280}"); a(f"s_lshl_b32 s69, s{sH}, 16"); a(f"s_add_u32 s69, s69, {WS_CTX}")
            a(f"s_mov_b32 s70, {WS_QA}"); a("s_mov_b32 s71, 0x200000")
            self.tlb_warm([(S(SRD3), "0"), (S(SRD3), "s71"), (S(SRD4), "s68"), (WS, "s69"), (WS, "s70")], 254, 255)
            a(f"s_lshr_b32 s70, s{sW}, 2"); a("s_lshl_b32 s71, s7, 1"); a("s_add_u32 s70, s70, s71")
        self.masks(M0, 1, tmp, tmp + 1)
        a(f"v_and_b32 v{tmp}, 7, v1"); a(f"v_bfe_u32 v{tmp+1}, v1, 4, 1"); a(f"v_lshl_add_u32 v{tmp}, v{tmp}, 1, v{tmp+1}")
        a(f"v_lshlrev_b32 v{tmp+2}, 4, v{tmp}")
        a(f"v_lshrrev_b32 v{tmp+1}, 5, v1"); a(f"v_lshl_add_u32 v{tmp}, v{tmp+1}, 4, v{tmp}")
        a(f"v_lshlrev_b32 v{tmp}, 4, v{tmp}"); a(f"s_lshl_b32 s68, s{sW}, 9"); a(f"v_add_u32 v{vLD}, s68, v{tmp}")
        a(f"s_lshr_b32 s68, s{sW}, 1"); a("s_add_u32 s68, s68, s6"); a("s_lshl_b32 s68, s68, 3"); a("s_add_u32 s68, s68, s7"); a("s_lshl_b32 s68, s68, 9")
        a(f"s_and_b32 s69, s{sW}, 1"); a("s_lshl_b32 s69, s69, 8"); a("s_add_u32 s68, s68, s69"); a(f"s_add_u32 s78, s68, {WS_QA}")
        a(f"s_and_b32 s68, s{sW}, 3"); a("s_add_u32 s79, s68, s6"); a("s_lshl_b32 s76, s79, 12"); a(f"s_add_u32 s76, s76, {WS_QA}")
        a(f"s_waitcnt vmcnt({NU})")
        self.stamp(1)
        for i in range(10):
            a(f"v_perm_b32 v{WO+i}, v{X+(i>>1)}, v{X+(i>>1)}, s{sHi if i & 1 else sLo}")
        self.rowacc(DD, AB, M0, 10, lambda i: (WO + i, None), lambda i: WQ + 4 * i)
        self.tag(vTag)
        for v in range(4): a(f"v_mov_b32 v{T+v}, v{DD+v}")
        for v in range(4): a(f"v_permlane32_swap_b32 v{DD+v}, v{T+v}")
        for v in range(4): a(f"v_add_f32_dpp v{DD+v}, v{T+v}, v{DD+v} row_shl:8 row_mask:0xf bank_mask:0x3")
        self.pack(DD, vTag)
        a("s_mov_b32 exec_lo, 0x00ff00ff"); a("s_mov_b32 exec_hi, 0")
        a(f"buffer_store_dwordx4 {V(DD)}, v{tmp+2}, {WS}, s78 offen sc1")
        self.exec_full()
        self.stamp(2)
        for i in range(NU, 8): uk_load(i)
        a(f"v_and_b32 v{tmp}, 31, v1"); a(f"v_lshlrev_b32 v{tmp}, 4, v{tmp}")
        a(f"v_lshrrev_b32 v{tmp+1}, 5, v1"); a(f"v_lshl_add_u32 v{tmp+1}, v{tmp+1}, 9, v{tmp}")
        GQ = 224
        def gather_q():
            for i in range(4): a(f"buffer_load_dwordx4 {V(GQ+4*i)}, v{tmp+1}, {WS}, s76 offen offset:{1024*i} sc1")
        a("s_waitcnt vmcnt(2)")
        self.poll_loop(gather_q, [GQ + 4 * i + 3 for i in range(4)], sleep=0, name="pq")
        for i in range(4): self.unpack(GQ + 4 * i)
        self.tree_add(GQ, 4)
        for v in range(4): a(f"v_mov_b32 v{T+v}, v{GQ+v}")
        for v in range(4): a(f"v_permlane32_swap_b32 v{GQ+v}, v{T+v}")
        for v in range(4): a(f"v_add_f32 v{GQ+v}, v{GQ+v}, v{T+v}")
        a(f"v_cvt_pk_bf16_f32 v{GQ}, v{GQ}, v{GQ+1}"); a(f"v_cvt_pk_bf16_f32 v{GQ+1}, v{GQ+2}, v{GQ+3}")
        a(f"s_lshl_b32 s68, s{sW}, 8"); a(f"v_lshrrev_b32 v{tmp}, 1, v{tmp}"); a(f"v_add_u32 v{tmp}, s68, v{tmp}")
        self.exec_lo32()
        a(f"ds_write_b64 v{tmp}, {V(GQ,2)} offset:8192")
        self.exec_full()
        a(f"v_and_b32 v{tmp}, 15, v1"); a(f"v_lshlrev_b32 v{tmp}, 4, v{tmp}"); a(f"v_add_u32 v{tmp}, s68, v{tmp}")
        a("s_waitcnt lgkmcnt(0)")
        a(f"ds_read_b128 {V(QF)}, v{tmp} offset:8192")
        a("s_waitcnt lgkmcnt(0)")
        self.stamp(3)
        for r in range(4):
            for i in range(8):
                if r == 0: a(f"v_dot2_f32_bf16 v{T+i}, v{UK+4*i}, v{QF}, 0")
                else: a(f"v_dot2c_f32_bf16 v{T+i}, v{UK+4*i+r}, v{QF+r}")
        for k in range(4): a(f"v_add_f32_dpp v{U+k}, v{T+k}, v{T+k} row_ror:8 row_mask:0xf bank_mask:0x3")
        for k in range(4): a(f"v_add_f32_dpp v{U+k}, v{T+k+4}, v{T+k+4} row_ror:8 row_mask:0xf bank_mask:0xc")
        for k in range(4): a(f"v_add_f32_dpp v{U+k}, v{U+k}, v{U+k} row_half_mirror row_mask:0xf bank_mask:0xf")
        for k in range(4): a(f"v_add_f32_dpp v{U+k}, v{U+k}, v{U+k} quad_perm:[2,3,0,1] row_mask:0xf bank_mask:0xf")
        for k in range(4): a(f"v_add_f32_dpp v{U+k}, v{U+k}, v{U+k} quad_perm:[1,0,3,2] row_mask:0xf bank_mask:0xf")
        a(f"v_lshrrev_b32 v{tmp}, 3, v1"); a(f"v_lshlrev_b32 v{tmp}, 4, v{tmp}")
        a("s_lshl_b32 s68, s79, 11"); a("s_lshl_b32 s69, s70, 7"); a("s_add_u32 s68, s68, s69"); a(f"s_add_u32 s68, s68, {WS_QABS}")
        self.pack(U, vTag)
        a("s_mov_b32 exec_lo, 0x01010101"); a("s_mov_b32 exec_hi, 0x01010101")
        a(f"buffer_store_dwordx4 {V(U)}, v{tmp}, {WS}, s68 offen sc1")
        self.exec_full()
        self.stamp(4)
        a("s_barrier")
        for i in range(8):
            if i: a(f"s_add_u32 s74, s74, {1024 if 'uv' in self.lin else 8192}")
            a(f"buffer_load_dwordx4 {V(UV+4*i)}, v{vUV}, {S(SRD3)}, s74 offen {self.nt}")
        a(f"s_lshl_b32 s68, s{sH}, 1"); a(f"s_add_u32 s77, s68, s{sSub}")
        a(f"s_mul_i32 s75, s77, {64*1280}"); a(f"s_lshl_b32 s68, s{sW}, 8"); a("s_add_u32 s75, s75, s68")
        L = self.lab("p2"); a(f"s_cmp_lt_u32 s{sW}, 5"); a(f"s_cbranch_scc0 {L}")
        for i in range(16):
            if i and i % 4 == 0: a("s_add_u32 s75, s75, 5120")
            o = 1280 * (i % 4)
            a(f"buffer_load_dwordx4 {V(WO+4*i)}, v{vWO}, {S(SRD4)}, s75 offen offset:{o} {self.nt}")
        a(f"{L}:")
        ML, CT = 48, 224
        a(f"v_bfe_u32 v{tmp}, v1, 2, 2"); a(f"v_and_b32 v{tmp+1}, 3, v1")
        a(f"v_lshlrev_b32 v{tmp+2}, 7, v{tmp}"); a(f"v_lshl_add_u32 v{tmp+2}, v{tmp+1}, 5, v{tmp+2}")
        a(f"v_lshrrev_b32 v{tmp+3}, 4, v1"); a(f"v_lshl_add_u32 v{tmp+3}, v{tmp+3}, 2, v{tmp+1}")
        a(f"v_lshlrev_b32 v{tmp+3}, 4, v{tmp+3}"); a(f"v_lshl_add_u32 v{tmp+3}, v{tmp}, 14, v{tmp+3}")
        a(f"s_lshl_b32 s76, s{sH}, 9"); a(f"s_add_u32 s76, s76, {WS_ML}")
        a(f"s_lshl_b32 s78, s{sH}, 16"); a(f"s_lshl_b32 s68, s{sW}, 8"); a("s_add_u32 s78, s78, s68"); a(f"s_add_u32 s78, s78, {WS_CTX}")
        def gather_ml():
            a(f"buffer_load_dwordx4 {V(ML)}, v{tmp+2}, {WS}, s76 offen sc1")
            a(f"buffer_load_dwordx4 {V(ML+4)}, v{tmp+2}, {WS}, s76 offen offset:16 sc1")
        self.poll_loop(gather_ml, [ML + 3, ML + 7], sleep=4, name="pml")
        self.stamp(5)
        def gather_ctx():
            for i in range(8):
                a(f"s_add_u32 s79, s78, {4096*(i>>1)}") if i % 2 == 0 else None
                a(f"buffer_load_dwordx4 {V(CT+4*i)}, v{tmp+3}, {WS}, s79 offen offset:{2048*(i&1)} sc1")
        gather_ctx()
        vM, wA, wB, vL = T, T + 1, T + 2, T + 3
        a(f"v_max_f32 v{vM}, v{ML}, v{ML+4}")
        self.row_allreduce([vM], "v_max_f32")
        a(f"v_sub_f32 v{wA}, v{ML}, v{vM}"); a(f"v_sub_f32 v{wB}, v{ML+4}, v{vM}")
        a(f"v_exp_f32 v{wA}, v{wA}"); a(f"v_exp_f32 v{wB}, v{wB}")
        a(f"v_mul_f32 v{vL}, v{wA}, v{ML+1}"); a(f"v_fmac_f32 v{vL}, v{wB}, v{ML+5}")
        self.row_allreduce([vL], "v_add_f32")
        a(f"v_rcp_f32 v{vL}, v{vL}")
        a(f"v_mul_f32 v{wA}, v{wA}, v{vL}"); a(f"v_mul_f32 v{wB}, v{wB}, v{vL}")
        self.poll_loop(gather_ctx, [CT + 4 * i + 3 for i in range(8)], first_issued=True, first_wait="s_waitcnt vmcnt(0)", name="pctx")
        self.stamp(6)
        AC = U
        for i in range(8): self.unpack(CT + 4 * i)
        for i in range(8):
            q = i >> 1
            for v in range(4):
                op = "v_mul_f32_dpp" if i == 0 else "v_fmac_f32_dpp"
                a(f"{op} v{AC+v}, v{wB if i & 1 else wA}, v{CT+4*i+v} quad_perm:[{q},{q},{q},{q}] row_mask:0xf bank_mask:0xf")
        self.row_allreduce([AC + v for v in range(4)], "v_add_f32", steps=(4, 8))
        for v in range(4): a(f"v_cvt_pk_bf16_f32 v{AC+v}, v{AC+v}, v{AC+v}")
        for v in range(4): a(f"v_mov_b32_dpp v{AC+v}, v{AC+v} quad_perm:[2,3,0,1] row_mask:0xf bank_mask:0xc")
        self.rowacc(DD, AB, M0, 8, lambda i: (AC + (i & 3), "quad_perm:[%d,%d,%d,%d]" % ((i >> 2,) * 4)), lambda i: UV + 4 * i)
        a("s_mov_b32 exec_lo, 0x00ff00ff"); a("s_mov_b32 exec_hi, 0xff00ff00")
        a(f"ds_write_b128 v{vLD}, {V(DD)} offset:4096")
        self.exec_full()
        a("s_waitcnt lgkmcnt(0)")
        a("s_barrier")
        Le = self.lab("pend")
        a(f"s_cmp_lt_u32 s{sW}, 5"); a(f"s_cbranch_scc0 {Le}")
        CF = 48
        a(f"v_lshrrev_b32 v{tmp}, 4, v1"); a(f"v_and_b32 v{tmp+1}, 3, v1"); a(f"v_lshl_add_u32 v{tmp}, v{tmp}, 2, v{tmp+1}")
        a(f"v_lshlrev_b32 v{tmp+4}, 4, v{tmp}"); a(f"v_bfe_u32 v{tmp+1}, v1, 2, 2"); a(f"v_lshl_add_u32 v{tmp}, v{tmp+1}, 10, v{tmp+4}")
        for k in range(4): a(f"ds_read_b128 {V(CF+4*k)}, v{tmp} offset:{4096+256*k}")
        a(f"v_and_b32 v{tmp+2}, 15, v1"); a(f"v_bfe_u32 v{tmp+3}, v1, 4, 1"); a(f"v_lshl_add_u32 v{tmp+2}, v{tmp+2}, 1, v{tmp+3}"); a(f"v_lshlrev_b32 v{tmp+2}, 4, v{tmp+2}")
        a(f"s_mul_i32 s68, s77, 2560"); a(f"s_lshl_b32 s69, s{sW}, 9"); a("s_add_u32 s68, s68, s69"); a(f"s_add_u32 s68, s68, {WS_YA}")
        a("s_waitcnt lgkmcnt(0)")
        self.tree_add(CF, 4)
        self.row_allreduce([CF + v for v in range(4)], "v_add_f32", steps=(4, 8))
        for v in range(4): a(f"v_cvt_pk_bf16_f32 v{CF+v}, v{CF+v}, v{CF+v}")
        self.rowacc(DD, AB, M0, 16, lambda i: (CF + (i & 3), "quad_perm:[%d,%d,%d,%d]" % ((i >> 2,) * 4)), lambda i: WO + 4 * i)
        self.pack(DD, vTag)
        self.exec_lo32()
        a(f"buffer_store_dwordx4 {V(DD)}, v{tmp+2}, {WS}, s68 offen sc1")
        self.exec_full()
        self.stamp(7)
        a(f"{Le}:")
        self.finish("PR")

    def role_Q(self):
        a = self.a; V = self.V; S = self.S
        vL16, M0, Z, DS, AB, G, vTag = 2, 4, 8, 16, 24, 32, 3
        SA, PA = 64, 192
        tmp = 12
        t2 = 24
        a("; ---------------- role Q ----------------")
        self.code_prefetch("L_Q", "L_end", 14, 32, 1)
        a(f"s_sub_u32 s7, s7, 8"); a(f"s_add_u32 s{sH}, s6, s7")
        a(f"v_lshlrev_b32 v{vL16}, 4, v1")
        a(f"s_lshl_b32 s72, s{sH}, 17"); a(f"s_lshl_b32 s68, s{sW}, 14"); a("s_add_u32 s72, s72, s68")
        a(f"s_lshl_b32 s73, s{sW}, 14")
        a("s_waitcnt lgkmcnt(0)")
        self.srd(SRD1, pCKV, 4096 * 1024)
        for r in range(16):
            f = (r & 8) | ((r & 3) << 1)
            a(f"v_xor_b32 v{tmp + (r & 1)}, {16*f}, v{vL16}")
            a(f"s_add_u32 m0, s73, {1024*r}")
            if r % 4 == 0 and r: a("s_add_u32 s72, s72, 4096")
            a(f"buffer_load_dwordx4 v{tmp + (r & 1)}, {S(SRD1)}, s72 offen offset:{1024*(r%4)} nt lds") if False else None
            a(f"s_add_u32 s74, s72, {1024*(r%4)}")
            a(f"buffer_load_dwordx4 v{tmp + (r & 1)}, {S(SRD1)}, s74 offen {self.nt} lds")
        self.common2()
        if self.tlb:
            a(f"s_mov_b32 s68, {WS_QABS}"); a(f"s_mov_b32 s69, {WS_CTX}"); a(f"s_mov_b32 s70, {WS_CTX + 0x100000}")
            self.tlb_warm([(WS, "s68"), (WS, "s69"), (WS, "s70"), (OUT, "0")], 33, 32)
        a(f"v_and_b32 v{tmp}, 3, v1"); a(f"v_lshlrev_b32 v{tmp}, 1, v{tmp}"); a(f"v_and_b32 v{tmp+1}, 8, v1"); a(f"v_or_b32 v{tmp}, v{tmp}, v{tmp+1}")
        a(f"v_lshrrev_b32 v{tmp+1}, 4, v1"); a(f"v_xor_b32 v{tmp}, v{tmp}, v{tmp+1}"); a(f"v_lshlrev_b32 v{tmp}, 4, v{tmp}")
        for m in range(4): a(f"v_xor_b32 v{Z+m}, {64*m}, v{tmp}")
        a(f"v_and_b32 v{tmp+2}, 15, v1")
        a(f"s_and_b32 s68, s{sW}, 3"); a("s_lshl_b32 s68, s68, 15"); a(f"v_lshl_add_u32 v{tmp+3}, v{tmp+2}, 10, s68")
        for m in range(4): a(f"v_add_u32 v{t2+m}, v{tmp+3}, v{Z+m}")
        a(f"v_bfe_u32 v{tmp}, v1, 2, 2")
        a(f"v_bfe_u32 v{tmp+1}, v1, 4, 1"); a(f"v_lshlrev_b32 v{tmp+1}, 3, v{tmp+1}"); a(f"v_lshl_or_b32 v{tmp+1}, v{tmp}, 1, v{tmp+1}")
        a(f"v_bfe_u32 v{tmp+3}, v1, 1, 1"); a(f"v_xor_b32 v{tmp+1}, v{tmp+1}, v{tmp+3}")
        a(f"s_and_b32 s68, s{sW}, 1"); a("s_lshl_b32 s68, s68, 3"); a(f"v_xor_b32 v{tmp+1}, s68, v{tmp+1}")
        a(f"v_lshrrev_b32 v{tmp+3}, 4, v1"); a(f"v_lshl_add_u32 v{tmp}, v{tmp+3}, 3, v{tmp}")
        a(f"v_lshlrev_b32 v{tmp}, 10, v{tmp}"); a(f"v_and_b32 v{tmp+3}, 1, v1"); a(f"v_lshl_add_u32 v{tmp}, v{tmp+3}, 3, v{tmp}")
        a(f"s_lshr_b32 s68, s{sW}, 1"); a("s_lshl_b32 s68, s68, 8"); a(f"v_add_u32 v{tmp}, s68, v{tmp}")
        for ct in range(4):
            a(f"v_xor_b32 v{t2+4+ct}, {2*ct}, v{tmp+1}"); a(f"v_lshl_add_u32 v{t2+4+ct}, v{t2+4+ct}, 4, v{tmp}")
        a("s_waitcnt vmcnt(0)")
        self.tag(vTag)
        a("s_barrier")
        self.stamp(1)
        for kt in range(2):
            for ks in range(16):
                a(f"ds_read_b128 {V(SA+64*kt+4*ks)}, v{t2+(ks&3)} offset:{256*(ks>>2)+16384*kt}")
            a("s_waitcnt lgkmcnt(8)")
        for half in range(2):
            for ct in range(4):
                for kk in range(2):
                    for hh in range(2):
                        r = PA + 16 * ct + 4 * (2 * half + kk) + 2 * hh
                        a(f"ds_read_b64_tr_b16 {V(r,2)}, v{t2+4+ct} offset:{(32*kk+4*hh)*1024}")
                a("s_waitcnt lgkmcnt(8)")
            if half == 0:
                for ct in range(4): a(f"v_add_u32 v{t2+4+ct}, 0x10000, v{t2+4+ct}")
        a("s_waitcnt lgkmcnt(0)")
        a("s_barrier")
        self.stamp(2)
        a(f"s_lshl_b32 s76, s{sW}, 13"); a(f"s_add_u32 s76, s76, {WS_QABS}"); a("s_add_u32 s77, s76, 4096")
        a(f"v_mov_b32 v{tmp}, 0")
        def gather_ind(): a(f"buffer_load_dwordx4 {V(G)}, v{tmp}, {WS}, s76 offen sc1")
        self.poll_loop(gather_ind, [G + 3], sleep=2, name="qind")
        def gather_qabs():
            for i in range(8):
                a(f"buffer_load_dwordx4 {V(G+4*i)}, v{vL16}, {WS}, s{76 if i < 4 else 77} offen offset:{1024*(i&3)} sc1")
        self.poll_loop(gather_qabs, [G + 4 * i + 3 for i in range(8)], sleep=0, name="qabs")
        self.stamp(3)
        a(f"s_bfe_u32 s68, s{sW}, 0x10001"); a("s_lshl_b32 s68, s68, 7"); a(f"v_lshlrev_b32 v{tmp}, 3, v1"); a(f"v_xor_b32 v{tmp}, s68, v{tmp}")
        a(f"s_lshl_b32 s68, s{sW}, 12")
        for ii in range(4):
            a(f"v_xor_b32 v{t2+ii}, {32*ii}, v{tmp}"); a(f"v_add_u32 v{t2+ii}, s68, v{t2+ii}")
        for i in range(8):
            r = G + 4 * i
            self.unpack(r)
            a(f"v_cvt_pk_bf16_f32 v{r}, v{r}, v{r+1}"); a(f"v_cvt_pk_bf16_f32 v{r+1}, v{r+2}, v{r+3}")
            a(f"ds_write_b64 v{t2+(i>>1)}, {V(r,2)} offset:{1024*(i>>1)+512*(i&1)}")
        a(f"s_lshr_b32 s68, s{sW}, 2"); a("s_lshl_b32 s68, s68, 14"); a(f"v_lshl_add_u32 v{tmp+3}, v{tmp+2}, 10, s68")
        for m in range(4): a(f"v_add_u32 v{t2+4+m}, v{tmp+3}, v{Z+m}")
        a("s_waitcnt lgkmcnt(0)")
        a("s_barrier")
        for ks in range(8): a(f"ds_read_b128 {V(G+4*ks)}, v{t2+4+(ks&3)} offset:{256*(ks>>2)}")
        for ks in range(16):
            a(f"s_waitcnt lgkmcnt({min(7, 15-ks)})")
            for kt in range(2):
                a(f"v_mfma_f32_16x16x32_bf16 {V(DS+4*kt)}, {V(SA+64*kt+4*ks)}, {V(G+4*(ks&7))}, {'0' if ks == 0 else V(DS+4*kt)}")
            if ks < 8:
                k2 = ks + 8
                a(f"ds_read_b128 {V(G+4*ks)}, v{t2+4+(k2&3)} offset:{256*(k2>>2)}")
        vM = tmp; SM, SS, PO = 32768, 33280, 36864
        a(f"v_max3_f32 v{vM}, v{DS}, v{DS+1}, v{DS+2}"); a(f"v_max3_f32 v{vM}, v{vM}, v{DS+3}, v{DS+4}")
        a(f"v_max3_f32 v{vM}, v{vM}, v{DS+5}, v{DS+6}"); a(f"v_max_f32 v{vM}, v{vM}, v{DS+7}")
        def allrows(r, op, t):
            a(f"v_mov_b32 v{t}, v{r}"); a(f"v_permlane16_swap_b32 v{r}, v{t}"); a(f"{op} v{r}, v{r}, v{t}")
            a(f"v_mov_b32 v{t}, v{r}"); a(f"v_permlane32_swap_b32 v{r}, v{t}"); a(f"{op} v{r}, v{r}, v{t}")
        allrows(vM, "v_max_f32", tmp + 1)
        a(f"s_lshr_b32 s68, s{sW}, 2"); a("s_lshl_b32 s68, s68, 8"); a(f"v_lshl_add_u32 v{t2}, v{tmp+2}, 4, s68")
        a(f"s_and_b32 s69, s{sW}, 3"); a("s_lshl_b32 s69, s69, 2"); a(f"v_add_u32 v{t2+1}, s69, v{t2}")
        a("s_mov_b32 exec_hi, 0"); a("s_mov_b32 exec_lo, 0xffff")
        a(f"ds_write_b32 v{t2+1}, v{vM} offset:{SM}")
        self.exec_full()
        a("s_waitcnt lgkmcnt(0)")
        a("s_barrier")
        a(f"ds_read_b128 {V(G)}, v{t2} offset:{SM}")
        a(f"v_and_b32 v{t2+2}, 3, v1"); a(f"v_lshlrev_b32 v{t2+2}, 1, v{t2+2}"); a(f"v_and_b32 v{t2+3}, 8, v1"); a(f"v_or_b32 v{t2+2}, v{t2+2}, v{t2+3}")
        a(f"v_lshrrev_b32 v{t2+3}, 5, v1"); a(f"v_xor_b32 v{t2+2}, v{t2+2}, v{t2+3}")
        a(f"s_and_b32 s69, s{sW}, 3"); a("s_lshl_b32 s69, s69, 2"); a(f"v_xor_b32 v{t2+2}, s69, v{t2+2}")
        a(f"v_bfe_u32 v{t2+3}, v1, 4, 1"); a(f"v_lshlrev_b32 v{t2+3}, 3, v{t2+3}")
        a(f"v_lshl_add_u32 v{t2+3}, v{tmp+2}, 8, v{t2+3}"); a("s_lshl_b32 s68, s68, 4"); a(f"v_add_u32 v{t2+3}, s68, v{t2+3}")
        a(f"v_lshl_add_u32 v{t2+4}, v{t2+2}, 4, v{t2+3}")
        a(f"v_xor_b32 v{t2+2}, 2, v{t2+2}"); a(f"v_lshl_add_u32 v{t2+5}, v{t2+2}, 4, v{t2+3}")
        a("s_waitcnt lgkmcnt(0)")
        a(f"v_max3_f32 v{vM}, v{G}, v{G+1}, v{G+2}"); a(f"v_max_f32 v{vM}, v{vM}, v{G+3}")
        a(f"v_mul_f32 v{vM}, s{sC1}, v{vM}")
        for k in range(8): a(f"v_fma_f32 v{DS+k}, v{DS+k}, s{sC1}, -v{vM}")
        for k in range(8): a(f"v_exp_f32 v{DS+k}, v{DS+k}")
        vS = tmp + 3
        a(f"v_add_f32 v{vS}, v{DS}, v{DS+1}")
        for k in range(2, 8): a(f"v_add_f32 v{vS}, v{vS}, v{DS+k}")
        for kt in range(2):
            a(f"v_cvt_pk_bf16_f32 v{DS+4*kt}, v{DS+4*kt}, v{DS+4*kt+1}"); a(f"v_cvt_pk_bf16_f32 v{DS+4*kt+1}, v{DS+4*kt+2}, v{DS+4*kt+3}")
            a(f"ds_write_b64 v{t2+4+kt}, {V(DS+4*kt,2)} offset:{PO}")
        allrows(vS, "v_add_f32", tmp + 1)
        a("s_mov_b32 exec_hi, 0"); a("s_mov_b32 exec_lo, 0xffff")
        a(f"ds_write_b32 v{t2+1}, v{vS} offset:{SS}")
        self.exec_full()
        a("s_waitcnt lgkmcnt(0)")
        a("s_barrier")
        self.stamp(4)
        a(f"v_lshlrev_b32 v{tmp+3}, 8, v{tmp+2}")
        for kk in range(4): a(f"v_add_u32 v{t2+kk}, v{tmp+3}, v{Z+kk}")
        for ht in range(2):
            for kk in range(4): a(f"ds_read_b128 {V(G+16*ht+4*kk)}, v{t2+kk} offset:{PO+4096*ht}")
        PD = SA
        for ht in range(2):
            a(f"s_waitcnt lgkmcnt({4 if ht == 0 else 0})")
            for kk in range(4):
                for ct in range(4):
                    d = PD + 16 * ht + 4 * ct
                    a(f"v_mfma_f32_16x16x32_bf16 {V(d)}, {V(PA+16*ct+4*kk)}, {V(G+16*ht+4*kk)}, {'0' if kk == 0 else V(d)}")
        TO = 65536
        a(f"v_lshrrev_b32 v{t2}, 4, v1"); a(f"v_lshlrev_b32 v{t2}, 4, v{t2}")
        a(f"v_and_b32 v{t2+1}, 3, v1"); a(f"v_lshlrev_b32 v{t2+1}, 6, v{t2+1}")
        a(f"v_lshl_add_u32 v{t2+2}, v{tmp+2}, 8, v{t2}")
        a(f"s_lshl_b32 s68, s{sW}, 13"); a(f"s_add_u32 s68, s68, {TO}"); a(f"v_add_u32 v{t2+2}, s68, v{t2+2}")
        for ct in range(4):
            a(f"v_xor_b32 v{t2+4+ct}, {64*ct}, v{t2+1}"); a(f"v_add_u32 v{t2+4+ct}, v{t2+2}, v{t2+4+ct}")
        for ht in range(2):
            for ct in range(4):
                d = PD + 16 * ht + 4 * ct
                self.pack(d, vTag)
                a(f"ds_write_b128 v{t2+4+ct}, {V(d)} offset:{4096*ht}")
        a(f"v_lshrrev_b32 v{t2}, 4, v1")
        a(f"v_lshlrev_b32 v{t2+1}, 6, v{t2}"); a(f"v_lshlrev_b32 v{t2+2}, 4, v{tmp+2}"); a(f"v_xor_b32 v{t2+1}, v{t2+1}, v{t2+2}")
        a(f"v_lshl_add_u32 v{t2+1}, v{t2}, 8, v{t2+1}"); a(f"v_add_u32 v{t2+1}, s68, v{t2+1}")
        a(f"v_lshl_add_u32 v{t2+2}, v{t2}, 16, v{t2+2}")
        a(f"s_lshl_b32 s76, s{sH}, 11"); a(f"s_lshl_b32 s69, s{sW}, 8"); a("s_add_u32 s76, s76, s69"); a(f"s_add_u32 s76, s76, {WS_CTX}")
        a("s_waitcnt lgkmcnt(0)")
        for i in range(8): a(f"ds_read_b128 {V(G+4*i)}, v{t2+1} offset:{1024*i}")
        for i in range(8):
            a(f"s_waitcnt lgkmcnt({7-i})")
            a(f"buffer_store_dwordx4 {V(G+4*i)}, v{t2+2}, {WS}, s76 offen sc1")
            if i < 7: a("s_add_u32 s76, s76, 0x40000")
        a("s_barrier")
        L = self.lab("q1"); a(f"s_cmp_eq_u32 s{sW}, 0"); a(f"s_cbranch_scc0 {L}")
        a(f"v_and_b32 v{tmp}, 31, v1"); a(f"v_lshlrev_b32 v{tmp+1}, 4, v{tmp}")
        a(f"ds_read_b128 {V(G)}, v{tmp+1} offset:{SM}"); a(f"ds_read_b128 {V(G+4)}, v{tmp+1} offset:{SS}")
        a(f"v_lshlrev_b32 v{tmp}, 9, v{tmp}"); a(f"s_lshl_b32 s68, s{sH}, 4"); a(f"s_add_u32 s68, s68, {WS_ML}")
        a("s_waitcnt lgkmcnt(0)")
        a(f"v_max3_f32 v{G}, v{G}, v{G+1}, v{G+2}"); a(f"v_max_f32 v{G}, v{G}, v{G+3}"); a(f"v_mul_f32 v{G}, s{sC1}, v{G}")
        a(f"v_pk_add_f32 {V(G+4,2)}, {V(G+4,2)}, {V(G+6,2)}"); a(f"v_add_f32 v{G+1}, v{G+4}, v{G+5}")
        a(f"v_mov_b32 v{G+2}, 0"); a(f"v_mov_b32 v{G+3}, v{vTag}")
        self.exec_lo32()
        a(f"buffer_store_dwordx4 {V(G)}, v{tmp}, {WS}, s68 offen sc1")
        self.exec_full()
        a(f"{L}:")
        self.stamp(5)
        Le = self.lab("qend")
        a(f"s_lshl_b32 s79, s{sH}, 3"); a(f"s_add_u32 s79, s79, s{sW}")
        a("s_movk_i32 s68, 2560"); a(f"v_mul_u32_u24 v{tmp}, s68, v1"); a(f"v_mov_b32 v{tmp+1}, 0")
        a("s_cmp_lt_u32 s79, 160"); a(f"s_cbranch_scc0 {Le}")
        regs = [G + v for v in range(4)]
        for br in range(2):
            a(f"s_lshl_b32 s76, s79, 4"); a(f"s_add_u32 s76, s76, {WS_YB if br else WS_YA}")
            a(f"s_lshl_b32 s78, s79, 3")
            if br:
                a("s_add_u32 s78, s78, 1280")
                a("s_and_b32 s68, s79, 31"); a("s_lshl_b32 s68, s68, 7"); a(f"s_add_u32 s77, s68, {WS_MLB}")
                def gather_ind(): a(f"buffer_load_dwordx4 {V(G)}, v{tmp+1}, {WS}, s77 offen sc1")
                self.poll_loop(gather_ind, [G + 3], sleep=8, name="qind2")
                a(f"v_and_b32 v{tmp}, 31, v1"); a("s_movk_i32 s68, 2560"); a(f"v_mul_u32_u24 v{tmp}, s68, v{tmp}")
            def gather_y(): a(f"buffer_load_dwordx4 {V(G)}, v{tmp}, {WS}, s76 offen sc1")
            self.poll_loop(gather_y, [G + 3], sleep=(0 if br else 4), name="qy")
            self.unpack(G)
            self.row_allreduce(regs, "v_add_f32")
            for r in regs: a(f"v_add_f32_dpp v{r}, v{r}, v{r} row_bcast:15 row_mask:0xa bank_mask:0xf")
            if not br:
                for r in regs: a(f"v_add_f32_dpp v{r}, v{r}, v{r} row_bcast:31 row_mask:0xc bank_mask:0xf")
            a(f"v_cvt_pk_bf16_f32 v{G}, v{G}, v{G+1}"); a(f"v_cvt_pk_bf16_f32 v{G+1}, v{G+2}, v{G+3}")
            if br: a("s_mov_b32 exec_lo, 0x80000000"); a("s_mov_b32 exec_hi, 0")
            else: a("s_mov_b32 exec_lo, 0"); a("s_mov_b32 exec_hi, 0x80000000")
            a(f"buffer_store_dwordx2 {V(G,2)}, v{tmp+1}, {OUT}, s78 offen")
            self.exec_full()
            self.stamp(6 + br)
        a("s_cmp_eq_u32 s79, 0"); a(f"s_cbranch_scc0 {Le}")
        a(f"s_add_u32 s68, s{sEpoch}, 1"); a(f"v_mov_b32 v{tmp}, s68")
        a("s_mov_b64 exec, 1")
        a(f"buffer_store_dword v{tmp}, v{tmp+1}, {WS}, 0 offen")
        self.exec_full()
        a(f"{Le}:")
        self.finish("Q")

    def build(self):
        a = self.a
        self.prologue()
        if "B" in self.roles: self.role_B()
        else: a("s_endpgm")
        a("L_PR:")
        if "P" in self.roles: self.role_PR()
        else: a("s_endpgm")
        a("L_Q:")
        if "Q" in self.roles: self.role_Q()
        else: a("s_endpgm")
        a("L_end:"); a("s_endpgm")
        head = [
            "; concat_heads__compressed_kv_cla__mha_block_cached__decode: one persistent launch, 256 workgroups of 8 waves (one per CU).",
            ";",
            "; Branch A (latent attention) runs in absorbed form: q = x Wq; qa[h] = Wuk[:,h,:] q[h]; softmax(qa . c_kv / sqrt(d)) over the",
            "; 4096 latent rows; ctx[h] = (p c_kv) Wuv[:,h,:]; out = ctx Wo.  Branch B is flash-decoding over the K/V cache.",
            "; Roles by workgroup id (slot = id & 7, idx = id >> 3):",
            ";   idx 0..3   PR  absorption of q (a quarter of the latent dim for four heads), up-projection of one head, final sums",
            ";   idx 4..7   Q   128 latent rows x 32 heads (MFMA scores, softmax, MFMA context), output projection of one head (A)",
            ";   idx 8..31  B   (head, split): a share of both q projections, 18 key tiles per wave plus key units claimed from the",
            ";                  head's pool with an atomic counter, online softmax, output projection of one column block (B)",
            "; Hand-offs between workgroups go through d_ws as 16-byte granules (four 24-bit floats or raw words + a 32-bit tag)",
            "; written by single write-through stores and polled with L1-bypassing loads.  The tag is a hash of an epoch word in d_ws that",
            "; the launch advances at its end, so granules of earlier launches never match.  The latent context partials are raw bf16;",
            "; their flag is the (max, sum) granule stored after all of them were acknowledged.  Softmax always subtracts the true maximum.",
            "; Row-accumulating mat-vecs use the MFMA with a selection-masked coefficient operand on row-major tiles as loaded.",
            f"; @launch grid=(256,1,1) block=(512,1,1) lds={self.lds}",
            '.amdgcn_target "amdgcn-amd-amdhsa--gfx950"', ".text", f".globl {KN}", ".p2align 8", f".type {KN},@function", f"{KN}:"]
        tail = ['.section .rodata,"a"', ".p2align 6", f".amdhsa_kernel {KN}",
            "  .amdhsa_next_free_vgpr 256", "  .amdhsa_next_free_sgpr 102", "  .amdhsa_accum_offset 256",
            "  .amdhsa_group_segment_fixed_size 0", "  .amdhsa_kernarg_size 112", "  .amdhsa_user_sgpr_count 2",
            "  .amdhsa_user_sgpr_kernarg_segment_ptr 1", "  .amdhsa_system_sgpr_workgroup_id_x 1",
            "  .amdhsa_float_denorm_mode_32 3", ".end_amdhsa_kernel"]
        return "\n".join(head) + "\n" + a.text() + "\n".join(tail) + "\n"

if __name__ == "__main__":
    import argparse
    ap = argparse.ArgumentParser()
    ap.add_argument("-o", default="k.s"); ap.add_argument("--prof", action="store_true")
    ap.add_argument("--nt", default="nt"); ap.add_argument("--dbgst", action="store_true"); ap.add_argument("--D0", type=int, default=2); ap.add_argument("--Ds", type=int, default=2); ap.add_argument("--ns", type=int, default=8); ap.add_argument("--Dv", type=int, default=5); ap.add_argument("--pf", type=int, default=1); ap.add_argument("--lin", default=""); ap.add_argument("--bar", type=int, default=0); ap.add_argument("--tlb", type=int, default=0); ap.add_argument("--roles", default="BPQ"); ap.add_argument("-D", type=int, default=5); ap.add_argument("--spin", type=int, default=20000)
    args = ap.parse_args()
    g = Gen(prof=args.prof, D=args.D, spin=args.spin, roles=args.roles, nt=args.nt, dbgst=args.dbgst, D0=args.D0, Ds=args.Ds, ns=args.ns, Dv=args.Dv, pf=args.pf, lin=args.lin, bar=args.bar, tlb=args.tlb)
    open(args.o, "w").write(g.build())
    sys.path.insert(0, "exp"); import build
    print(build.build(args.o))
```

```python
import sys
import gen3 as G3
from gen3 import *
from gen3 import Gen3, NS

WS_CNT = 0xBA000

class Gen4(Gen3):
    NKS = 18
    hrot = 1
    prio = 0
    def role_B(self):
        a = self.a; D = self.D; V = self.V; S = self.S
        vL16, M0, QF, DD, AB, T, T0, T1, U, vTag, vA, vB = 2, 4, 8, 12, 16, 24, 28, 29, 30, 37, 38, 39
        NK = self.NKS; NG = (NK + 3) // 4
        POOL0 = 48 * NK; NU = (1024 - POOL0) // 4
        KT = 40; VT = KT + 4 * NK
        KU = VT + 4 * NK; VU = KU + 16
        vC = VU + 16; vOne = vC + 1; vZ = vC + 2
        WA, WB, X, G = VT, VT + 16, VT + 32, VT + 36
        assert G + 40 <= vC and vZ < 248
        DA = 24
        tmp = 248
        L_PB, L_Q, L_O, L_M, L_L, L_F, L_PA, L_Y = 0, 4096, 8192, 12288, 12416, 12544, 16384, 20480
        a("; ---------------- role B ----------------")
        a("L_B:")
        self.code_prefetch("L_B", "L_PR", 254, 255, 1)
        if self.bmap == 0:
            a("s_sub_u32 s7, s7, 8")
            a("s_mul_i32 s68, s7, 43"); a("s_lshr_b32 s68, s68, 8")
            a(f"s_add_u32 s{sH}, s6, s68")
            a("s_mul_i32 s68, s68, 6"); a(f"s_sub_u32 s{sSub}, s7, s68")
        elif self.bmap == 1:
            a("s_sub_u32 s7, s2, 64")
            a(f"s_mul_i32 s{sH}, s7, 10923"); a(f"s_lshr_b32 s{sH}, s{sH}, 16")
            a(f"s_mul_i32 s68, s{sH}, 6"); a(f"s_sub_u32 s{sSub}, s7, s68")
        else:
            a("s_sub_u32 s7, s2, 64")
            a(f"s_and_b32 s{sH}, s7, 31"); a(f"s_lshr_b32 s{sSub}, s7, 5")
        a(f"v_lshlrev_b32 v{vL16}, 4, v1")
        a(f"v_lshrrev_b32 v{tmp}, 4, v1")
        a(f"v_and_b32 v{tmp+1}, 15, v1")
        a(f"v_lshlrev_b32 v{vB}, 15, v{tmp}"); a(f"v_lshl_add_u32 v{vB}, v{tmp+1}, 4, v{vB}")
        a(f"s_mul_i32 s68, s{sSub}, 7"); a(f"s_add_u32 s68, s68, s{sW}")
        a("s_cmp_lt_u32 s68, 40"); a("s_cselect_b32 s69, 0, 0x7f000000")
        a(f"s_cmp_lt_u32 s{sW}, 7"); a("s_cselect_b32 s69, s69, 0x7f000000")
        a("s_cmp_eq_u32 s69, 0"); a("s_cselect_b32 s68, s68, 0")
        a(f"v_or_b32 v{vB}, s69, v{vB}")
        a("s_lshl_b32 s74, s68, 5"); a(f"v_lshl_add_u32 v{vA}, v{tmp}, 3, s74")
        if self.hrot:
            a(f"s_add_u32 s101, s{sH}, s{sSub}"); a("s_and_b32 s101, s101, 3"); a(f"s_and_b32 s74, s{sH}, 28"); a("s_or_b32 s101, s101, s74")
        else:
            a(f"s_mov_b32 s101, s{sH}")
        a("s_lshl_b32 s73, s68, 17"); a("s_lshl_b32 s74, s101, 8"); a("s_add_u32 s73, s73, s74")
        a(f"s_lshl_b32 s68, s{sSub}, 3"); a(f"s_add_u32 s68, s68, s{sW}")
        a(f"s_mul_i32 s70, s68, {NK*1024}"); a(f"s_lshl_b32 s72, s{sH}, 20")
        a(f"s_add_u32 s83, s72, {POOL0*1024}")
        a("s_add_u32 s72, s72, s70")
        a(f"s_lshl_b32 s82, s{sH}, 7"); a(f"s_add_u32 s82, s82, {WS_CNT}")
        a(f"v_mov_b32 v{vZ}, 0"); a(f"v_mov_b32 v{vOne}, 1")
        a(f"s_lshl_b32 s68, s{sW}, 2"); a(f"v_mov_b32 v{tmp+5}, s68")
        a("s_mov_b64 exec, 1")
        a(f"ds_write_b32 v{tmp+5}, v{vZ} offset:{L_F}")
        a(f"ds_write_b32 v{vZ}, v{vZ} offset:{L_F+32}")
        a(f"ds_write_b32 v{tmp+5}, v{vZ} offset:{L_F+64}")
        self.exec_full()
        a("s_waitcnt lgkmcnt(0)")
        self.srd(SRD3, pWQA, 640 * 8192); self.srd(SRD4, pWQB, 640 * 8192)
        a(f"global_load_dwordx2 {V(X,2)}, v{vA}, s[{pAX}:{pAX+1}]")
        a(f"global_load_dwordx2 {V(X+2,2)}, v{vA}, s[{pBX}:{pBX+1}]")
        def wq_loads(br):
            for i in range(4):
                if i == 0: a("s_mov_b32 s69, s73")
                else: a("s_add_u32 s69, s69, 8192")
                a(f"buffer_load_dwordx4 {V((WB if br else WA)+4*i)}, v{vB}, {S(SRD4 if br else SRD3)}, s69 offen {self.nt}")
        self.srd(SRD1, pK, 32 << 20); self.srd(SRD2, pV, 32 << 20)
        a("s_mov_b32 s75, s72")
        def kv_load(srd, base, i, soff):
            if i and i % 4 == 0: a(f"s_add_u32 s{soff}, s{soff}, 4096")
            a(f"buffer_load_dwordx4 {V(base+4*i)}, v{vL16}, {S(srd)}, s{soff} offen offset:{1024*(i%4)} {self.nt}")
        D0 = self.D0
        late = self.prioA
        wq_loads(0)
        if not late:
            wq_loads(1)
            for i in range(D0): kv_load(SRD1, KT, i, 75)
        a("s_barrier")
        self.common2()
        L = self.lab("bz"); a(f"s_cmp_eq_u32 s{sW}, 7"); a(f"s_cbranch_scc0 {L}"); a(f"s_cmp_eq_u32 s{sSub}, 0"); a(f"s_cbranch_scc0 {L}")
        a("s_mov_b64 exec, 1")
        a(f"buffer_store_dword v{vOne}, v{vZ}, {WS}, s82 offen sc1")
        self.exec_full()
        a("s_waitcnt vmcnt(0)")
        a(f"{L}:")
        self.masks(M0, 1, tmp, tmp + 1)
        a(f"v_and_b32 v{tmp}, 15, v1"); a(f"v_bfe_u32 v{tmp+1}, v1, 4, 1")
        a(f"v_lshl_add_u32 v{tmp}, v{tmp}, 1, v{tmp+1}"); a(f"v_lshlrev_b32 v{tmp}, 4, v{tmp}")
        a(f"s_lshl_b32 s68, s{sW}, 9"); a(f"v_add_u32 v{vA}, s68, v{tmp}")
        sels = [(0, sLo), (0, sHi), (1, sLo), (1, sHi)]
        def project(br):
            for i in range(4):
                xr, sel = sels[i]; xr += X + 2 * br
                a(f"v_perm_b32 v{G+i}, v{xr}, v{xr}, s{sel}")
            self.rowacc(DD if br else DA, AB, M0, 4, lambda i: (G + i, None), lambda i: (WB if br else WA) + 4 * i)
        def publish(wv, fl, lo, wsb):
            L = self.lab("b1"); a(f"s_cmp_eq_u32 s{sW}, {wv}"); a(f"s_cbranch_scc0 {L}")
            def rd():
                a(f"ds_read_b128 {V(G+32)}, v{vZ} offset:{fl}"); a(f"ds_read_b128 {V(G+36)}, v{vZ} offset:{fl+16}")
            self.lds_spin(rd, [G + 32 + k for k in range(8)], "bf1")
            a(f"v_and_b32 v{tmp}, 31, v1"); a(f"v_lshlrev_b32 v{tmp}, 4, v{tmp}")
            for k in range(8): a(f"ds_read_b128 {V(G+4*k)}, v{tmp} offset:{lo+512*k}")
            a(f"s_mul_i32 s68, s101, {NS}"); a(f"s_add_u32 s68, s68, s{sSub}"); a("s_lshl_b32 s68, s68, 9"); a(f"s_add_u32 s68, s68, {wsb}")
            a("s_waitcnt lgkmcnt(0)")
            self.tree_add(G, 8)
            self.pack(G, vTag)
            self.exec_lo32()
            a(f"buffer_store_dwordx4 {V(G)}, v{tmp}, {WS}, s68 offen sc1")
            self.exec_full()
            a(f"{L}:")
        def write_part(br):
            self.exec_lo32()
            a(f"ds_write_b128 v{vA}, {V(DD if br else DA)} offset:{L_PB if br else L_PA}")
            a("s_mov_b32 exec_lo, 1")
            a(f"ds_write_b32 v{tmp+5}, v{vOne} offset:{L_F + (64 if br == 0 else 0)}")
            self.exec_full()
        a(f"s_waitcnt vmcnt({0 if late else 4 + D0})")
        self.stamp(1)
        project(0)
        self.tag(vTag)
        write_part(0)
        publish(0, L_F + 64, L_PA, WS_QA)
        if late:
            wq_loads(1)
            for i in range(D0): kv_load(SRD1, KT, i, 75)
        a(f"s_waitcnt vmcnt({D0})")
        project(1)
        write_part(1)
        publish(2, L_F, L_PB, WS_QB)
        n1 = self.n1; n2 = n1 + D + 1
        assert n2 < NK
        win = lambda i: self.Ds if i < self.ns else D
        def gather_q():
            for s in range(NS):
                a(f"buffer_load_dwordx4 {V(G+4*s)}, v{tmp+3}, {WS}, s76 offen offset:{512*s} sc1")
        for i in range(D0, NK):
            if i >= win(i): a(f"s_waitcnt vmcnt({win(i)-1})")
            kv_load(SRD1, KT, i, 75)
            if i == n1:
                L = self.lab("b2")
                a(f"v_and_b32 v{tmp+3}, 31, v1"); a(f"v_lshlrev_b32 v{tmp+3}, 4, v{tmp+3}")
                a(f"s_mul_i32 s76, s{sH}, {512*NS}"); a(f"s_add_u32 s76, s76, {WS_QB}")
                a(f"s_cmp_eq_u32 s{sW}, 1"); a(f"s_cbranch_scc0 {L}")
                gather_q()
                a(f"{L}:")
            if i == n2:
                L = self.lab("b3"); a(f"s_cmp_eq_u32 s{sW}, 1"); a(f"s_cbranch_scc0 {L}")
                self.poll_loop(gather_q, [G + 4 * s + 3 for s in range(NS)], first_issued=True,
                               first_wait=f"s_waitcnt vmcnt({n2-n1})", name="bq")
                for s in range(NS): self.unpack(G + 4 * s)
                self.tree_add(G, NS)
                a(f"v_cvt_pk_bf16_f32 v{G}, v{G}, v{G+1}")
                a(f"v_cvt_pk_bf16_f32 v{G+1}, v{G+2}, v{G+3}")
                a(f"v_lshrrev_b32 v{tmp+3}, 1, v{tmp+3}")
                self.exec_lo32()
                a(f"ds_write_b64 v{tmp+3}, {V(G,2)} offset:{L_Q}")
                a("s_mov_b32 exec_lo, 1")
                a(f"ds_write_b32 v{vZ}, v{vOne} offset:{L_F+32}")
                self.exec_full()
                a(f"{L}:")
        self.stamp(2)
        if self.bar & 1: a("s_barrier")
        a("s_mov_b32 s75, s72")
        def wait_q():
            a(f"v_and_b32 v{tmp}, 15, v1"); a(f"v_lshlrev_b32 v{tmp}, 4, v{tmp}")
            def rd():
                a(f"ds_read_b32 v{tmp+2}, v{vZ} offset:{L_F+32}")
                a(f"ds_read_b128 {V(QF)}, v{tmp} offset:{L_Q}")
            self.lds_spin(rd, [tmp + 2], "bq2")
        def kgroup(base, n, u):
            for r in range(4):
                for t in range(n):
                    kreg = base + 4 * t + r
                    if r == 0: a(f"v_dot2_f32_bf16 v{T+t}, v{kreg}, v{QF}, 0")
                    else: a(f"v_dot2c_f32_bf16 v{T+t}, v{kreg}, v{QF+r}")
            if n < 4:
                a(f"v_mov_b32 v{T0}, {f2u(NEG):#x}"); a(f"v_mov_b32 v{T1}, {f2u(NEG):#x}")
            for t in range(n):
                a(f"v_add_f32_dpp v{T1 if t & 1 else T0}, v{T+t}, v{T+t} row_ror:8 row_mask:0xf bank_mask:{'0xc' if t & 2 else '0x3'}")
            a(f"v_add_f32_dpp v{u}, v{T0}, v{T0} row_half_mirror row_mask:0xf bank_mask:0x5")
            a(f"v_add_f32_dpp v{u}, v{T1}, v{T1} row_half_mirror row_mask:0xf bank_mask:0xa")
            a(f"v_add_f32_dpp v{u}, v{u}, v{u} quad_perm:[2,3,0,1] row_mask:0xf bank_mask:0xf")
            a(f"v_add_f32_dpp v{u}, v{u}, v{u} quad_perm:[1,0,3,2] row_mask:0xf bank_mask:0xf")
        def allreduce(r, op, t):
            a(f"{op}_dpp v{r}, v{r}, v{r} row_ror:4 row_mask:0xf bank_mask:0xf")
            a(f"{op}_dpp v{r}, v{r}, v{r} row_ror:8 row_mask:0xf bank_mask:0xf")
            a(f"v_mov_b32 v{t}, v{r}"); a(f"v_permlane16_swap_b32 v{r}, v{t}"); a(f"{op} v{r}, v{r}, v{t}")
            a(f"v_mov_b32 v{t}, v{r}"); a(f"v_permlane32_swap_b32 v{r}, v{t}"); a(f"{op} v{r}, v{r}, v{t}")
        vM, vLs = tmp, tmp + 1
        def softmax():
            a(f"v_max3_f32 v{vM}, v{U}, v{U+1}, v{U+2}")
            k = 3
            while k < NG:
                if k + 1 < NG: a(f"v_max3_f32 v{vM}, v{vM}, v{U+k}, v{U+k+1}"); k += 2
                else: a(f"v_max_f32 v{vM}, v{vM}, v{U+k}"); k += 1
            allreduce(vM, "v_max_f32", tmp + 2)
            a(f"v_mul_f32 v{vM}, s{sC1}, v{vM}")
            for k in range(NG): a(f"v_fma_f32 v{U+k}, v{U+k}, s{sC1}, -v{vM}")
            for k in range(NG): a(f"v_exp_f32 v{U+k}, v{U+k}")
            a(f"v_add_f32 v{vLs}, v{U}, v{U+1}")
            for k in range(2, NG): a(f"v_add_f32 v{vLs}, v{vLs}, v{U+k}")
            for k in range(NG): a(f"v_cvt_pk_bf16_f32 v{U+k}, v{U+k}, v{U+k}")
            allreduce(vLs, "v_add_f32", tmp + 2)
        def pv_and(i, u=None, b=None):
            ab = AB + 4 * (i & 1)
            u = U + (i >> 2) if u is None else u
            b = (i & 3) if b is None else b
            for t in range(4):
                a(f"v_and_b32_dpp v{ab+t}, v{u}, v{M0+t} row_newbcast:{4*b} row_mask:0xf bank_mask:0xf")
        def pv_mfma(i, tile=None, first=False):
            ab = AB + 4 * (i & 1)
            tile = VT + 4 * i if tile is None else tile
            a(f"v_mfma_f32_16x16x32_bf16 {V(DD)}, {V(ab)}, {V(tile)}, {'0' if first else V(DD)}")
        def claim():
            a(f"v_mov_b32 v{vC}, 2")
            a("s_mov_b64 exec, 1")
            a(f"buffer_atomic_add v{vC}, v{vZ}, {WS}, s82 offen sc0")
            self.exec_full()
        pv = 0
        SM = 2 * NG
        D = self.Dv
        jA = NK - D
        def prio(p):
            L = self.lab("pr"); a(f"s_cmp_ge_u32 s{sW}, 4"); a(f"s_cbranch_scc0 {L}"); a(f"s_setprio {p}"); a(f"{L}:")
        if self.prio: prio(1)
        for i in range(NK):
            a(f"s_waitcnt vmcnt({D-1})")
            kv_load(SRD2, VT, i, 75)
            if self.prio > 1 and i == self.prio: prio(0)
            if i == 1: wait_q()
            if i == jA:
                if self.bar & 4: a("s_barrier")
                claim()
            if i == SM - 1 and self.bar & 2: a("s_barrier")
            if i < SM and i % 2 == 1: kgroup(KT + 16 * (i // 2), min(4, NK - 4 * (i // 2)), U + i // 2)
            if i == SM - 1:
                softmax(); pv_and(0)
            if i == SM: self.code_prefetch("L_B_t", "L_PR", 254, 255, 1)
            if i >= SM:
                lim = i - D
                for _ in range(2):
                    if pv <= lim and pv + 1 < NK:
                        pv_and(pv + 1); pv_mfma(pv, first=(pv == 0)); pv += 1
        assert jA > SM - 1 or True
        a("L_B_t:")
        self.stamp(3)
        WO = KT + 24
        vWo = tmp + 4
        a(f"v_lshrrev_b32 v{vWo}, 4, v1"); a("s_movk_i32 s68, 5120"); a(f"v_mul_u32_u24 v{vWo}, s68, v{vWo}")
        a(f"v_and_b32 v{tmp+5}, 15, v1"); a(f"v_lshl_add_u32 v{vWo}, v{tmp+5}, 4, v{vWo}")
        a(f"s_cmp_lt_u32 s{sSub}, 5"); a("s_cselect_b32 s68, 0, 0x7f000000"); a(f"v_or_b32 v{vWo}, s68, v{vWo}")
        a(f"s_lshl_b32 s68, s{sH}, 3"); a(f"s_add_u32 s68, s68, s{sW}"); a(f"s_mul_i32 s74, s68, {16*1280}"); a(f"s_lshl_b32 s68, s{sSub}, 8"); a("s_add_u32 s74, s74, s68")
        self.srd(SRD3, pWOB, 4096 * 1280)
        def wo_loads():
            for rg in range(4):
                a(f"buffer_load_dwordx4 {V(WO+4*rg)}, v{vWo}, {S(SRD3)}, s74 offen offset:{1280*rg} {self.nt}")
        def remainder(extra):
            p = pv
            while p < NK:
                a(f"s_waitcnt vmcnt({NK-1-p+extra})")
                if p + 1 < NK: pv_and(p + 1)
                pv_mfma(p, first=(p == 0)); p += 1
        def unit_loads():
            a("s_lshl_b32 s68, s79, 12"); a("s_add_u32 s68, s68, s83")
            claim()
            for t in range(4): a(f"buffer_load_dwordx4 {V(KU+4*t)}, v{vL16}, {S(SRD1)}, s68 offen offset:{1024*t} {self.nt}")
            for t in range(4): a(f"buffer_load_dwordx4 {V(VU+4*t)}, v{vL16}, {S(SRD2)}, s68 offen offset:{1024*t} {self.nt}")
        LN = self.lab("bn"); LL = self.lab("bu"); LJ = self.lab("bj")
        a(f"s_waitcnt vmcnt({NK-1-jA})")
        a(f"v_readfirstlane_b32 s79, v{vC}")
        a("s_bitcmp1_b32 s79, 0"); a(f"s_cbranch_scc1 {LN}_r")
        a("s_waitcnt vmcnt(0)")
        a(f"v_readfirstlane_b32 s79, v{vC}")
        a(f"{LN}_r:")
        a("s_lshr_b32 s79, s79, 1")
        a(f"s_cmp_lt_u32 s79, {NU}"); a(f"s_cbranch_scc0 {LN}")
        unit_loads()
        remainder(8)
        a(f"{LL}:")
        Uu = U; vMn = tmp + 2; vF = tmp + 3
        a("s_waitcnt vmcnt(4)")
        kgroup(KU, 4, Uu)
        a(f"v_mov_b32 v{vMn}, v{Uu}")
        allreduce(vMn, "v_max_f32", T0)
        a(f"v_mul_f32 v{vMn}, s{sC1}, v{vMn}")
        a(f"v_max_f32 v{vMn}, v{vMn}, v{vM}")
        a(f"v_sub_f32 v{vF}, v{vM}, v{vMn}")
        a(f"v_fma_f32 v{Uu}, v{Uu}, s{sC1}, -v{vMn}")
        a(f"v_exp_f32 v{vF}, v{vF}"); a(f"v_exp_f32 v{Uu}, v{Uu}")
        a(f"v_mov_b32 v{vM}, v{vMn}")
        a(f"v_mov_b32 v{vMn}, v{Uu}")
        a(f"v_cvt_pk_bf16_f32 v{Uu}, v{Uu}, v{Uu}")
        allreduce(vMn, "v_add_f32", T0)
        for v in range(4): a(f"v_mul_f32 v{DD+v}, v{vF}, v{DD+v}")
        a(f"v_fma_f32 v{vLs}, v{vLs}, v{vF}, v{vMn}")
        pv_and(0, Uu, 0)
        a("s_waitcnt vmcnt(0)")
        for t in range(4):
            if t + 1 < 4: pv_and(t + 1, Uu, t + 1)
            pv_mfma(t, VU + 4 * t)
        a(f"v_readfirstlane_b32 s79, v{vC}")
        a("s_lshr_b32 s79, s79, 1")
        a(f"s_cmp_lt_u32 s79, {NU}"); a(f"s_cbranch_scc0 {LL}_x")
        unit_loads()
        a(f"s_branch {LL}")
        a(f"{LL}_x:")
        wo_loads()
        a(f"s_branch {LJ}")
        a(f"{LN}:")
        wo_loads()
        remainder(4)
        a(f"{LJ}:")
        a("s_nop 7")
        self.stamp(4)
        a(f"s_lshl_b32 s68, s{sW}, 2"); a(f"v_mov_b32 v{tmp+4}, s68")
        self.exec_lo32()
        a(f"ds_write_b128 v{vA}, {V(DD)} offset:{L_O}")
        a("s_mov_b32 exec_lo, 1")
        a(f"ds_write_b32 v{tmp+4}, v{vM} offset:{L_M}")
        a(f"ds_write_b32 v{tmp+4}, v{vLs} offset:{L_L}")
        self.exec_full()
        R8 = KT
        vG = R8 + 18
        a(f"v_lshrrev_b32 v{vG}, 4, v1"); a(f"v_lshlrev_b32 v{vG}, 4, v{vG}")
        a(f"s_mul_i32 s76, s{sH}, {512*NS}"); a(f"s_add_u32 s78, s76, {WS_OB}")
        a(f"s_lshl_b32 s77, s{sH}, 7"); a(f"s_add_u32 s77, s77, {WS_MLB}")
        a("s_waitcnt lgkmcnt(0)")
        a("s_barrier")
        L = self.lab("b4"); a(f"s_cmp_eq_u32 s{sW}, 0"); a(f"s_cbranch_scc0 {L}")
        a(f"v_and_b32 v{tmp}, 31, v1"); a(f"v_lshlrev_b32 v{tmp}, 4, v{tmp}")
        G2 = VT; MM = G2 + 32; LLr = G2 + 40
        a(f"ds_read_b128 {V(MM)}, v{vZ} offset:{L_M}"); a(f"ds_read_b128 {V(MM+4)}, v{vZ} offset:{L_M+16}")
        a(f"ds_read_b128 {V(LLr)}, v{vZ} offset:{L_L}"); a(f"ds_read_b128 {V(LLr+4)}, v{vZ} offset:{L_L+16}")
        for k in range(8): a(f"ds_read_b128 {V(G2+4*k)}, v{tmp} offset:{L_O+512*k}")
        a(f"s_lshl_b32 s68, s{sSub}, 9"); a("s_add_u32 s68, s68, s78")
        a(f"s_lshl_b32 s69, s{sSub}, 4"); a("s_add_u32 s69, s69, s77")
        vMc = R8 + 16; ML = R8 + 20
        a("s_waitcnt lgkmcnt(10)")
        a(f"v_max3_f32 v{vMc}, v{MM}, v{MM+1}, v{MM+2}"); a(f"v_max3_f32 v{vMc}, v{vMc}, v{MM+3}, v{MM+4}")
        a(f"v_max3_f32 v{vMc}, v{vMc}, v{MM+5}, v{MM+6}"); a(f"v_max_f32 v{vMc}, v{vMc}, v{MM+7}")
        for k in range(8): a(f"v_sub_f32 v{MM+k}, v{MM+k}, v{vMc}")
        for k in range(8): a(f"v_exp_f32 v{MM+k}, v{MM+k}")
        a("s_waitcnt lgkmcnt(0)")
        a(f"v_mul_f32 v{ML+1}, v{MM}, v{LLr}")
        for v in range(4): a(f"v_mul_f32 v{G2+v}, v{MM}, v{G2+v}")
        for k in range(1, 8):
            a(f"v_fmac_f32 v{ML+1}, v{MM+k}, v{LLr+k}")
            for v in range(4): a(f"v_fmac_f32 v{G2+v}, v{MM+k}, v{G2+4*k+v}")
        self.pack(G2, vTag)
        self.exec_lo32()
        a(f"buffer_store_dwordx4 {V(G2)}, v{tmp}, {WS}, s68 offen sc1")
        a(f"v_mov_b32 v{ML}, v{vMc}")
        a(f"v_mov_b32 v{ML+2}, 0"); a(f"v_mov_b32 v{ML+3}, v{vTag}")
        a("s_mov_b32 exec_lo, 1")
        a(f"buffer_store_dwordx4 {V(ML)}, v{vZ}, {WS}, s69 offen sc1")
        self.exec_full()
        a(f"{L}:")
        self.stamp(5)
        Le = self.lab("bend")
        a(f"s_cmp_lt_u32 s{sSub}, 5"); a(f"s_cbranch_scc0 {Le}")
        EG = VT + 48; ME = EG + 12; L_C = 24576
        O = U
        L = self.lab("bc"); a(f"s_cmp_eq_u32 s{sW}, 0"); a(f"s_cbranch_scc0 {L}")
        a(f"v_lshrrev_b32 v{tmp+1}, 5, v1"); a(f"v_lshlrev_b32 v{tmp+2}, 4, v{tmp+1}")
        a(f"v_lshl_add_u32 v{tmp+1}, v{tmp+1}, 9, v{tmp}")
        def gather_ob():
            for j in range(3): a(f"buffer_load_dwordx4 {V(EG+4*j)}, v{tmp+1}, {WS}, s78 offen offset:{1024*j} sc1")
            for j in range(3): a(f"buffer_load_dwordx4 {V(ME+4*j)}, v{tmp+2}, {WS}, s77 offen offset:{32*j} sc1")
        self.poll_loop(gather_ob, [EG + 4 * j + 3 for j in range(6)], sleep=0, name="bob")
        self.stamp(6)
        vMx = T; vL = T + 1
        def half_allred(r, op, t):
            a(f"v_mov_b32 v{t}, v{r}"); a(f"v_permlane32_swap_b32 v{r}, v{t}"); a(f"{op} v{r}, v{r}, v{t}")
        a(f"v_max3_f32 v{vMx}, v{ME}, v{ME+4}, v{ME+8}")
        half_allred(vMx, "v_max_f32", T + 2)
        for j in range(3): self.unpack(EG + 4 * j)
        for j in range(3): a(f"v_sub_f32 v{ME+4*j}, v{ME+4*j}, v{vMx}")
        for j in range(3): a(f"v_exp_f32 v{ME+4*j}, v{ME+4*j}")
        a(f"v_mul_f32 v{vL}, v{ME}, v{ME+1}")
        for v in range(4): a(f"v_mul_f32 v{O+v}, v{ME}, v{EG+v}")
        for j in range(1, 3):
            a(f"v_fmac_f32 v{vL}, v{ME+4*j}, v{ME+4*j+1}")
            for v in range(4): a(f"v_fmac_f32 v{O+v}, v{ME+4*j}, v{EG+4*j+v}")
        a(f"v_mov_b32 v{EG}, v{vL}")
        for v in range(4): a(f"v_mov_b32 v{EG+1+v}, v{O+v}")
        a(f"v_permlane32_swap_b32 v{vL}, v{EG}")
        for v in range(4): a(f"v_permlane32_swap_b32 v{O+v}, v{EG+1+v}")
        a(f"v_add_f32 v{vL}, v{vL}, v{EG}")
        for v in range(4): a(f"v_add_f32 v{O+v}, v{O+v}, v{EG+1+v}")
        a(f"v_rcp_f32 v{vL}, v{vL}")
        for v in range(4): a(f"v_mul_f32 v{O+v}, v{vL}, v{O+v}")
        for v in range(4): a(f"v_cvt_pk_bf16_f32 v{O+v}, v{O+v}, v{O+v}")
        self.exec_lo32()
        a(f"ds_write_b128 v{tmp}, {V(O)} offset:{L_C}")
        self.exec_full()
        a("s_waitcnt lgkmcnt(0)")
        a(f"s_branch {L}_j")
        a(f"{L}:")
        a("s_waitcnt vmcnt(0)")
        a(f"{L}_j:")
        a(f"s_lshl_b32 s68, s{sW}, 6"); a(f"v_add_u32 v{vG}, s68, v{vG}")
        a("s_barrier")
        a(f"ds_read_b128 {V(O)}, v{vG} offset:{L_C}")
        a("s_waitcnt lgkmcnt(0)")
        self.rowacc(DD, AB, M0, 4, lambda i: (O + i, None), lambda i: WO + 4 * i)
        self.exec_lo32()
        a(f"ds_write_b128 v{vA}, {V(DD)} offset:{L_Y}")
        self.exec_full()
        a("s_waitcnt lgkmcnt(0)")
        a("s_barrier")
        a(f"s_cmp_eq_u32 s{sW}, 0"); a(f"s_cbranch_scc0 {Le}")
        a(f"v_and_b32 v{tmp}, 31, v1"); a(f"v_lshlrev_b32 v{tmp}, 4, v{tmp}")
        for k in range(8): a(f"ds_read_b128 {V(G2+4*k)}, v{tmp} offset:{L_Y+512*k}")
        a(f"s_mul_i32 s68, s{sH}, 2560"); a(f"s_lshl_b32 s69, s{sSub}, 9"); a("s_add_u32 s68, s68, s69"); a(f"s_add_u32 s68, s68, {WS_YB}")
        a("s_waitcnt lgkmcnt(0)")
        self.tree_add(G2, 8)
        self.pack(G2, vTag)
        self.exec_lo32()
        a(f"buffer_store_dwordx4 {V(G2)}, v{tmp}, {WS}, s68 offen sc1")
        self.exec_full()
        a(f"{Le}:")
        self.stamp(7)
        self.finish("B")

if __name__ == "__main__":
    import argparse
    ap = argparse.ArgumentParser()
    ap.add_argument("-o", default="k.s"); ap.add_argument("--prof", action="store_true"); ap.add_argument("--dbgst", action="store_true")
    ap.add_argument("--roles", default="BPQ"); ap.add_argument("--spin", type=int, default=20000); ap.add_argument("--nt", default="nt")
    for k, d in dict(D=4, D0=2, Ds=4, ns=0, Dv=6, pf=1, bar=3, n1=9, prioA=1, NL=8, N1=4, pf2=1, bmap=1, NKS=18, hrot=1, exp=0, prio=0).items(): ap.add_argument("--" + k, type=int, default=d)
    args = ap.parse_args()
    g = Gen4(prof=args.prof, D=args.D, spin=args.spin, roles=args.roles, nt=args.nt, dbgst=args.dbgst, D0=args.D0, Ds=args.Ds, ns=args.ns, Dv=args.Dv, pf=args.pf, bar=args.bar, n1=args.n1)
    g.prioA = args.prioA; g.NL = args.NL; g.N1 = args.N1; g.pf2 = args.pf2; g.bmap = args.bmap; g.NKS = args.NKS; g.hrot = args.hrot; g.exp = args.exp; g.prio = args.prio; g.lds = 163840 if args.NL else 131072
    open(args.o, "w").write(g.build())
    sys.path.insert(0, "exp"); import build
    print(build.build(args.o))
```

```python
import sys
import gen3 as G3
from gen3 import *
from gen3 import Gen3, NS

WS_CNT = 0xBA000

class Gen4(Gen3):
    NKS = 18
    hrot = 1
    prio = 0
    UT = 4
    def role_B(self):
        a = self.a; D = self.D; V = self.V; S = self.S
        vL16, M0, QF, DD, AB, T, T0, T1, U, vTag, vA, vB = 2, 4, 8, 12, 16, 24, 28, 29, 30, 37, 38, 39
        NK = self.NKS; NG = (NK + 3) // 4
        UT = self.UT
        POOL0 = 48 * NK; NU = (1024 - POOL0) // UT; assert (1024 - POOL0) % UT == 0
        KT = 40; VT = KT + 4 * NK
        KU = VT + 4 * NK; VU = KU + 16
        vC = VU + 16; vOne = vC + 1; vZ = vC + 2
        WA, WB, X, G = VT, VT + 16, VT + 32, VT + 36
        assert G + 40 <= vC and vZ < 248
        DA = 24
        tmp = 248
        L_PB, L_Q, L_O, L_M, L_L, L_F, L_PA, L_Y = 0, 4096, 8192, 12288, 12416, 12544, 16384, 20480
        a("; ---------------- role B ----------------")
        a("L_B:")
        self.code_prefetch("L_B", "L_PR", 254, 255, 1)
        if self.bmap == 0:
            a("s_sub_u32 s7, s7, 8")
            a("s_mul_i32 s68, s7, 43"); a("s_lshr_b32 s68, s68, 8")
            a(f"s_add_u32 s{sH}, s6, s68")
            a("s_mul_i32 s68, s68, 6"); a(f"s_sub_u32 s{sSub}, s7, s68")
        elif self.bmap == 1:
            a("s_sub_u32 s7, s2, 64")
            a(f"s_mul_i32 s{sH}, s7, 10923"); a(f"s_lshr_b32 s{sH}, s{sH}, 16")
            a(f"s_mul_i32 s68, s{sH}, 6"); a(f"s_sub_u32 s{sSub}, s7, s68")
        else:
            a("s_sub_u32 s7, s2, 64")
            a(f"s_and_b32 s{sH}, s7, 31"); a(f"s_lshr_b32 s{sSub}, s7, 5")
        a(f"v_lshlrev_b32 v{vL16}, 4, v1")
        a(f"v_lshrrev_b32 v{tmp}, 4, v1")
        a(f"v_and_b32 v{tmp+1}, 15, v1")
        a(f"v_lshlrev_b32 v{vB}, 15, v{tmp}"); a(f"v_lshl_add_u32 v{vB}, v{tmp+1}, 4, v{vB}")
        a(f"s_mul_i32 s68, s{sSub}, 7"); a(f"s_add_u32 s68, s68, s{sW}")
        a("s_cmp_lt_u32 s68, 40"); a("s_cselect_b32 s69, 0, 0x7f000000")
        a(f"s_cmp_lt_u32 s{sW}, 7"); a("s_cselect_b32 s69, s69, 0x7f000000")
        a("s_cmp_eq_u32 s69, 0"); a("s_cselect_b32 s68, s68, 0")
        a(f"v_or_b32 v{vB}, s69, v{vB}")
        a("s_lshl_b32 s74, s68, 5"); a(f"v_lshl_add_u32 v{vA}, v{tmp}, 3, s74")
        if self.hrot:
            a(f"s_add_u32 s101, s{sH}, s{sSub}"); a("s_and_b32 s101, s101, 3"); a(f"s_and_b32 s74, s{sH}, 28"); a("s_or_b32 s101, s101, s74")
        else:
            a(f"s_mov_b32 s101, s{sH}")
        a("s_lshl_b32 s73, s68, 17"); a("s_lshl_b32 s74, s101, 8"); a("s_add_u32 s73, s73, s74")
        a(f"s_lshl_b32 s68, s{sSub}, 3"); a(f"s_add_u32 s68, s68, s{sW}")
        a(f"s_mul_i32 s70, s68, {NK*1024}"); a(f"s_lshl_b32 s72, s{sH}, 20")
        a(f"s_add_u32 s83, s72, {POOL0*1024}")
        a("s_add_u32 s72, s72, s70")
        a(f"s_lshl_b32 s82, s{sH}, 7"); a(f"s_add_u32 s82, s82, {WS_CNT}")
        a(f"v_mov_b32 v{vZ}, 0"); a(f"v_mov_b32 v{vOne}, 1")
        a(f"s_lshl_b32 s68, s{sW}, 2"); a(f"v_mov_b32 v{tmp+5}, s68")
        a("s_mov_b64 exec, 1")
        a(f"ds_write_b32 v{tmp+5}, v{vZ} offset:{L_F}")
        a(f"ds_write_b32 v{vZ}, v{vZ} offset:{L_F+32}")
        a(f"ds_write_b32 v{tmp+5}, v{vZ} offset:{L_F+64}")
        self.exec_full()
        a("s_waitcnt lgkmcnt(0)")
        self.srd(SRD3, pWQA, 640 * 8192); self.srd(SRD4, pWQB, 640 * 8192)
        a(f"global_load_dwordx2 {V(X,2)}, v{vA}, s[{pAX}:{pAX+1}]")
        a(f"global_load_dwordx2 {V(X+2,2)}, v{vA}, s[{pBX}:{pBX+1}]")
        def wq_loads(br):
            for i in range(4):
                if i == 0: a("s_mov_b32 s69, s73")
                else: a("s_add_u32 s69, s69, 8192")
                a(f"buffer_load_dwordx4 {V((WB if br else WA)+4*i)}, v{vB}, {S(SRD4 if br else SRD3)}, s69 offen {self.nt}")
        self.srd(SRD1, pK, 32 << 20); self.srd(SRD2, pV, 32 << 20)
        a("s_mov_b32 s75, s72")
        def kv_load(srd, base, i, soff):
            if i and i % 4 == 0: a(f"s_add_u32 s{soff}, s{soff}, 4096")
            a(f"buffer_load_dwordx4 {V(base+4*i)}, v{vL16}, {S(srd)}, s{soff} offen offset:{1024*(i%4)} {self.nt}")
        D0 = self.D0
        late = self.prioA
        wq_loads(0)
        if not late:
            wq_loads(1)
            for i in range(D0): kv_load(SRD1, KT, i, 75)
        a("s_barrier")
        self.common2()
        L = self.lab("bz"); a(f"s_cmp_eq_u32 s{sW}, 7"); a(f"s_cbranch_scc0 {L}"); a(f"s_cmp_eq_u32 s{sSub}, 0"); a(f"s_cbranch_scc0 {L}")
        a("s_mov_b64 exec, 1")
        a(f"buffer_store_dword v{vOne}, v{vZ}, {WS}, s82 offen sc1")
        self.exec_full()
        a("s_waitcnt vmcnt(0)")
        a(f"{L}:")
        self.masks(M0, 1, tmp, tmp + 1)
        a(f"v_and_b32 v{tmp}, 15, v1"); a(f"v_bfe_u32 v{tmp+1}, v1, 4, 1")
        a(f"v_lshl_add_u32 v{tmp}, v{tmp}, 1, v{tmp+1}"); a(f"v_lshlrev_b32 v{tmp}, 4, v{tmp}")
        a(f"s_lshl_b32 s68, s{sW}, 9"); a(f"v_add_u32 v{vA}, s68, v{tmp}")
        sels = [(0, sLo), (0, sHi), (1, sLo), (1, sHi)]
        def project(br):
            for i in range(4):
                xr, sel = sels[i]; xr += X + 2 * br
                a(f"v_perm_b32 v{G+i}, v{xr}, v{xr}, s{sel}")
            self.rowacc(DD if br else DA, AB, M0, 4, lambda i: (G + i, None), lambda i: (WB if br else WA) + 4 * i)
        def publish(wv, fl, lo, wsb):
            L = self.lab("b1"); a(f"s_cmp_eq_u32 s{sW}, {wv}"); a(f"s_cbranch_scc0 {L}")
            def rd():
                a(f"ds_read_b128 {V(G+32)}, v{vZ} offset:{fl}"); a(f"ds_read_b128 {V(G+36)}, v{vZ} offset:{fl+16}")
            self.lds_spin(rd, [G + 32 + k for k in range(8)], "bf1")
            a(f"v_and_b32 v{tmp}, 31, v1"); a(f"v_lshlrev_b32 v{tmp}, 4, v{tmp}")
            for k in range(8): a(f"ds_read_b128 {V(G+4*k)}, v{tmp} offset:{lo+512*k}")
            a(f"s_mul_i32 s68, s101, {NS}"); a(f"s_add_u32 s68, s68, s{sSub}"); a("s_lshl_b32 s68, s68, 9"); a(f"s_add_u32 s68, s68, {wsb}")
            a("s_waitcnt lgkmcnt(0)")
            self.tree_add(G, 8)
            self.pack(G, vTag)
            self.exec_lo32()
            a(f"buffer_store_dwordx4 {V(G)}, v{tmp}, {WS}, s68 offen sc1")
            self.exec_full()
            a(f"{L}:")
        def write_part(br):
            self.exec_lo32()
            a(f"ds_write_b128 v{vA}, {V(DD if br else DA)} offset:{L_PB if br else L_PA}")
            a("s_mov_b32 exec_lo, 1")
            a(f"ds_write_b32 v{tmp+5}, v{vOne} offset:{L_F + (64 if br == 0 else 0)}")
            self.exec_full()
        a(f"s_waitcnt vmcnt({0 if late else 4 + D0})")
        self.stamp(1)
        project(0)
        self.tag(vTag)
        write_part(0)
        publish(0, L_F + 64, L_PA, WS_QA)
        if late:
            wq_loads(1)
            for i in range(D0): kv_load(SRD1, KT, i, 75)
        a(f"s_waitcnt vmcnt({D0})")
        project(1)
        write_part(1)
        publish(2, L_F, L_PB, WS_QB)
        n1 = self.n1; n2 = n1 + D + 1
        assert n2 < NK
        win = lambda i: self.Ds if i < self.ns else D
        def gather_q():
            for s in range(NS):
                a(f"buffer_load_dwordx4 {V(G+4*s)}, v{tmp+3}, {WS}, s76 offen offset:{512*s} sc1")
        for i in range(D0, NK):
            if i >= win(i): a(f"s_waitcnt vmcnt({win(i)-1})")
            kv_load(SRD1, KT, i, 75)
            if i == n1:
                L = self.lab("b2")
                a(f"v_and_b32 v{tmp+3}, 31, v1"); a(f"v_lshlrev_b32 v{tmp+3}, 4, v{tmp+3}")
                a(f"s_mul_i32 s76, s{sH}, {512*NS}"); a(f"s_add_u32 s76, s76, {WS_QB}")
                a(f"s_cmp_eq_u32 s{sW}, 1"); a(f"s_cbranch_scc0 {L}")
                gather_q()
                a(f"{L}:")
            if i == n2:
                L = self.lab("b3"); a(f"s_cmp_eq_u32 s{sW}, 1"); a(f"s_cbranch_scc0 {L}")
                self.poll_loop(gather_q, [G + 4 * s + 3 for s in range(NS)], first_issued=True,
                               first_wait=f"s_waitcnt vmcnt({n2-n1})", name="bq")
                for s in range(NS): self.unpack(G + 4 * s)
                self.tree_add(G, NS)
                a(f"v_cvt_pk_bf16_f32 v{G}, v{G}, v{G+1}")
                a(f"v_cvt_pk_bf16_f32 v{G+1}, v{G+2}, v{G+3}")
                a(f"v_lshrrev_b32 v{tmp+3}, 1, v{tmp+3}")
                self.exec_lo32()
                a(f"ds_write_b64 v{tmp+3}, {V(G,2)} offset:{L_Q}")
                a("s_mov_b32 exec_lo, 1")
                a(f"ds_write_b32 v{vZ}, v{vOne} offset:{L_F+32}")
                self.exec_full()
                a(f"{L}:")
        self.stamp(2)
        if self.bar & 1: a("s_barrier")
        a("s_mov_b32 s75, s72")
        def wait_q():
            a(f"v_and_b32 v{tmp}, 15, v1"); a(f"v_lshlrev_b32 v{tmp}, 4, v{tmp}")
            def rd():
                a(f"ds_read_b32 v{tmp+2}, v{vZ} offset:{L_F+32}")
                a(f"ds_read_b128 {V(QF)}, v{tmp} offset:{L_Q}")
            self.lds_spin(rd, [tmp + 2], "bq2")
        def kgroup(base, n, u):
            for r in range(4):
                for t in range(n):
                    kreg = base + 4 * t + r
                    if r == 0: a(f"v_dot2_f32_bf16 v{T+t}, v{kreg}, v{QF}, 0")
                    else: a(f"v_dot2c_f32_bf16 v{T+t}, v{kreg}, v{QF+r}")
            if n < 4:
                a(f"v_mov_b32 v{T0}, {f2u(NEG):#x}"); a(f"v_mov_b32 v{T1}, {f2u(NEG):#x}")
            for t in range(n):
                a(f"v_add_f32_dpp v{T1 if t & 1 else T0}, v{T+t}, v{T+t} row_ror:8 row_mask:0xf bank_mask:{'0xc' if t & 2 else '0x3'}")
            a(f"v_add_f32_dpp v{u}, v{T0}, v{T0} row_half_mirror row_mask:0xf bank_mask:0x5")
            a(f"v_add_f32_dpp v{u}, v{T1}, v{T1} row_half_mirror row_mask:0xf bank_mask:0xa")
            a(f"v_add_f32_dpp v{u}, v{u}, v{u} quad_perm:[2,3,0,1] row_mask:0xf bank_mask:0xf")
            a(f"v_add_f32_dpp v{u}, v{u}, v{u} quad_perm:[1,0,3,2] row_mask:0xf bank_mask:0xf")
        def allreduce(r, op, t):
            a(f"{op}_dpp v{r}, v{r}, v{r} row_ror:4 row_mask:0xf bank_mask:0xf")
            a(f"{op}_dpp v{r}, v{r}, v{r} row_ror:8 row_mask:0xf bank_mask:0xf")
            a(f"v_mov_b32 v{t}, v{r}"); a(f"v_permlane16_swap_b32 v{r}, v{t}"); a(f"{op} v{r}, v{r}, v{t}")
            a(f"v_mov_b32 v{t}, v{r}"); a(f"v_permlane32_swap_b32 v{r}, v{t}"); a(f"{op} v{r}, v{r}, v{t}")
        vM, vLs = tmp, tmp + 1
        def softmax():
            a(f"v_max3_f32 v{vM}, v{U}, v{U+1}, v{U+2}")
            k = 3
            while k < NG:
                if k + 1 < NG: a(f"v_max3_f32 v{vM}, v{vM}, v{U+k}, v{U+k+1}"); k += 2
                else: a(f"v_max_f32 v{vM}, v{vM}, v{U+k}"); k += 1
            allreduce(vM, "v_max_f32", tmp + 2)
            a(f"v_mul_f32 v{vM}, s{sC1}, v{vM}")
            for k in range(NG): a(f"v_fma_f32 v{U+k}, v{U+k}, s{sC1}, -v{vM}")
            for k in range(NG): a(f"v_exp_f32 v{U+k}, v{U+k}")
            a(f"v_add_f32 v{vLs}, v{U}, v{U+1}")
            for k in range(2, NG): a(f"v_add_f32 v{vLs}, v{vLs}, v{U+k}")
            for k in range(NG): a(f"v_cvt_pk_bf16_f32 v{U+k}, v{U+k}, v{U+k}")
            allreduce(vLs, "v_add_f32", tmp + 2)
        def pv_and(i, u=None, b=None):
            ab = AB + 4 * (i & 1)
            u = U + (i >> 2) if u is None else u
            b = (i & 3) if b is None else b
            for t in range(4):
                a(f"v_and_b32_dpp v{ab+t}, v{u}, v{M0+t} row_newbcast:{4*b} row_mask:0xf bank_mask:0xf")
        def pv_mfma(i, tile=None, first=False):
            ab = AB + 4 * (i & 1)
            tile = VT + 4 * i if tile is None else tile
            a(f"v_mfma_f32_16x16x32_bf16 {V(DD)}, {V(ab)}, {V(tile)}, {'0' if first else V(DD)}")
        def claim():
            a(f"v_mov_b32 v{vC}, 2")
            a("s_mov_b64 exec, 1")
            a(f"buffer_atomic_add v{vC}, v{vZ}, {WS}, s82 offen sc0")
            self.exec_full()
        pv = 0
        SM = 2 * NG
        D = self.Dv
        jA = NK - D
        def prio(p):
            L = self.lab("pr"); a(f"s_cmp_ge_u32 s{sW}, 4"); a(f"s_cbranch_scc0 {L}"); a(f"s_setprio {p}"); a(f"{L}:")
        if self.prio: prio(1)
        for i in range(NK):
            a(f"s_waitcnt vmcnt({D-1})")
            kv_load(SRD2, VT, i, 75)
            if self.prio > 1 and i == self.prio: prio(0)
            if i == 1: wait_q()
            if i == jA:
                if self.bar & 4: a("s_barrier")
                claim()
            if i == SM - 1 and self.bar & 2: a("s_barrier")
            if i < SM and i % 2 == 1: kgroup(KT + 16 * (i // 2), min(4, NK - 4 * (i // 2)), U + i // 2)
            if i == SM - 1:
                softmax(); pv_and(0)
            if i == SM: self.code_prefetch("L_B_t", "L_PR", 254, 255, 1)
            if i >= SM:
                lim = i - D
                for _ in range(2):
                    if pv <= lim and pv + 1 < NK:
                        pv_and(pv + 1); pv_mfma(pv, first=(pv == 0)); pv += 1
        assert jA > SM - 1 or True
        a("L_B_t:")
        self.stamp(3)
        WO = KT + 24
        vWo = tmp + 4
        a(f"v_lshrrev_b32 v{vWo}, 4, v1"); a("s_movk_i32 s68, 5120"); a(f"v_mul_u32_u24 v{vWo}, s68, v{vWo}")
        a(f"v_and_b32 v{tmp+5}, 15, v1"); a(f"v_lshl_add_u32 v{vWo}, v{tmp+5}, 4, v{vWo}")
        a(f"s_cmp_lt_u32 s{sSub}, 5"); a("s_cselect_b32 s68, 0, 0x7f000000"); a(f"v_or_b32 v{vWo}, s68, v{vWo}")
        a(f"s_lshl_b32 s68, s{sH}, 3"); a(f"s_add_u32 s68, s68, s{sW}"); a(f"s_mul_i32 s74, s68, {16*1280}"); a(f"s_lshl_b32 s68, s{sSub}, 8"); a("s_add_u32 s74, s74, s68")
        self.srd(SRD3, pWOB, 4096 * 1280)
        def wo_loads():
            for rg in range(4):
                a(f"buffer_load_dwordx4 {V(WO+4*rg)}, v{vWo}, {S(SRD3)}, s74 offen offset:{1280*rg} {self.nt}")
        def remainder(extra):
            p = pv
            while p < NK:
                a(f"s_waitcnt vmcnt({NK-1-p+extra})")
                if p + 1 < NK: pv_and(p + 1)
                pv_mfma(p, first=(p == 0)); p += 1
        def unit_loads():
            a(f"s_mul_i32 s68, s79, {1024*UT}"); a("s_add_u32 s68, s68, s83")
            claim()
            for t in range(UT): a(f"buffer_load_dwordx4 {V(KU+4*t)}, v{vL16}, {S(SRD1)}, s68 offen offset:{1024*t} {self.nt}")
            for t in range(UT): a(f"buffer_load_dwordx4 {V(VU+4*t)}, v{vL16}, {S(SRD2)}, s68 offen offset:{1024*t} {self.nt}")
        LN = self.lab("bn"); LL = self.lab("bu"); LJ = self.lab("bj")
        a(f"s_waitcnt vmcnt({NK-1-jA})")
        a(f"v_readfirstlane_b32 s79, v{vC}")
        a("s_bitcmp1_b32 s79, 0"); a(f"s_cbranch_scc1 {LN}_r")
        a("s_waitcnt vmcnt(0)")
        a(f"v_readfirstlane_b32 s79, v{vC}")
        a(f"{LN}_r:")
        a("s_lshr_b32 s79, s79, 1")
        a(f"s_cmp_lt_u32 s79, {NU}"); a(f"s_cbranch_scc0 {LN}")
        unit_loads()
        remainder(2 * UT)
        a(f"{LL}:")
        Uu = U; vMn = tmp + 2; vF = tmp + 3
        a(f"s_waitcnt vmcnt({UT})")
        kgroup(KU, UT, Uu)
        a(f"v_mov_b32 v{vMn}, v{Uu}")
        allreduce(vMn, "v_max_f32", T0)
        a(f"v_mul_f32 v{vMn}, s{sC1}, v{vMn}")
        a(f"v_max_f32 v{vMn}, v{vMn}, v{vM}")
        a(f"v_sub_f32 v{vF}, v{vM}, v{vMn}")
        a(f"v_fma_f32 v{Uu}, v{Uu}, s{sC1}, -v{vMn}")
        a(f"v_exp_f32 v{vF}, v{vF}"); a(f"v_exp_f32 v{Uu}, v{Uu}")
        a(f"v_mov_b32 v{vM}, v{vMn}")
        a(f"v_mov_b32 v{vMn}, v{Uu}")
        a(f"v_cvt_pk_bf16_f32 v{Uu}, v{Uu}, v{Uu}")
        allreduce(vMn, "v_add_f32", T0)
        for v in range(4): a(f"v_mul_f32 v{DD+v}, v{vF}, v{DD+v}")
        a(f"v_fma_f32 v{vLs}, v{vLs}, v{vF}, v{vMn}")
        pv_and(0, Uu, 0)
        a("s_waitcnt vmcnt(0)")
        for t in range(UT):
            if t + 1 < UT: pv_and(t + 1, Uu, t + 1)
            pv_mfma(t, VU + 4 * t)
        a(f"v_readfirstlane_b32 s79, v{vC}")
        a("s_lshr_b32 s79, s79, 1")
        a(f"s_cmp_lt_u32 s79, {NU}"); a(f"s_cbranch_scc0 {LL}_x")
        unit_loads()
        a(f"s_branch {LL}")
        a(f"{LL}_x:")
        wo_loads()
        a(f"s_branch {LJ}")
        a(f"{LN}:")
        wo_loads()
        remainder(4)
        a(f"{LJ}:")
        a("s_nop 7")
        self.stamp(4)
        a(f"s_lshl_b32 s68, s{sW}, 2"); a(f"v_mov_b32 v{tmp+4}, s68")
        self.exec_lo32()
        a(f"ds_write_b128 v{vA}, {V(DD)} offset:{L_O}")
        a("s_mov_b32 exec_lo, 1")
        a(f"ds_write_b32 v{tmp+4}, v{vM} offset:{L_M}")
        a(f"ds_write_b32 v{tmp+4}, v{vLs} offset:{L_L}")
        self.exec_full()
        R8 = KT
        vG = R8 + 18
        a(f"v_lshrrev_b32 v{vG}, 4, v1"); a(f"v_lshlrev_b32 v{vG}, 4, v{vG}")
        a(f"s_mul_i32 s76, s{sH}, {512*NS}"); a(f"s_add_u32 s78, s76, {WS_OB}")
        a(f"s_lshl_b32 s77, s{sH}, 7"); a(f"s_add_u32 s77, s77, {WS_MLB}")
        a("s_waitcnt lgkmcnt(0)")
        a("s_barrier")
        L = self.lab("b4"); a(f"s_cmp_eq_u32 s{sW}, 0"); a(f"s_cbranch_scc0 {L}")
        a(f"v_and_b32 v{tmp}, 31, v1"); a(f"v_lshlrev_b32 v{tmp}, 4, v{tmp}")
        G2 = VT; MM = G2 + 32; LLr = G2 + 40
        a(f"ds_read_b128 {V(MM)}, v{vZ} offset:{L_M}"); a(f"ds_read_b128 {V(MM+4)}, v{vZ} offset:{L_M+16}")
        a(f"ds_read_b128 {V(LLr)}, v{vZ} offset:{L_L}"); a(f"ds_read_b128 {V(LLr+4)}, v{vZ} offset:{L_L+16}")
        for k in range(8): a(f"ds_read_b128 {V(G2+4*k)}, v{tmp} offset:{L_O+512*k}")
        a(f"s_lshl_b32 s68, s{sSub}, 9"); a("s_add_u32 s68, s68, s78")
        a(f"s_lshl_b32 s69, s{sSub}, 4"); a("s_add_u32 s69, s69, s77")
        vMc = R8 + 16; ML = R8 + 20
        a("s_waitcnt lgkmcnt(10)")
        a(f"v_max3_f32 v{vMc}, v{MM}, v{MM+1}, v{MM+2}"); a(f"v_max3_f32 v{vMc}, v{vMc}, v{MM+3}, v{MM+4}")
        a(f"v_max3_f32 v{vMc}, v{vMc}, v{MM+5}, v{MM+6}"); a(f"v_max_f32 v{vMc}, v{vMc}, v{MM+7}")
        for k in range(8): a(f"v_sub_f32 v{MM+k}, v{MM+k}, v{vMc}")
        for k in range(8): a(f"v_exp_f32 v{MM+k}, v{MM+k}")
        a("s_waitcnt lgkmcnt(0)")
        a(f"v_mul_f32 v{ML+1}, v{MM}, v{LLr}")
        for v in range(4): a(f"v_mul_f32 v{G2+v}, v{MM}, v{G2+v}")
        for k in range(1, 8):
            a(f"v_fmac_f32 v{ML+1}, v{MM+k}, v{LLr+k}")
            for v in range(4): a(f"v_fmac_f32 v{G2+v}, v{MM+k}, v{G2+4*k+v}")
        self.pack(G2, vTag)
        self.exec_lo32()
        a(f"buffer_store_dwordx4 {V(G2)}, v{tmp}, {WS}, s68 offen sc1")
        a(f"v_mov_b32 v{ML}, v{vMc}")
        a(f"v_mov_b32 v{ML+2}, 0"); a(f"v_mov_b32 v{ML+3}, v{vTag}")
        a("s_mov_b32 exec_lo, 1")
        a(f"buffer_store_dwordx4 {V(ML)}, v{vZ}, {WS}, s69 offen sc1")
        self.exec_full()
        a(f"{L}:")
        self.stamp(5)
        Le = self.lab("bend")
        a(f"s_cmp_lt_u32 s{sSub}, 5"); a(f"s_cbranch_scc0 {Le}")
        EG = VT + 48; ME = EG + 12; L_C = 24576
        O = U
        L = self.lab("bc"); a(f"s_cmp_eq_u32 s{sW}, 0"); a(f"s_cbranch_scc0 {L}")
        a(f"v_lshrrev_b32 v{tmp+1}, 5, v1"); a(f"v_lshlrev_b32 v{tmp+2}, 4, v{tmp+1}")
        a(f"v_lshl_add_u32 v{tmp+1}, v{tmp+1}, 9, v{tmp}")
        def gather_ob():
            for j in range(3): a(f"buffer_load_dwordx4 {V(EG+4*j)}, v{tmp+1}, {WS}, s78 offen offset:{1024*j} sc1")
            for j in range(3): a(f"buffer_load_dwordx4 {V(ME+4*j)}, v{tmp+2}, {WS}, s77 offen offset:{32*j} sc1")
        self.poll_loop(gather_ob, [EG + 4 * j + 3 for j in range(6)], sleep=0, name="bob")
        self.stamp(6)
        vMx = T; vL = T + 1
        def half_allred(r, op, t):
            a(f"v_mov_b32 v{t}, v{r}"); a(f"v_permlane32_swap_b32 v{r}, v{t}"); a(f"{op} v{r}, v{r}, v{t}")
        a(f"v_max3_f32 v{vMx}, v{ME}, v{ME+4}, v{ME+8}")
        half_allred(vMx, "v_max_f32", T + 2)
        for j in range(3): self.unpack(EG + 4 * j)
        for j in range(3): a(f"v_sub_f32 v{ME+4*j}, v{ME+4*j}, v{vMx}")
        for j in range(3): a(f"v_exp_f32 v{ME+4*j}, v{ME+4*j}")
        a(f"v_mul_f32 v{vL}, v{ME}, v{ME+1}")
        for v in range(4): a(f"v_mul_f32 v{O+v}, v{ME}, v{EG+v}")
        for j in range(1, 3):
            a(f"v_fmac_f32 v{vL}, v{ME+4*j}, v{ME+4*j+1}")
            for v in range(4): a(f"v_fmac_f32 v{O+v}, v{ME+4*j}, v{EG+4*j+v}")
        a(f"v_mov_b32 v{EG}, v{vL}")
        for v in range(4): a(f"v_mov_b32 v{EG+1+v}, v{O+v}")
        a(f"v_permlane32_swap_b32 v{vL}, v{EG}")
        for v in range(4): a(f"v_permlane32_swap_b32 v{O+v}, v{EG+1+v}")
        a(f"v_add_f32 v{vL}, v{vL}, v{EG}")
        for v in range(4): a(f"v_add_f32 v{O+v}, v{O+v}, v{EG+1+v}")
        a(f"v_rcp_f32 v{vL}, v{vL}")
        for v in range(4): a(f"v_mul_f32 v{O+v}, v{vL}, v{O+v}")
        for v in range(4): a(f"v_cvt_pk_bf16_f32 v{O+v}, v{O+v}, v{O+v}")
        self.exec_lo32()
        a(f"ds_write_b128 v{tmp}, {V(O)} offset:{L_C}")
        self.exec_full()
        a("s_waitcnt lgkmcnt(0)")
        a(f"s_branch {L}_j")
        a(f"{L}:")
        a("s_waitcnt vmcnt(0)")
        a(f"{L}_j:")
        a(f"s_lshl_b32 s68, s{sW}, 6"); a(f"v_add_u32 v{vG}, s68, v{vG}")
        a("s_barrier")
        a(f"ds_read_b128 {V(O)}, v{vG} offset:{L_C}")
        a("s_waitcnt lgkmcnt(0)")
        self.rowacc(DD, AB, M0, 4, lambda i: (O + i, None), lambda i: WO + 4 * i)
        self.exec_lo32()
        a(f"ds_write_b128 v{vA}, {V(DD)} offset:{L_Y}")
        self.exec_full()
        a("s_waitcnt lgkmcnt(0)")
        a("s_barrier")
        a(f"s_cmp_eq_u32 s{sW}, 0"); a(f"s_cbranch_scc0 {Le}")
        a(f"v_and_b32 v{tmp}, 31, v1"); a(f"v_lshlrev_b32 v{tmp}, 4, v{tmp}")
        for k in range(8): a(f"ds_read_b128 {V(G2+4*k)}, v{tmp} offset:{L_Y+512*k}")
        a(f"s_mul_i32 s68, s{sH}, 2560"); a(f"s_lshl_b32 s69, s{sSub}, 9"); a("s_add_u32 s68, s68, s69"); a(f"s_add_u32 s68, s68, {WS_YB}")
        a("s_waitcnt lgkmcnt(0)")
        self.tree_add(G2, 8)
        self.pack(G2, vTag)
        self.exec_lo32()
        a(f"buffer_store_dwordx4 {V(G2)}, v{tmp}, {WS}, s68 offen sc1")
        self.exec_full()
        a(f"{Le}:")
        self.stamp(7)
        self.finish("B")

if __name__ == "__main__":
    import argparse
    ap = argparse.ArgumentParser()
    ap.add_argument("-o", default="k.s"); ap.add_argument("--prof", action="store_true"); ap.add_argument("--dbgst", action="store_true")
    ap.add_argument("--roles", default="BPQ"); ap.add_argument("--spin", type=int, default=20000); ap.add_argument("--nt", default="nt")
    for k, d in dict(D=4, D0=2, Ds=4, ns=0, Dv=5, pf=1, bar=5, n1=9, prioA=1, NL=8, N1=4, pf2=1, bmap=1, NKS=18, hrot=1, exp=0, prio=0, UT=2).items(): ap.add_argument("--" + k, type=int, default=d)
    args = ap.parse_args()
    g = Gen4(prof=args.prof, D=args.D, spin=args.spin, roles=args.roles, nt=args.nt, dbgst=args.dbgst, D0=args.D0, Ds=args.Ds, ns=args.ns, Dv=args.Dv, pf=args.pf, bar=args.bar, n1=args.n1)
    g.prioA = args.prioA; g.NL = args.NL; g.N1 = args.N1; g.pf2 = args.pf2; g.bmap = args.bmap; g.NKS = args.NKS; g.hrot = args.hrot; g.exp = args.exp; g.prio = args.prio; g.UT = args.UT; g.lds = 163840 if args.NL else 131072
    open(args.o, "w").write(g.build())
    sys.path.insert(0, "exp"); import build
    print(build.build(args.o))
```
